```python
import torch

def _softmax(x, axis=-1):
    return torch.softmax(x, dim=axis)
def _gelu(x):
    return torch.nn.functional.gelu(x, approximate="tanh")
def _silu(x):
    return torch.nn.functional.silu(x)
def _sigmoid(x):
    return torch.sigmoid(x)
def _layernorm(x, axis=-1, eps=1e-5):
    m = x.mean(dim=axis, keepdim=True)
    v = x.var(dim=axis, keepdim=True, unbiased=False)
    return (x - m) / torch.sqrt(v + eps)
def _scatter_add(tgt, idx, src, axis=0):
    return tgt.clone().index_add_(axis, idx, src)
def _segment_sum(src, seg, n):
    out = torch.zeros((n,) + src.shape[1:], dtype=src.dtype)
    return out.index_add_(0, seg, src)
def _pad(x, pw):
    flat = tuple(v for pair in reversed(pw) for v in pair)
    return torch.nn.functional.pad(x, flat)

kernel_name = 'recurrent_scan__ssm_conv_h3__mixer_s_mlp__prompt'

def setup_inputs():

    _w = (lambda a: (lambda t: t.to(torch.bfloat16) if t.is_floating_point() else t)(torch.as_tensor(a)))
    def _A_setup():
        B, S, D = 1, 2048, 576
        ks = 4
        return {
            "q": _w((lambda *s: torch.randn(*s, dtype=torch.bfloat16) * 0.05)(B, S, D)),
            "k": _w((lambda *s: torch.randn(*s, dtype=torch.bfloat16) * 0.2)(B, S, D)),
            "v": _w((lambda *s: torch.randn(*s, dtype=torch.bfloat16) * 0.2)(B, S, D)),
            "shift_k": _w((lambda *s: torch.randn(*s, dtype=torch.bfloat16) * 0.2)(D, ks) * 0.5),
            "ssm_k": _w((lambda *s: torch.randn(*s, dtype=torch.bfloat16) * 0.2)(D, S) * (1.0 / S ** 0.5)),
            "ssm_D": _w((lambda *s: torch.randn(*s, dtype=torch.bfloat16) * 0.2)(D)),
        }
    _A_in = _A_setup()

    def _B_setup():
        B, S, D, F = 1, 2048, 576, 4608
        return {
            "x":  _w((lambda *s: torch.randn(*s, dtype=torch.bfloat16) * 0.05)(B, S, D)),
            "w1": _w((lambda *s: torch.randn(*s, dtype=torch.bfloat16) * 3.2)(D, D) * (D ** -0.5)),
            "w2": _w((lambda *s: torch.randn(*s, dtype=torch.bfloat16) * 3.2)(D, D) * (D ** -0.5)),
            "w3": _w((lambda *s: torch.randn(*s, dtype=torch.bfloat16) * 3.2)(D, F) * (D ** -0.5)),
            "w4": _w((lambda *s: torch.randn(*s, dtype=torch.bfloat16) * 3.2)(F, D) * (F ** -0.5)),
        }
    _B_in = _B_setup()

    return {
        "A_q": _A_in["q"],
        "A_k": _A_in["k"],
        "A_v": _A_in["v"],
        "A_shift_k": _A_in["shift_k"],
        "A_ssm_k": _A_in["ssm_k"],
        "A_ssm_D": _A_in["ssm_D"],
        "B_x": _B_in["x"],
        "B_w1": _B_in["w1"],
        "B_w2": _B_in["w2"],
        "B_w3": _B_in["w3"],
        "B_w4": _B_in["w4"],
    }

def reference(A_q, A_k, A_v, A_shift_k, A_ssm_k, A_ssm_D, B_x, B_w1, B_w2, B_w3, B_w4):
    def _A_ref(q, k, v, shift_k, ssm_k, ssm_D):
        B, S, D = q.shape
        ks = shift_k.shape[-1]
        k_pad = _pad(k, ((0, 0), (ks - 1, 0), (0, 0)))
        k_shift = torch.zeros_like(k)
        for t in range(ks):
            k_shift = k_shift + k_pad[:, t:t + S, :] * shift_k[:, ks - 1 - t][None, None, :]
        kv = k_shift * v
        L = 2 * S
        kv_pad = _pad(kv, ((0, 0), (0, S), (0, 0)))
        kf_pad = _pad(ssm_k, ((0, 0), (0, S)))
        kv_f = (lambda x, axes=(-2,-1): torch.fft.rfft2(x.float(), dim=axes))(kv_pad[:, None, :, :], axes=(1, 2))
        kf_f = (lambda x, axes=(-2,-1): torch.fft.rfft2(x.float(), dim=axes))(kf_pad[:, None, :], axes=(1, 2))
        kf_f = (lambda x, *d: x.permute(*d))(kf_f, 1, 2, 0)
        y_f = kv_f * kf_f[None, :, :, :]
        y = (lambda x, s, axes=(-2,-1): torch.fft.irfft2(x, s=s, dim=axes).to(torch.bfloat16))(y_f, (1, L), axes=(1, 2))[:, 0, :S, :]
        y = y + kv * ssm_D[None, None, :]
        return q * y

    def _B_ref(x, w1, w2, w3, w4):
        B, S, D = x.shape
        h = _gelu(_layernorm(x, axis=-1) @ w1)
        c = D // 4
        g0 = _pad(h[:, :, 0*c:1*c], ((0, 0), (1, 0), (0, 0)))[:, :S, :]
        g1 = _pad(h[:, :, 1*c:2*c], ((0, 0), (0, 1), (0, 0)))[:, 1:, :]
        g2 = _pad(h[:, :, 2*c:3*c], ((0, 0), (2, 0), (0, 0)))[:, :S, :]
        g3 = _pad(h[:, :, 3*c:   ], ((0, 0), (0, 2), (0, 0)))[:, 2:, :]
        hs = torch.concatenate([g0, g1, g2, g3], axis=-1) @ w2
        x1 = x + hs
        h2 = _gelu(_layernorm(x1, axis=-1) @ w3) @ w4
        return x1 + h2

    x = A_q
    xn = _layernorm(x, axis=-1)
    s = _A_ref(xn, A_k, A_v, A_shift_k, A_ssm_k, A_ssm_D)
    g = _silu(_B_ref(xn, B_w1, B_w2, B_w3, B_w4))
    return x + s * g
```

```python
class Asm:
    def __init__(self):
        self.lines = []
        self._lab = 0
    def __call__(self, s):
        for l in s.split('\n'):
            l = l.strip()
            if l:
                self.lines.append('    ' + l if not l.endswith(':') else l)
    def label(self, name):
        self.lines.append(name + ':')
    def newlabel(self, base='L'):
        self._lab += 1
        return f'{base}_{self._lab}'
    def comment(self, s):
        self.lines.append('    ; ' + s)
    def text(self):
        return '\n'.join(self.lines) + '\n'

def vr(a, n=1):
    return f'v{a}' if n == 1 else f'v[{a}:{a+n-1}]'
def sr(a, n=1):
    return f's{a}' if n == 1 else f's[{a}:{a+n-1}]'
def ar(a, n=1):
    return f'a{a}' if n == 1 else f'a[{a}:{a+n-1}]'

class Regs:
    def __init__(self, start=0, limit=256):
        self.n = start
        self.limit = limit
        self.names = {}
    def alloc(self, name, n=1, align=None):
        if align is None:
            align = 1 if n == 1 else (2 if n < 4 else 4) if n in (2, 3) or n % 4 else 4
            if n >= 2: align = max(align, 2)
        self.n = (self.n + align - 1) // align * align
        r = self.n
        self.n += n
        assert self.n <= self.limit, f'out of regs at {name}: {self.n}'
        self.names[name] = (r, n)
        return r

def kernel_header(name):
    return f'''.globl {name}
.p2align 8
.type {name},@function
{name}:
'''

def kernel_desc(name, vgpr, sgpr=102, accum=None):
    if accum is None:
        accum = (vgpr + 3) // 4 * 4
    return f'''.amdhsa_kernel {name}
  .amdhsa_next_free_vgpr {vgpr}
  .amdhsa_next_free_sgpr {sgpr}
  .amdhsa_accum_offset {accum}
  .amdhsa_group_segment_fixed_size 0
  .amdhsa_kernarg_size 112
  .amdhsa_user_sgpr_count 2
  .amdhsa_user_sgpr_kernarg_segment_ptr 1
  .amdhsa_system_sgpr_workgroup_id_x 1
.end_amdhsa_kernel
'''

def build_file(launches, kernels):
    out = []
    for (n, g, b, l) in launches:
        out.append(f'; @launch kernel={n} grid=({g},1,1) block=({b},1,1) lds={l}')
    out.append('.amdgcn_target "amdgcn-amd-amdhsa--gfx950"')
    out.append('.text')
    for k in kernels:
        out.append(kernel_header(k[0]) + k[1])
    out.append('.section .rodata,"a"')
    for k in kernels:
        out.append('.p2align 6')
        out.append(kernel_desc(k[0], k[2], k[3], k[4]))
    return '\n'.join(out) + '\n'
```

```python
from asmlib import *
import struct
MAT = 2048 * 576 * 2
WS_HF   = 0
WS_X1F  = 1 * MAT
WS_KVR  = 2 * MAT
WS_ZT   = 3 * MAT
WS_PF   = 4 * MAT
WS_ST1  = 12 * MAT
WS_ST2  = WS_ST1 + 16384
WS_CS3  = WS_ST2 + 9 * 16384
WS_TS   = 13 * MAT
WBYTES  = 576 * 4608 * 2
WS_WP3  = 14 * MAT
WS_WP4  = WS_WP3 + WBYTES
WS_END  = WS_WP4 + WBYTES

def f2u(x):
    return struct.unpack('<I', struct.pack('<f', x))[0]
def fhex(x):
    return '0x%08x' % f2u(x)

class Gen(Asm):
    def __init__(self):
        super().__init__()
        self.vm = []
        self.lg = []
    def vmem(self, s, tag=None):
        self(s); self.vm.append(tag)
    def lds(self, s, tag=None):
        self(s); self.lg.append(tag)
    def _n(self, q, tags):
        if not isinstance(tags, (list, tuple, set)) or (isinstance(tags, tuple)): tags = [tags]
        last = -1
        for i, t in enumerate(q):
            if t in tags: last = i
        if last < 0: return None
        return len(q) - 1 - last
    def wait(self, vm=None, lg=None, vm_all=False, lg_all=False):
        parts = []
        if vm_all: nv = 0 if self.vm else None
        else: nv = self._n(self.vm, vm) if vm is not None else None
        if lg_all: nl = 0 if self.lg else None
        else: nl = self._n(self.lg, lg) if lg is not None else None
        if nv is not None:
            nv = min(nv, 63)
            parts.append(f'vmcnt({nv})'); self.vm = self.vm[len(self.vm) - nv:] if nv else []
        if nl is not None:
            nl = min(nl, 15)
            parts.append(f'lgkmcnt({nl})'); self.lg = self.lg[len(self.lg) - nl:] if nl else []
        if parts: self('s_waitcnt ' + ' '.join(parts))
    def srd(self, d, lo, hi, size):
        self(f's_mov_b32 s{d}, s{lo}\ns_mov_b32 s{d+1}, s{hi}\ns_mov_b32 s{d+2}, {size}\ns_mov_b32 s{d+3}, 0x20000')

GELU_C0 = -2.0 * 1.4426950408889634 * 0.7978845608028654
GELU_C1 = GELU_C0 * 0.044715

def stamp_start(a, s=92):
    a(f's_memrealtime s[{s}:{s+1}]\ns_memtime s[{s+4}:{s+5}]')
def stamp_end(a, ws_lo, kidx, s=92, vtmp=0):
    a(f'''s_memrealtime s[{s+2}:{s+3}]
    s_memtime s[{s+6}:{s+7}]
    s_waitcnt lgkmcnt(0)
    s_lshl_b32 s{s+1}, s2, 4
    s_add_u32 s{s+1}, s{s+1}, {WS_TS + kidx * 16384}
    s_sub_u32 s{s+6}, s{s+6}, s{s+4}
    s_getreg_b32 s{s+7}, hwreg(HW_REG_XCC_ID)
    v_mov_b32 v{vtmp}, s{s}
    v_mov_b32 v{vtmp+1}, s{s+2}
    v_mov_b32 v{vtmp+2}, s{s+6}
    v_mov_b32 v{vtmp+3}, s{s+7}
    v_mov_b32 v{vtmp+4}, s{s+1}
    global_store_dwordx4 v{vtmp+4}, v[{vtmp}:{vtmp+3}], s[{ws_lo}:{ws_lo+1}]''')
```

```python
import re
_reg = re.compile(r'^(-|\|)?(abs\()?([vsa])(\d+|\[(\d+):(\d+)\])\)?\|?$')
TRANS = ('v_exp_f32', 'v_log_f32', 'v_rcp_f32', 'v_rsq_f32', 'v_sqrt_f32', 'v_sin_f32', 'v_cos_f32', 'v_rcp_iflag_f32')

def regs_of(tok):
    tok = tok.strip()
    if tok == 'vcc': return {('s', 106), ('s', 107)}
    if tok == 'vcc_lo': return {('s', 106)}
    if tok == 'vcc_hi': return {('s', 107)}
    if tok == 'exec': return {('s', 126), ('s', 127)}
    if tok == 'm0': return {('s', 124)}
    m = _reg.match(tok)
    if not m: return set()
    f = m.group(3)
    if m.group(5) is not None:
        return {(f, i) for i in range(int(m.group(5)), int(m.group(6)) + 1)}
    return {(f, int(m.group(4)))}

def split_ops(s):
    out = []; depth = 0; cur = ''
    for ch in s:
        if ch in '[(': depth += 1
        if ch in '])': depth -= 1
        if ch == ',' and depth == 0:
            out.append(cur.strip()); cur = ''
        else: cur += ch
    if cur.strip(): out.append(cur.strip())
    return out

class I:
    pass

def parse(line):
    s = line.split(';')[0].strip()
    if not s or s.endswith(':') or s.startswith('.'): return None
    parts = s.split(None, 1)
    i = I(); i.mn = parts[0]; rest = parts[1] if len(parts) > 1 else ''
    ops = split_ops(rest)
    mods = ''
    if ops:
        l = ops[-1].split(None, 1)
        ops[-1] = l[0]
        if len(l) > 1: mods = l[1]
    i.ops = ops; i.mods = mods
    mn = i.mn
    i.w = set(); i.r = set(); i.kind = 'other'; i.srcc = set(); i.ab = set(); i.passes = 0
    R = [regs_of(o) for o in ops]
    if mn.startswith('v_mfma'):
        i.kind = 'mfma'; i.w = R[0]; i.ab = R[1] | R[2]; i.srcc = R[3]; i.r = i.ab | i.srcc
        i.passes = 8 if '32x32x16' in mn else 4 if '16x16x32' in mn else 16
    elif mn.startswith('v_'):
        i.kind = 'valu'
        base = mn.replace('_e32', '').replace('_e64', '').replace('_dpp', '').replace('_sdwa', '')
        if base.startswith('v_cmp'):
            i.w = R[0]; i.r = set().union(*R[1:])
            if base.startswith('v_cmpx'): i.w = i.w | regs_of('exec')
        elif base in ('v_add_co_u32', 'v_sub_co_u32', 'v_addc_co_u32', 'v_subb_co_u32', 'v_subrev_co_u32', 'v_mad_u64_u32', 'v_div_scale_f32'):
            i.w = R[0] | R[1]; i.r = set().union(*R[2:])
        elif base.startswith('v_permlane') and 'swap' in base or base == 'v_swap_b32':
            i.w = R[0] | R[1]; i.r = R[0] | R[1]
        elif base == 'v_nop':
            pass
        else:
            i.w = R[0]; i.r = set().union(*R[1:]) if len(R) > 1 else set()
            if base in ('v_fmac_f32', 'v_pk_fmac_f16', 'v_dot2c_f32_bf16', 'v_dot2c_f32_f16', 'v_writelane_b32') or 'dpp' in mn or 'sdwa' in mn or 'row_' in mods or 'quad_perm' in mods or 'op_sel' in mods and base.startswith('v_cvt'):
                i.r |= R[0]
        i.trans = base in TRANS
        i.dpp = 'dpp' in mn or 'row_' in mods or 'quad_perm' in mods or 'wave_' in mods
        i.perml = base.startswith('v_permlane')
        i.rdlane = base in ('v_readfirstlane_b32', 'v_readlane_b32')
        i.dot = base.startswith('v_dot')
        i.sdwa = 'sdwa' in mn or 'dst_sel' in mods
        i.base = base
    elif mn.startswith('ds_'):
        i.kind = 'ds'
        if mn.startswith('ds_read') or mn.startswith('ds_bpermute') or mn.startswith('ds_permute') or mn.startswith('ds_swizzle') or '_rtn' in mn:
            i.w = R[0]; i.r = set().union(*R[1:])
        else:
            i.r = set().union(*R)
    elif mn.startswith('buffer_') or mn.startswith('global_'):
        i.kind = 'vmem'
        islds = ' lds' in (' ' + mods) or '_lds_' in mn
        i.islds = islds
        if mn.startswith('buffer_wbl2') or mn.startswith('buffer_inv'):
            pass
        elif 'load' in mn and not islds:
            i.w = R[0]; i.r = set().union(*R[1:])
        elif 'atomic' in mn and 'sc0' in mods:
            i.w = R[0]; i.r = set().union(*R) if mn.startswith('buffer') else set().union(*R[1:])
        else:
            i.r = set().union(*R)
        i.widestore = set()
        if 'store' in mn and ('x4' in mn or 'x3' in mn):
            i.widestore = R[0] if mn.startswith('buffer') else R[1]
    elif mn.startswith('s_'):
        i.kind = 'salu'
        if mn.startswith('s_cmp') or mn.startswith('s_cbranch') or mn in ('s_branch', 's_waitcnt', 's_barrier', 's_nop', 's_endpgm', 's_setprio', 's_sleep', 's_bitcmp1_b32', 's_bitcmp0_b32'):
            i.r = set().union(*R) if R else set()
        else:
            i.w = R[0] if R else set(); i.r = set().union(*R[1:]) if len(R) > 1 else set()
            if 'saveexec' in mn: i.w = i.w | regs_of('exec')
    return i

def states(i):
    if i.mn == 's_nop': return int(i.ops[0], 0) + 1
    return 1

def need(p, c):
    n = 0
    vw = {r for r in p.w if r[0] in 'va'}
    sw = {r for r in p.w if r[0] == 's'}
    if p.kind == 'valu':
        if c.kind == 'mfma':
            if vw & c.r: n = max(n, 2)
            if sw & regs_of('exec'): n = max(n, 4)
        if c.kind == 'valu':
            if p.trans and not c.trans and vw & c.r: n = max(n, 1)
            if sw & c.r: n = max(n, 4 if c.base in ('v_readlane_b32', 'v_writelane_b32') else 2)
            if c.base == 'v_div_fmas_f32' and sw & regs_of('vcc'): n = max(n, 4)
            if c.rdlane and vw & c.r: n = max(n, 1)
            if (c.dpp or c.perml) and vw & c.r: n = max(n, 2)
            if sw & regs_of('exec'):
                if c.dpp: n = max(n, 5)
                if c.rdlane or c.perml or c.base == 'v_writelane_b32': n = max(n, 4)
            if p.sdwa and vw & (c.r | c.w): n = max(n, 1)
            if p.dot and vw & (c.r | c.w):
                same = c.base == p.base and not (vw & (c.r - c.w))
                if not same: n = max(n, 3)
        if p.dot and c.kind in ('ds', 'vmem', 'mfma') and vw & c.r: n = max(n, 3)
        if c.kind == 'vmem' and sw & c.r: n = max(n, 5)
        if c.kind == 'salu' and sw & c.r: n = max(n, 1)
    if p.kind == 'mfma':
        big = {4: 8, 8: 12, 16: 20}[p.passes]
        if c.kind == 'mfma':
            if p.w & c.ab: n = max(n, big)
            if p.w & c.srcc and not (p.w == c.srcc and p.passes == c.passes): n = max(n, big - 2)
            if p.w & c.w and not (p.w == c.srcc) : n = max(n, big - 2)
        elif c.kind in ('valu', 'ds', 'vmem'):
            if p.w & (c.r | c.w): n = max(n, big)
            if c.kind == 'valu' and p.srcc & c.w: n = max(n, {4: 3, 8: 7, 16: 15}[p.passes])
    if p.kind == 'salu':
        if ('s', 124) in p.w and c.kind == 'vmem' and c.islds: n = max(n, 1)
    if p.kind == 'vmem' and p.widestore:
        if p.widestore & c.w: n = max(n, 2 if c.kind in ('valu', 'mfma') else 1)
    return n

def fix(text, verbose=False):
    out = []; hist = []
    added = 0
    for line in text.split('\n'):
        c = parse(line)
        if c is None:
            out.append(line); continue
        dist = 0; pad = 0
        for p in reversed(hist):
            n = need(p, c)
            if n - dist > pad: pad = n - dist
            dist += states(p)
            if dist >= 20: break
        while pad > 0:
            k = min(pad, 16)
            nop = f'    s_nop {k-1}'
            out.append(nop); hist.append(parse(nop)); pad -= k; added += k
        out.append(line); hist.append(c)
        if len(hist) > 40: hist = hist[-40:]
    if verbose: print('hazard fixer added', added, 'wait states')
    return '\n'.join(out)
```

```python
from common import *

def bf16r(a, d, s):
    a(f'v_cvt_pk_bf16_f32 v{d}, v{s}, v{s}\nv_lshlrev_b32 v{d}, 16, v{d}')

def gelu_ops(x, t, n, sC1, vC0):
    st = [lambda i: f'v_mul_f32 v{t+i}, v{x+i}, v{x+i}',
          lambda i: f'v_fma_f32 v{t+i}, v{t+i}, s{sC1}, v{vC0}',
          lambda i: f'v_mul_f32 v{t+i}, v{t+i}, v{x+i}',
          lambda i: f'v_exp_f32 v{t+i}, v{t+i}',
          lambda i: f'v_add_f32 v{t+i}, 1.0, v{t+i}',
          lambda i: f'v_rcp_f32 v{t+i}, v{t+i}',
          lambda i: f'v_mul_f32 v{x+i}, v{x+i}, v{t+i}']
    return [f(i) for f in st for i in range(n)]

K1_LDS = 73728 + 81920 + 256

def gen_gemm1(a, stamps):
    X = 4; ACC = 76; SUM = 92; GR = 96; ONE = 100; WF = 104
    T = 136; CSR = 104
    vXo, vWo, vXr, vTr, vTr2, vC0 = 144, 145, 146, 147, 148, 149
    sMt, sC, sW, sTmp, sTmp2, sXo, sWo, sXl, sC1 = 20, 21, 22, 23, 24, 25, 26, 27, 30
    XB = 73728; CSB = 73728 + 81920
    a(f'''
    s_load_dwordx2 s[4:5], s[0:1], 0
    s_load_dwordx2 s[6:7], s[0:1], 56
    s_load_dwordx2 s[28:29], s[0:1], 104
    s_and_b32 s{sMt}, s2, 7
    s_lshl_b32 s{sMt}, s{sMt}, 1
    s_bfe_u32 s{sTmp}, s2, 0x10003
    s_add_u32 s{sMt}, s{sMt}, s{sTmp}
    s_lshr_b32 s{sC}, s2, 4
    v_lshrrev_b32 v1, 6, v0
    v_and_b32 v0, 63, v0
    v_readfirstlane_b32 s{sW}, v1
    ''')
    a(f'''
    v_lshrrev_b32 v1, 4, v0
    v_bfe_u32 v2, v0, 2, 2
    v_lshl_add_u32 v3, v1, 3, v2
    v_lshlrev_b32 v3, 7, v3
    v_lshrrev_b32 v2, 1, v2
    v_and_b32 v1, 1, v1
    v_lshl_add_u32 v2, v1, 1, v2
    v_lshl_add_u32 v3, v2, 5, v3
    v_and_b32 v2, 3, v0
    v_lshl_add_u32 v152, v2, 3, v3
    v_xor_b32 v153, 32, v152
    v_xor_b32 v154, 64, v152
    v_xor_b32 v155, 96, v152
    ''')
    for t in range(4): a(f'v_add_u32 v{156+t}, 36864, v{152+t}')
    for i in range(4): a(f'v_mov_b32 v{ONE+i}, 0x3f803f80')
    def wrd(u, buf):
        for t in range(4):
            for h in range(2):
                o = u * 4096 + h * 512
                b = 152 + t + (4 if o >= 36864 else 0); o -= 36864 if o >= 36864 else 0
                a.lds(f'ds_read_b64_tr_b16 {vr(WF + 16*buf + 4*t + 2*h, 2)}, v{b} offset:{o}', ('wr', u))
    a(f's_cmp_eq_u32 s{sW}, 8\ns_cbranch_scc1 K1_cswave')
    a(f'''
    v_lshrrev_b32 v1, 2, v0
    v_mul_u32_u24 v{vXo}, 1152, v1
    v_and_b32 v2, 3, v0
    v_lshrrev_b32 v3, 4, v0
    v_and_b32 v3, 2, v3
    v_xor_b32 v2, v2, v3
    v_lshl_add_u32 v{vXo}, v2, 4, v{vXo}
    s_lshl_b32 s{sTmp}, s{sMt}, 7
    s_lshl_b32 s{sTmp2}, s{sW}, 4
    s_add_u32 s{sTmp}, s{sTmp}, s{sTmp2}
    s_mul_i32 s{sXo}, s{sTmp}, 1152
    s_mul_i32 s{sXl}, s{sW}, 10240
    s_add_u32 s{sXl}, s{sXl}, {XB}
    v_lshrrev_b32 v1, 3, v0
    v_mul_u32_u24 v{vWo}, 1152, v1
    v_bfe_u32 v2, v0, 4, 1
    s_and_b32 s{sTmp2}, s{sW}, 1
    s_lshl_b32 s{sTmp2}, s{sTmp2}, 1
    v_or_b32 v2, s{sTmp2}, v2
    v_lshlrev_b32 v2, 1, v2
    v_and_b32 v3, 7, v0
    v_xor_b32 v2, v2, v3
    v_lshl_add_u32 v{vWo}, v2, 4, v{vWo}
    s_mul_i32 s{sWo}, s{sW}, {8*1152}
    s_lshl_b32 s{sTmp2}, s{sC}, 7
    s_add_u32 s{sWo}, s{sWo}, s{sTmp2}
    s_lshl_b32 s31, s{sW}, 10
    s_waitcnt lgkmcnt(0)
    ''')
    a.srd(8, 4, 5, MAT); a.srd(12, 6, 7, 576*1152); a.srd(16, 28, 29, WS_END)
    def xdma(u):
        a(f's_add_u32 m0, s{sXl}, {(u % 10) * 1024 - u * 64}')
        a('s_nop 0')
        a.vmem(f'buffer_load_dwordx4 v{vXo}, s[8:11], s{sXo} offen offset:{u*64} lds', ('x', u))
    def wdma(i):
        a(f's_add_u32 m0, s31, {i * 8192}')
        a(f's_add_u32 s{sTmp}, s{sWo}, {i * 64 * 1152}')
        a.vmem(f'buffer_load_dwordx4 v{vWo}, s[12:15], s{sTmp} offen lds', ('w', i))
    for i in range(5):
        xdma(2*i); xdma(2*i + 1); wdma(i)
    for i in range(5, 9): wdma(i)
    a(f'''
    v_and_b32 v1, 15, v0
    v_lshrrev_b32 v2, 4, v0
    v_lshrrev_b32 v3, 3, v1
    v_lshlrev_b32 v3, 1, v3
    v_xor_b32 v2, v2, v3
    v_lshl_add_u32 v2, v1, 2, v2
    v_lshl_add_u32 v{vXr}, v2, 4, s{sXl}
    s_mov_b32 s{sC1}, {fhex(GELU_C1)}
    v_mov_b32 v{vC0}, {fhex(GELU_C0)}
    ''')
    def xrd(u): a.lds(f'ds_read_b128 {vr(X + 4*u, 4)}, v{vXr} offset:{(u % 10) * 1024}', ('xr', u))
    def step(u, nxt):
        if nxt is not None: wrd(nxt, nxt % 2)
        a.wait(lg=[('wr', u), ('xr', u)])
        x = vr(X + 4*u, 4)
        for t in range(4):
            a(f'v_mfma_f32_16x16x32_bf16 {vr(ACC+4*t, 4)}, {vr(WF + 16*(u%2) + 4*t, 4)}, {x}, {"0" if u == 0 else vr(ACC+4*t, 4)}')
        a(f'v_mfma_f32_16x16x32_bf16 {vr(SUM, 4)}, {vr(ONE, 4)}, {x}, {"0" if u == 0 else vr(SUM, 4)}')
        a(f'v_mfma_f32_16x16x32_bf16 {vr(GR, 4)}, {x}, {x}, {"0" if u == 0 else vr(GR, 4)}')
    a.wait(vm=('w', 2)); a('s_barrier')
    for u in range(6): xrd(u)
    wrd(0, 0)
    a.wait(lg=('xr', 5))
    for u in range(10, 16): xdma(u)
    for u in range(6): step(u, u + 1 if u < 5 else None)
    a.wait(vm=('w', 5)); a('s_barrier')
    for u in range(6, 10): xrd(u)
    wrd(6, 0)
    a.wait(lg=('xr', 9))
    xdma(16); xdma(17)
    for u in range(6, 10): step(u, u + 1)
    a.wait(vm=('x', 11)); xrd(10); xrd(11)
    step(10, 11); step(11, None)
    a('s_barrier')
    wrd(12, 0)
    a.wait(vm=('x', 15))
    for u in range(12, 16): xrd(u)
    step(12, 13); step(13, 14)
    a.wait(vm=('x', 17)); xrd(16); xrd(17)
    for u in range(14, 18): step(u, u + 1 if u < 17 else None)
    a(f'''
    v_and_b32 v1, 3, v0
    v_cmp_eq_u32 vcc, 1, v1
    v_cmp_eq_u32 s[32:33], 2, v1
    v_cmp_eq_u32 s[34:35], 3, v1
    v_and_b32 v2, 15, v0
    v_lshrrev_b32 v3, 2, v2
    v_lshl_add_u32 v3, v3, 4, v2
    v_lshlrev_b32 v3, 2, v3
    v_cndmask_b32 v{GR}, v{GR}, v{GR+1}, vcc
    v_cndmask_b32 v{GR}, v{GR}, v{GR+2}, s[32:33]
    v_cndmask_b32 v{GR}, v{GR}, v{GR+3}, s[34:35]
    ''')
    a.lds(f'ds_bpermute_b32 v{GR+1}, v3, v{GR}', 'gr')
    m, var, m1, r1, t0, t1 = T, T+1, T+2, T+3, T+4, T+5
    al, be = T+6, T+7
    a(f'v_mul_f32 v{m}, {fhex(1/576)}, v{SUM}')
    bf16r(a, m1, m)
    a.wait(lg='gr')
    a(f'''v_mul_f32 v{var}, {fhex(1/576)}, v{GR+1}
    v_fma_f32 v{var}, -v{m}, v{m}, v{var}
    v_max_f32 v{var}, 0, v{var}''')
    def dn(dst, v):
        bf16r(a, dst, v)
        a(f'v_add_f32 v{dst}, {fhex(1e-5)}, v{dst}')
        bf16r(a, dst, dst)
        a(f'v_sqrt_f32 v{dst}, v{dst}')
        bf16r(a, dst, dst)
        a(f'v_rcp_f32 v{dst}, v{dst}')
    dn(r1, var)
    a(f'''v_sub_f32 v{t0}, v{m}, v{m1}
    v_mul_f32 v{t0}, v{t0}, v{r1}
    v_mul_f32 v{var}, v{var}, v{r1}
    v_mul_f32 v{var}, v{var}, v{r1}''')
    bf16r(a, t0, t0)
    dn(t1, var)
    a(f'''v_fma_f32 v{t0}, v{m1}, v{r1}, v{t0}
    v_mul_f32 v{al}, v{r1}, v{t1}
    v_mul_f32 v{be}, v{t0}, v{t1}
    v_sub_f32 v{be}, 0, v{be}''')
    a(f'''s_lshl_b32 s{sTmp}, s{sMt}, 7
    s_lshl_b32 s{sTmp2}, s{sW}, 4
    s_add_u32 s{sTmp}, s{sTmp}, s{sTmp2}
    v_add_u32 v2, s{sTmp}, v2
    v_and_b32 v1, 48, v0
    v_add_u32 v{vTr}, {CSB}, v1
    s_barrier''')
    for t in range(4): a.lds(f'ds_read_b128 {vr(CSR+4*t, 4)}, v{vTr} offset:{64*t}', 'cs')
    a(f'''v_lshlrev_b32 v3, 3, v2
    s_cmp_eq_u32 s{sC}, 0
    s_mov_b32 s{sTmp}, {WS_ST1}
    s_cselect_b32 s{sTmp}, s{sTmp}, {WS_END}
    buffer_store_dwordx2 {vr(m1, 2)}, v3, s[16:19], s{sTmp} offen''')
    for t in range(4):
        a(f'''s_lshl_b32 s{sTmp}, s{sC}, 2
        s_add_u32 s{sTmp}, s{sTmp}, {t}
        s_mul_i32 s{sTmp}, s{sTmp}, 57
        s_lshr_b32 s{sTmp}, s{sTmp}, 9
        s_lshr_b32 s{sTmp2}, s{sTmp}, 1
        s_add_u32 s{sTmp2}, s{sTmp2}, 1
        s_bitcmp1_b32 s{sTmp}, 0
        s_cselect_b32 s{sTmp}, -1, 1
        s_mul_i32 s{sTmp}, s{sTmp}, s{sTmp2}
        v_add_u32 v{X+4}, s{sTmp}, v2
        v_cmp_gt_u32 s[{40+2*t}:{41+2*t}], 0x800, v{X+4}
        v_and_b32 v{X+4}, 0x7ff, v{X+4}
        v_lshrrev_b32 v{X+5}, 4, v{X+4}
        v_mul_u32_u24 v{X+5}, 18432, v{X+5}
        v_and_b32 v{X+4}, 15, v{X+4}
        v_add_u32 v{X+4}, v{X+4}, v1
        v_lshl_add_u32 v{X+t}, v{X+4}, 4, v{X+5}'''.replace('v_cmp_gt_u32 s[', 's_movk_i32 s36, 0x800\nv_cmp_gt_u32 s[').replace(', 0x800, v', ', s36, v'))
    a.wait(lg='cs')
    for i in range(16): a(f'v_mul_f32 v{CSR+i}, v{CSR+i}, v{be}')
    for i in range(16): a(f'v_fma_f32 v{ACC+i}, v{ACC+i}, v{al}, v{CSR+i}')
    for op in gelu_ops(ACC, CSR, 16, sC1, vC0): a(op)
    a(f's_lshl_b32 s{sTmp}, s{sC}, 11\ns_add_u32 s{sTmp}, s{sTmp}, {WS_HF}')
    for t in range(4):
        d = X + 8 + 2*t
        a(f'''v_cvt_pk_bf16_f32 v{d}, v{ACC+4*t}, v{ACC+4*t+1}
        v_cvt_pk_bf16_f32 v{d+1}, v{ACC+4*t+2}, v{ACC+4*t+3}
        v_cndmask_b32 v{d}, 0, v{d}, s[{40+2*t}:{41+2*t}]
        v_cndmask_b32 v{d+1}, 0, v{d+1}, s[{40+2*t}:{41+2*t}]
        buffer_store_dwordx2 {vr(d, 2)}, v{X+t}, s[16:19], s{sTmp} offen offset:{(t >> 1) * 1024 + (t & 1) * 8}''')
    a('s_branch K1_fin')
    a.label('K1_cswave')
    a.vm = []; a.lg = []
    a('s_waitcnt lgkmcnt(0)')
    for th in range(3):
        a('s_barrier')
        wrd(6*th, 0)
        for u in range(6*th, 6*th + 6):
            if u % 6 < 5: wrd(u + 1, (u + 1) % 2)
            a.wait(lg=('wr', u))
            for t in range(4):
                a(f'v_mfma_f32_16x16x32_bf16 {vr(ACC+4*t, 4)}, {vr(WF + 16*(u%2) + 4*t, 4)}, {vr(ONE, 4)}, {"0" if u == 0 else vr(ACC+4*t, 4)}')
    a(f'v_and_b32 v1, 48, v0\nv_add_u32 v{vTr}, {CSB}, v1')
    for t in range(4): a(f'ds_write_b128 v{vTr}, {vr(ACC+4*t, 4)} offset:{64*t}')
    a('s_waitcnt lgkmcnt(0)\ns_barrier\ns_branch K1_fin')

def gen_repack_unit(a, sSrcOff, pitch, srd_src, sDst, sLds, colsum_acc=None, vb=4):
    D = vb; vS = vb + 32; vR = vb + 33; vL = vb + 37
    a(f'''
    v_lshrrev_b32 v1, 3, v0
    v_mul_u32_u24 v{vS}, {pitch}, v1
    v_lshrrev_b32 v2, 3, v0
    v_and_b32 v2, 6, v2
    v_and_b32 v3, 7, v0
    v_xor_b32 v2, v2, v3
    v_lshl_add_u32 v{vS}, v2, 4, v{vS}
    s_mov_b32 m0, s{sLds}''')
    for i in range(8):
        a.vmem(f'buffer_load_dwordx4 v{vS}, s[{srd_src}:{srd_src+3}], s{sSrcOff} offen lds', ('rp', i // 4))
        if i < 7: a(f's_add_u32 m0, m0, 1024\ns_add_u32 s{sSrcOff}, s{sSrcOff}, {8*pitch}')
    a(f'''
    v_lshrrev_b32 v1, 2, v0
    v_lshlrev_b32 v3, 7, v1
    v_bfe_u32 v2, v1, 1, 2
    v_lshl_add_u32 v3, v2, 5, v3
    v_and_b32 v2, 3, v0
    v_lshl_add_u32 v3, v2, 3, v3
    v_add_u32 v{vR}, s{sLds}, v3
    v_xor_b32 v{vR+1}, 32, v{vR}
    v_xor_b32 v{vR+2}, 64, v{vR}
    v_xor_b32 v{vR+3}, 96, v{vR}
    v_lshlrev_b32 v{vL}, 4, v0''')
    for uu in range(2):
        a.wait(vm=('rp', uu))
        for t in range(4):
            for h in range(2):
                a.lds(f'ds_read_b64_tr_b16 {vr(D + 16*uu + 4*t + 2*h, 2)}, v{vR+t} offset:{uu*4096 + h*2048}', ('rr', uu, t))
    for uu in range(2):
        for t in range(4):
            a.wait(lg=('rr', uu, t))
            if t: a(f's_add_u32 s{sDst}, s{sDst}, 18432')
            a.vmem(f'buffer_store_dwordx4 {vr(D + 16*uu + 4*t, 4)}, v{vL}, s[16:19], s{sDst} offen offset:{uu*1024}', 'st')
            if colsum_acc is not None:
                acc, one = colsum_acc
                a(f'v_mfma_f32_16x16x32_bf16 {vr(acc+4*t, 4)}, {vr(one, 4)}, {vr(D + 16*uu + 4*t, 4)}, {"0" if uu == 0 else vr(acc+4*t, 4)}')
        if uu == 0: a(f's_sub_u32 s{sDst}, s{sDst}, {3*18432}')

def gen_repack3(a):
    sSl, sC, sW, sSrc, sDst, sLds, sTmp = 20, 21, 22, 23, 24, 25, 26
    ACC = 48; ONE = 64
    a(f'''
    s_load_dwordx2 s[4:5], s[0:1], 72
    s_load_dwordx2 s[28:29], s[0:1], 104
    s_sub_u32 s{sC}, s2, 144
    s_and_b32 s{sSl}, s{sC}, 7
    s_lshr_b32 s{sC}, s{sC}, 3
    v_lshrrev_b32 v1, 6, v0
    v_and_b32 v0, 63, v0
    v_readfirstlane_b32 s{sW}, v1
    s_mul_i32 s{sSrc}, s{sSl}, 1152
    s_lshl_b32 s{sTmp}, s{sC}, 7
    s_add_u32 s{sSrc}, s{sSrc}, s{sTmp}
    s_mul_i32 s{sTmp}, s{sW}, {64*9216}
    s_add_u32 s{sSrc}, s{sSrc}, s{sTmp}
    s_mul_i32 s{sDst}, s{sSl}, 9
    s_add_u32 s{sDst}, s{sDst}, s{sC}
    s_lshl_b32 s27, s{sDst}, 8
    s_mul_i32 s{sDst}, s{sDst}, 73728
    s_lshl_b32 s{sTmp}, s{sW}, 11
    s_add_u32 s{sDst}, s{sDst}, s{sTmp}
    s_add_u32 s{sDst}, s{sDst}, {WS_WP3}
    s_lshl_b32 s{sLds}, s{sW}, 13
    s_waitcnt lgkmcnt(0)''')
    a.srd(8, 4, 5, WBYTES); a.srd(16, 28, 29, WS_END)
    for i in range(4): a(f'v_mov_b32 v{ONE+i}, 0x3f803f80')
    a.vm = []; a.lg = []
    gen_repack_unit(a, sSrc, 9216, 8, sDst, sLds, (ACC, ONE))
    a(f'''
    v_lshrrev_b32 v1, 4, v0
    v_cmp_eq_u32 vcc, 1, v1
    v_cmp_eq_u32 s[32:33], 2, v1
    v_cmp_eq_u32 s[34:35], 3, v1
    s_lshl_b32 s{sTmp}, s{sW}, 8
    s_add_u32 s{sTmp}, s{sTmp}, 73728
    v_lshl_add_u32 v2, v0, 2, s{sTmp}
    v_cndmask_b32 v{ACC}, v{ACC}, v{ACC+4}, vcc
    v_cndmask_b32 v{ACC}, v{ACC}, v{ACC+8}, s[32:33]
    v_cndmask_b32 v{ACC}, v{ACC}, v{ACC+12}, s[34:35]
    ds_write_b32 v2, v{ACC}
    s_waitcnt lgkmcnt(0)
    s_barrier
    s_cmp_lg_u32 s{sW}, 0
    s_cbranch_scc1 K1_fin''')
    for i in range(1, 9): a(f'ds_read_b32 v{ACC+i}, v2 offset:{256*i}')
    a('s_waitcnt lgkmcnt(0)')
    for i in range(1, 9): a(f'v_add_f32 v{ACC}, v{ACC}, v{ACC+i}')
    a(f'''v_lshlrev_b32 v2, 2, v0
    s_add_u32 s27, s27, {WS_CS3}
    buffer_store_dword v{ACC}, v2, s[16:19], s27 offen
    s_branch K1_fin''')

def gen_kvprep(a):
    sTq, sC, sW, sTmp, sTmp2 = 20, 21, 22, 23, 24
    KR = 4; VR_ = 48; CF = 80; CU = 96; KC = 128; O = 140; P = 148; vK = 152; vKm = 153; vW = 154
    a(f'''
    s_load_dwordx4 s[4:7], s[0:1], 8
    s_load_dwordx2 s[36:37], s[0:1], 24
    s_load_dwordx2 s[28:29], s[0:1], 104
    s_sub_u32 s{sC}, s2, 216
    s_and_b32 s{sTq}, s{sC}, 3
    s_lshr_b32 s{sC}, s{sC}, 2
    v_lshrrev_b32 v1, 6, v0
    s_nop 0
    v_readfirstlane_b32 s{sW}, v1
    s_nop 0
    s_cmp_eq_u32 s{sW}, 8
    s_cbranch_scc1 K1_end
    v_lshrrev_b32 v1, 3, v0
    v_and_b32 v2, 7, v0
    s_lshl_b32 s{sTmp}, s{sTq}, 6
    v_add_u32 v3, s{sTmp}, v1
    v_mul_u32_u24 v{vK}, {8*1152}, v3
    v_lshl_add_u32 v{vK}, v2, 4, v{vK}
    s_lshl_b32 s{sTmp}, s{sC}, 7
    v_add_u32 v{vK}, s{sTmp}, v{vK}
    v_subrev_u32 v{vKm}, 3456, v{vK}
    v_lshlrev_b32 v3, 6, v2
    s_lshl_b32 s{sTmp2}, s{sC}, 9
    s_waitcnt lgkmcnt(0)''')
    a.srd(8, 4, 5, MAT); a.srd(12, 6, 7, MAT); a.srd(32, 36, 37, 576*8); a.srd(16, 28, 29, WS_END)
    a.vm = []; a.lg = []
    for i in range(4): a.vmem(f'buffer_load_dwordx4 {vr(CF+4*i, 4)}, v3, s[32:35], s{sTmp2} offen offset:{16*i}', 'cf')
    for i in range(3): a.vmem(f'buffer_load_dwordx4 {vr(KR+4*i, 4)}, v{vKm}, s[8:11], 0 offen offset:{1152*i}', 'k')
    for i in range(8):
        if i % 3 == 0: a(f's_mov_b32 s{sTmp}, {1152*i}')
        a.vmem(f'buffer_load_dwordx4 {vr(KR+12+4*i, 4)}, v{vK}, s[8:11], s{sTmp} offen offset:{1152*(i%3)}', 'k')
        a.vmem(f'buffer_load_dwordx4 {vr(VR_+4*i, 4)}, v{vK}, s[12:15], s{sTmp} offen offset:{1152*(i%3)}', 'k')
    a(f'''v_sub_u32 v1, 63, v1
    v_xor_b32 v1, v1, v2
    v_lshlrev_b32 v1, 4, v1
    v_lshl_add_u32 v{vW}, v2, 13, v1''')
    a.wait(vm='cf')
    for i in range(16):
        a(f'v_lshlrev_b32 v{CU+2*i}, 16, v{CF+i}\nv_and_b32 v{CU+2*i+1}, 0xffff0000, v{CF+i}')
    a.wait(vm='k')
    for ch in range(8):
        def unp(d, s): return f'v_lshlrev_b32 v{d}, 16, v{s}' if ch % 2 == 0 else f'v_and_b32 v{d}, 0xffff0000, v{s}'
        for i in range(11): a(unp(KC + i, KR + 4*i + ch // 2))
        c = CU + 4 * ch
        for t in range(8): a(f'v_mul_f32 v{O+t}, v{KC+t}, v{c+3}')
        for j in (2, 1, 0):
            for t in range(8): a(f'v_fmac_f32 v{O+t}, v{KC+t+3-j}, v{c+j}')
        for t in range(8): a(unp(KC + t, VR_ + 4*t + ch // 2))
        for t in range(8): a(f'v_mul_f32 v{O+t}, v{O+t}, v{KC+t}')
        pp = P if ch % 2 == 0 else CF
        for i in range(4): a(f'v_cvt_pk_bf16_f32 v{pp+i}, v{O+7-2*i}, v{O+6-2*i}')
        a(f'ds_write_b128 v{vW}, {vr(pp, 4)} offset:{ch*1024}')
    a(f'''v_and_b32 v0, 63, v0
    v_xor_b32 v1, s{sW}, v0
    v_lshlrev_b32 v1, 4, v1
    s_lshl_b32 s{sTmp}, s{sW}, 13
    v_add_u32 v1, s{sTmp}, v1
    v_lshlrev_b32 v2, 4, v0
    s_lshl_b32 s{sTmp}, s{sC}, 6
    s_lshl_b32 s{sTmp2}, s{sW}, 3
    s_add_u32 s{sTmp}, s{sTmp}, s{sTmp2}
    s_lshl_b32 s{sTmp}, s{sTmp}, 12
    s_sub_u32 s{sTmp2}, 3, s{sTq}
    s_lshl_b32 s{sTmp2}, s{sTmp2}, 10
    s_add_u32 s{sTmp}, s{sTmp}, s{sTmp2}
    s_add_u32 s{sTmp}, s{sTmp}, {WS_KVR}
    s_waitcnt lgkmcnt(0)
    s_barrier''')
    for i in range(8): a.lds(f'ds_read_b128 {vr(KR+4*i, 4)}, v1 offset:{1024*i}', i)
    for i in range(8):
        a.wait(lg=i)
        a(f'buffer_store_dwordx4 {vr(KR+4*i, 4)}, v2, s[16:19], s{sTmp} offen')
        if i < 7: a(f's_add_u32 s{sTmp}, s{sTmp}, 4096')
    a('s_branch K1_fin')

def gen_k1(stamps=False):
    a = Gen()
    a('s_cmp_ge_u32 s2, 252\ns_cbranch_scc1 K1_end')
    if stamps: stamp_start(a)
    a('s_cmp_ge_u32 s2, 216\ns_cbranch_scc1 K1_kv\ns_cmp_ge_u32 s2, 144\ns_cbranch_scc1 K1_rp')
    gen_gemm1(a, stamps)
    a.label('K1_rp'); gen_repack3(a)
    a.label('K1_kv'); gen_kvprep(a)
    a.label('K1_fin')
    if stamps:
        a('s_waitcnt vmcnt(0)')
        stamp_end(a, 28, 0, vtmp=4)
    a('K1_end:\ns_endpgm')
    return a.text(), 160, K1_LDS
```

```python
from common import *
from k1 import bf16r, gen_repack_unit

K2_LDS = 75776
NG2, NCV, NRP = 144, 288, 48

def gen_gemm2(a):
    X = 4; ACC = 76; WF = 92
    sMt, sC, sW, sTmp, sTmp2, sWo, sRow = 20, 21, 22, 23, 24, 26, 27
    TB = 124
    a(f'''
    s_load_dwordx2 s[4:5], s[0:1], 0
    s_load_dwordx2 s[6:7], s[0:1], 64
    s_load_dwordx2 s[28:29], s[0:1], 104
    s_and_b32 s{sMt}, s2, 7
    s_lshl_b32 s{sMt}, s{sMt}, 1
    s_bfe_u32 s{sTmp}, s2, 0x10003
    s_add_u32 s{sMt}, s{sMt}, s{sTmp}
    s_lshr_b32 s{sC}, s2, 4
    v_lshrrev_b32 v1, 6, v0
    v_and_b32 v0, 63, v0
    v_readfirstlane_b32 s{sW}, v1
    v_lshrrev_b32 v1, 3, v0
    v_mul_u32_u24 v3, 1152, v1
    v_and_b32 v1, 6, v1
    v_and_b32 v2, 7, v0
    v_lshl_add_u32 v{ACC}, v2, 4, v3
    v_xor_b32 v2, v1, v2
    v_lshl_add_u32 v3, v2, 4, v3
    v_lshlrev_b32 v2, 4, v0
    s_mul_i32 s{sWo}, s{sW}, {8*1152}
    s_lshl_b32 s{sTmp2}, s{sC}, 7
    s_add_u32 s{sWo}, s{sWo}, s{sTmp2}
    s_lshl_b32 s31, s{sW}, 10
    s_lshl_b32 s{sRow}, s{sMt}, 3
    s_add_u32 s{sRow}, s{sRow}, s{sW}
    s_mul_i32 s30, s{sRow}, 18432
    s_waitcnt lgkmcnt(0)
    ''')
    a.srd(8, 4, 5, MAT); a.srd(12, 6, 7, 576*1152); a.srd(16, 28, 29, WS_END)
    a.vm = []; a.lg = []
    def wdma(i):
        a(f's_add_u32 m0, s31, {i * 8192}')
        a(f's_add_u32 s{sTmp}, s{sWo}, {i * 64 * 1152}')
        a.vmem(f'buffer_load_dwordx4 v3, s[12:15], s{sTmp} offen lds', ('w', i))
    def hld(u):
        if u % 4 == 0: a(f's_add_u32 s{sTmp2}, s30, {WS_HF + u * 1024}')
        a.vmem(f'buffer_load_dwordx4 {vr(X+4*u, 4)}, v2, s[16:19], s{sTmp2} offen offset:{(u%4)*1024}', ('h', u))
    for i in range(9):
        wdma(i); hld(2*i); hld(2*i+1)
    a(f'''
    v_lshrrev_b32 v1, 2, v0
    v_lshlrev_b32 v3, 7, v1
    v_bfe_u32 v1, v1, 1, 2
    v_lshl_add_u32 v3, v1, 5, v3
    v_and_b32 v1, 3, v0
    v_lshl_add_u32 v{TB}, v1, 3, v3
    v_xor_b32 v{TB+1}, 32, v{TB}
    v_xor_b32 v{TB+2}, 64, v{TB}
    v_xor_b32 v{TB+3}, 96, v{TB}
    v_mov_b32 v3, v{ACC}
    ''')
    hi = [0]
    def wrd(u, buf):
        if u == 9:
            for t in range(4): a(f'v_add_u32 v{TB+t}, 36864, v{TB+t}')
            hi[0] = 36864
        for t in range(4):
            for h in range(2):
                a.lds(f'ds_read_b64_tr_b16 {vr(WF + 16*buf + 4*t + 2*h, 2)}, v{TB+t} offset:{u * 4096 + h * 2048 - hi[0]}', ('wr', u))
    def step(u, nxt):
        if nxt is not None: wrd(nxt, nxt % 2)
        a.wait(lg=('wr', u), vm=('h', u))
        for t in range(4):
            a(f'v_mfma_f32_16x16x32_bf16 {vr(ACC+4*t, 4)}, {vr(WF + 16*(u%2) + 4*t, 4)}, {vr(X+4*u, 4)}, {"0" if u == 0 else vr(ACC+4*t, 4)}')
    XR = X; ST = X + 8
    for th in range(3):
        a.wait(vm=('w', 3*th + 2)); a('s_barrier')
        wrd(6*th, 0)
        if th == 1:
            a(f's_mul_i32 s{sTmp}, s{sRow}, {16*1152}\ns_lshl_b32 s{sTmp2}, s{sC}, 7\ns_add_u32 s{sTmp}, s{sTmp}, s{sTmp2}')
            a.vmem(f'buffer_load_dwordx4 {vr(XR, 4)}, v3, s[8:11], s{sTmp} offen', 'x')
            a(f's_add_u32 s{sTmp}, s{sTmp}, {8*1152}')
            a.vmem(f'buffer_load_dwordx4 {vr(XR+4, 4)}, v3, s[8:11], s{sTmp} offen', 'x')
            a(f'v_and_b32 v1, 56, v0\ns_lshl_b32 s{sTmp}, s{sRow}, 7\ns_add_u32 s{sTmp}, s{sTmp}, {WS_ST1}')
            a.vmem(f'buffer_load_dwordx2 {vr(ST, 2)}, v1, s[16:19], s{sTmp} offen', 'x')
            a.vmem(f'buffer_load_dwordx2 {vr(ST+2, 2)}, v1, s[16:19], s{sTmp} offen offset:64', 'x')
        if th == 2:
            a.wait(vm='x')
            U = X + 12
            for hrow in range(2):
                for i in range(4):
                    s = XR + 4*hrow + i
                    a(f'''v_lshlrev_b32 v{U}, 16, v{s}
                    v_and_b32 v{U+1}, 0xffff0000, v{s}
                    v_sub_f32 v{U}, v{U}, v{ST+2*hrow}
                    v_sub_f32 v{U+1}, v{U+1}, v{ST+2*hrow}
                    v_cvt_pk_bf16_f32 v{U+2}, v{U}, v{U+1}
                    v_lshlrev_b32 v{U}, 16, v{U+2}
                    v_and_b32 v{U+1}, 0xffff0000, v{U+2}
                    v_mul_f32 v{U}, v{U}, v{ST+2*hrow+1}
                    v_mul_f32 v{U+1}, v{U+1}, v{ST+2*hrow+1}
                    v_cvt_pk_bf16_f32 v{s}, v{U}, v{U+1}''')
            a(f'''v_lshrrev_b32 v1, 3, v0
            v_mul_u32_u24 v1, 144, v1
            v_and_b32 v3, 7, v0
            v_lshl_add_u32 v1, v3, 4, v1
            s_mul_i32 s{sTmp}, s{sW}, 2304
            v_add_u32 v1, s{sTmp}, v1''')
            a.lds(f'ds_write_b128 v1, {vr(XR, 4)}', 'xw')
            a.lds(f'ds_write_b128 v1, {vr(XR+4, 4)} offset:{8*144}', 'xw')
            a(f'''v_and_b32 v1, 15, v0
            v_mul_u32_u24 v1, 144, v1
            v_lshrrev_b32 v3, 4, v0
            v_lshl_add_u32 v1, v3, 3, v1
            v_add_u32 v1, s{sTmp}, v1''')
            for t in range(4): a.lds(f'ds_read_b64 {vr(X+16+2*t, 2)}, v1 offset:{32*t}', 'xn')
        for u in range(6*th, 6*th + 6): step(u, u + 1 if u % 6 < 5 else None)
    XN = X + 16; P = X + 24; U = X + 32; S = X + 48
    a.wait(lg='xn')
    for i in range(8): a(f'v_cvt_pk_bf16_f32 v{P+i}, v{ACC+2*i}, v{ACC+2*i+1}')
    for i in range(8):
        a(f'''v_lshlrev_b32 v{ACC+2*i}, 16, v{P+i}
        v_and_b32 v{ACC+2*i+1}, 0xffff0000, v{P+i}
        v_lshlrev_b32 v{U+2*i}, 16, v{XN+i}
        v_and_b32 v{U+2*i+1}, 0xffff0000, v{XN+i}''')
    for i in range(16): a(f'v_add_f32 v{ACC+i}, v{ACC+i}, v{U+i}')
    for i in range(8): a(f'v_cvt_pk_bf16_f32 v{P+i}, v{ACC+2*i}, v{ACC+2*i+1}')
    a(f's_lshl_b32 s{sTmp}, s{sC}, 11\ns_add_u32 s{sTmp}, s{sTmp}, s30\ns_add_u32 s{sTmp}, s{sTmp}, {WS_X1F}')
    a(f'buffer_store_dwordx4 {vr(P, 4)}, v2, s[16:19], s{sTmp} offen')
    a(f'buffer_store_dwordx4 {vr(P+4, 4)}, v2, s[16:19], s{sTmp} offen offset:1024')
    for i in range(8):
        a(f'v_lshlrev_b32 v{ACC+2*i}, 16, v{P+i}\nv_and_b32 v{ACC+2*i+1}, 0xffff0000, v{P+i}')
    a(f'v_add_f32 v{S}, v{ACC}, v{ACC+1}\nv_mul_f32 v{S+1}, v{ACC}, v{ACC}\nv_fmac_f32 v{S+1}, v{ACC+1}, v{ACC+1}')
    for i in range(2, 16):
        a(f'v_add_f32 v{S}, v{S}, v{ACC+i}\nv_fmac_f32 v{S+1}, v{ACC+i}, v{ACC+i}')
    for sw in ('v_permlane32_swap_b32', 'v_permlane16_swap_b32'):
        a(f'''v_mov_b32 v{S+2}, v{S}
        v_mov_b32 v{S+3}, v{S+1}
        {sw} v{S}, v{S+2}
        {sw} v{S+1}, v{S+3}
        v_add_f32 v{S}, v{S}, v{S+2}
        v_add_f32 v{S+1}, v{S+1}, v{S+3}''')
    a(f'''v_and_b32 v1, 15, v0
    v_lshlrev_b32 v1, 3, v1
    s_lshl_b32 s{sTmp}, s{sC}, 14
    s_lshl_b32 s{sTmp2}, s{sRow}, 7
    s_add_u32 s{sTmp}, s{sTmp}, s{sTmp2}
    s_add_u32 s{sTmp}, s{sTmp}, {WS_ST2}
    buffer_store_dwordx2 {vr(S, 2)}, v1, s[16:19], s{sTmp} offen
    s_branch K2_fin''')

def gen_conv(a):
    sD, sW, sE, sLb, sTmp, sTmp2 = 20, 22, 21, 25, 23, 24
    CH = 37888; RO = 33280; CST = 4160
    G = 4; ACC = 68; FB = 100
    D = 4; E = 12; O = 20; O2 = 28
    vF, vG, vT = 116, 117, 118
    a(f'''
    s_load_dwordx4 s[4:7], s[0:1], 32
    s_load_dwordx2 s[28:29], s[0:1], 104
    v_lshrrev_b32 v1, 6, v0
    s_sub_u32 s{sD}, s2, {NG2}
    v_readfirstlane_b32 s{sW}, v1
    s_lshl_b32 s{sD}, s{sD}, 1
    v_and_b32 v2, 255, v0
    v_and_b32 v0, 63, v0
    s_lshr_b32 s{sTmp}, s{sW}, 2
    s_add_u32 s{sD}, s{sD}, s{sTmp}
    s_mul_i32 s{sLb}, s{sTmp}, {CH}
    s_and_b32 s{sE}, s{sW}, 3
    v_lshlrev_b32 v2, 4, v2
    v_subrev_u32 v3, 16, v2
    s_lshl_b32 s{sTmp}, s{sD}, 12
    s_waitcnt lgkmcnt(0)
    s_add_u32 s8, s4, s{sTmp}
    s_addc_u32 s9, s5, 0
    s_mov_b32 s10, 4096
    s_mov_b32 s11, 0x20000
    ''')
    a.srd(12, 6, 7, 1152); a.srd(16, 28, 29, WS_END)
    a.vm = []; a.lg = []
    a.vmem(f'buffer_load_dwordx4 {vr(D, 4)}, v3, s[8:11], 0 offen', 'k')
    a.vmem(f'buffer_load_dwordx4 {vr(D+4, 4)}, v2, s[8:11], 0 offen', 'k')
    a(f'''s_lshl_b32 s{sTmp2}, s{sE}, 10
    s_add_u32 s{sTmp2}, s{sTmp2}, s{sLb}
    s_add_u32 m0, s{sTmp2}, {RO}
    s_add_u32 s{sTmp}, s{sTmp}, {WS_KVR}''')
    a.vmem(f'buffer_load_dwordx4 v2, s[16:19], s{sTmp} offen lds', 'r')
    a(f's_lshl_b32 s{sTmp2}, s{sD}, 1\nv_mov_b32 v1, 0')
    a.vmem(f'buffer_load_ushort v{vT+1}, v1, s[12:15], s{sTmp2} offen', 'r')
    a(f'''
    v_mov_b32 v{ACC}, 0
    v_mov_b32 v{ACC+1}, 0
    v_mov_b32 v{ACC+2}, 0
    v_mov_b32 v{ACC+3}, 0
    v_lshlrev_b32 v1, 4, v0
    v_add_u32 v1, {RO + 4096}, v1
    v_and_b32 v3, 7, v0
    v_mul_u32_u24 v3, {CST}, v3
    v_cmp_gt_u32 vcc, 32, v0
    v_add_u32 v2, s{sLb}, v2
    v_cndmask_b32 v1, v3, v1, vcc
    v_add_u32 v1, s{sLb}, v1''')
    a.lds(f'ds_write_b128 v1, {vr(ACC, 4)}', 'z')
    a(f'''
    v_bfe_u32 v1, v0, 3, 1
    v_lshrrev_b32 v{vT}, 4, v0
    v_add_u32 v1, v1, v{vT}
    v_lshl_add_u32 v{vF}, v1, 4, v3
    s_lshl_b32 s{sTmp2}, s{sE}, 6
    s_add_u32 s{sTmp2}, s{sTmp2}, s{sLb}
    v_add_u32 v{vF}, s{sTmp2}, v{vF}
    v_and_b32 v1, 15, v0
    v_lshlrev_b32 v1, 5, v1
    v_lshlrev_b32 v{vG}, 4, v{vT}
    v_sub_u32 v{vG}, v{vG}, v1
    s_add_u32 s{sTmp2}, s{sTmp2}, {RO + 4064 - 14*256}
    v_add_u32 v{vG}, s{sTmp2}, v{vG}
    ''')
    a.wait(vm='k')
    for i in range(6): a(f'v_mov_b32 v{E+i}, v{D+1+i}')
    for i in range(6): a(f'v_alignbit_b32 v{O+i}, v{D+i+1}, v{D+i}, 16')
    for i in range(6): a(f'v_alignbit_b32 v{O2+i}, v{D+i+2}, v{D+i+1}, 16')
    src = {1: O, 2: E, 3: O2, 4: D+2, 5: O+2, 6: E+2, 7: O2+2, 8: D+4}
    for c in range(1, 9):
        a.lds(f'ds_write_b128 v2, {vr(src[c], 4)} offset:{(c-1)*CST + 16}', 'cw')
    a.wait(vm_all=True, lg_all=True); a('s_barrier')
    def grd(y): a.lds(f'ds_read_b128 {vr(G + 4*(y+1), 4)}, v{vG} offset:{(14-y)*256}', ('g', y))
    def frd(x): a.lds(f'ds_read_b128 {vr(FB + 4*(x%4), 4)}, v{vF} offset:{x*256}', ('f', x))
    frd(0)
    for y in range(14, -2, -2): grd(y)
    frd(1)
    for y in range(13, -2, -2): grd(y)
    frd(2)
    for x in range(16):
        if x + 3 < 16: frd(x + 3)
        for j in range(7, -1, -1):
            if x <= 2*j + 1:
                y = 2*j - x
                a.wait(lg=[('f', x), ('g', y)])
                a(f'v_mfma_f32_16x16x32_bf16 {vr(ACC+4*j, 4)}, {vr(FB + 4*(x%4), 4)}, {vr(G + 4*(y+1), 4)}, {"0" if x == 0 else vr(ACC+4*j, 4)}')
    a(f'''
    v_lshrrev_b32 v1, 2, v0
    v_and_b32 v1, 8, v1
    v_xor_b32 v1, v1, v0
    s_lshl_b32 s{sTmp}, s{sE}, 13
    s_add_u32 s{sTmp}, s{sTmp}, s{sLb}
    v_lshl_add_u32 v1, v1, 4, s{sTmp}
    v_bfe_u32 v2, v0, 1, 4
    v_and_b32 v3, 1, v0
    v_lshlrev_b32 v{vT}, 3, v3
    v_xor_b32 v2, v2, v{vT}
    v_lshl_add_u32 v2, v3, 5, v2
    v_lshrrev_b32 v3, 5, v0
    v_lshl_add_u32 v2, v3, 6, v2
    s_lshl_b32 s{sTmp}, s{sE}, 11
    s_add_u32 s{sTmp}, s{sTmp}, s{sLb}
    v_lshl_add_u32 v2, v2, 4, s{sTmp}
    s_lshl_b32 s{sTmp}, s{sE}, 10
    s_sub_u32 s{sTmp2}, s{sLb}, s{sTmp}
    s_add_u32 s{sTmp2}, s{sTmp2}, {RO + 4080}
    v_lshlrev_b32 v{vT}, 4, v0
    v_sub_u32 v3, s{sTmp2}, v{vT}
    s_barrier''')
    for j in range(8): a.lds(f'ds_write_b128 v1, {vr(ACC+4*j, 4)} offset:{1024*j}', 'aw')
    a.lds(f'ds_read_b128 {vr(FB, 4)}, v3', 'u')
    a.wait(lg_all=True); a('s_barrier')
    for e in range(4):
        for h in range(2): a.lds(f'ds_read_b128 {vr(G + 8*e + 4*h, 4)}, v2 offset:{8192*e + 256*h}', ('p', e))
    U = ACC
    a(f'v_lshlrev_b32 v{vT+1}, 16, v{vT+1}')
    for r in range(8):
        pos = 7 - r
        a(f'v_lshlrev_b32 v{U+r}, 16, v{FB+pos//2}' if pos % 2 == 0 else f'v_and_b32 v{U+r}, 0xffff0000, v{FB+pos//2}')
    for r in range(8): a(f'v_mul_f32 v{U+r}, v{U+r}, v{vT+1}')
    for i in range(4): a(f'v_cvt_pk_bf16_f32 v{U+8+i}, v{U+2*i}, v{U+2*i+1}')
    for i in range(4): a(f'v_lshlrev_b32 v{U+2*i}, 16, v{U+8+i}\nv_and_b32 v{U+2*i+1}, 0xffff0000, v{U+8+i}')
    for e in range(1, 4):
        a.wait(lg=('p', e))
        for r in range(8): a(f'v_add_f32 v{G+r}, v{G+r}, v{G+8*e+r}')
    for i in range(4): a(f'v_cvt_pk_bf16_f32 v{U+8+i}, v{G+2*i}, v{G+2*i+1}')
    for i in range(4): a(f'v_lshlrev_b32 v{G+2*i}, 16, v{U+8+i}\nv_and_b32 v{G+2*i+1}, 0xffff0000, v{U+8+i}')
    for r in range(8): a(f'v_add_f32 v{G+r}, v{G+r}, v{U+r}')
    for i in range(4): a(f'v_cvt_pk_bf16_f32 v{U+8+i}, v{G+2*i}, v{G+2*i+1}')
    a(f'''s_lshl_b32 s{sTmp2}, s{sD}, 12
    s_add_u32 s{sTmp}, s{sTmp}, s{sTmp2}
    s_add_u32 s{sTmp}, s{sTmp}, {WS_ZT}
    buffer_store_dwordx4 {vr(U+8, 4)}, v{vT}, s[16:19], s{sTmp} offen
    s_branch K2_fin''')

def gen_repack4(a):
    sSl, sU, sW, sSrc, sDst, sLds, sTmp, sRb, sC = 20, 21, 22, 23, 24, 25, 26, 27, 30
    a(f'''
    s_load_dwordx2 s[4:5], s[0:1], 80
    s_load_dwordx2 s[28:29], s[0:1], 104
    s_sub_u32 s{sU}, s2, {NG2 + NCV}
    s_and_b32 s{sSl}, s{sU}, 7
    s_lshr_b32 s{sU}, s{sU}, 3
    v_lshrrev_b32 v1, 6, v0
    v_and_b32 v0, 63, v0
    v_readfirstlane_b32 s{sW}, v1
    s_lshl_b32 s{sU}, s{sU}, 3
    s_add_u32 s{sU}, s{sU}, s{sW}
    s_lshl_b32 s{sLds}, s{sW}, 13
    s_waitcnt lgkmcnt(0)''')
    a.srd(8, 4, 5, WBYTES); a.srd(16, 28, 29, WS_END)
    a.label('K2_rp_loop')
    a(f'''
    s_mul_i32 s{sRb}, s{sU}, 57
    s_lshr_b32 s{sRb}, s{sRb}, 9
    s_mul_i32 s{sTmp}, s{sRb}, 9
    s_sub_u32 s{sC}, s{sU}, s{sTmp}
    s_mul_i32 s{sSrc}, s{sSl}, 9
    s_add_u32 s{sDst}, s{sSrc}, s{sC}
    s_add_u32 s{sSrc}, s{sSrc}, s{sRb}
    s_mul_i32 s{sSrc}, s{sSrc}, {64*1152}
    s_lshl_b32 s{sTmp}, s{sC}, 7
    s_add_u32 s{sSrc}, s{sSrc}, s{sTmp}
    s_mul_i32 s{sDst}, s{sDst}, 73728
    s_lshl_b32 s{sTmp}, s{sRb}, 11
    s_add_u32 s{sDst}, s{sDst}, s{sTmp}
    s_add_u32 s{sDst}, s{sDst}, {WS_WP4}''')
    a.vm = []; a.lg = []
    gen_repack_unit(a, sSrc, 1152, 8, sDst, sLds)
    a(f'''s_add_u32 s{sU}, s{sU}, 48
    s_cmp_lt_u32 s{sU}, 81
    s_cbranch_scc1 K2_rp_loop
    s_branch K2_fin''')

def gen_k2(stamps=False):
    a = Gen()
    a(f's_cmp_ge_u32 s2, {NG2+NCV+NRP}\ns_cbranch_scc1 K2_end')
    if stamps: stamp_start(a)
    a(f's_cmp_ge_u32 s2, {NG2+NCV}\ns_cbranch_scc1 K2_rp\ns_cmp_ge_u32 s2, {NG2}\ns_cbranch_scc1 K2_cv')
    gen_gemm2(a)
    a.label('K2_cv'); gen_conv(a)
    a.label('K2_rp'); gen_repack4(a)
    a.label('K2_fin')
    if stamps:
        a('s_waitcnt vmcnt(0)')
        stamp_end(a, 28, 1, vtmp=4)
    a('K2_end:\ns_endpgm')
    return a.text(), 128, K2_LDS
```

```python
from common import *

def gen_k3(depth=30, stamps=False, store_flags='sc1', no_epi=False, rotate=True, trace=False, nostore=False, wait2=True, pre=12, resid=False):
    a = Gen()
    NB = depth + 2
    V = Regs(1, 256)
    AV = V.alloc('Av', 32, 4)
    ACC = [V.alloc('acc0', 16, 4), V.alloc('acc1', 16, 4)]
    W = V.alloc('w', 4 * NB, 4)
    CS = V.alloc('cs', 4, 4); R = V.alloc('r', 8, 4); T = V.alloc('t', 8, 4)
    AB = V.alloc('ab', 16, 4)
    vL16 = V.alloc('l16'); vCS = V.alloc('vcs'); vHw = V.alloc('hw')
    vB = [V.alloc('b0'), V.alloc('b1'), V.alloc('b2'), V.alloc('b3')]
    nv = V.n
    def opreg(u, rt):
        return ar(16*u + 4*rt, 4) if u < 16 else vr(AV + 16*(u-16) + 4*rt, 4)
    HB = 73728; CSB = 2 * 73728; LDS = CSB + 2304
    sSl, sMt, sRot, sW = 20, 21, 22, 23
    sCh, sK = 30, 40
    sSt, sTmp, sTmp2, sX = 60, 64, 65, 69
    a('s_cmp_ge_u32 s2, 256\ns_cbranch_scc1 K3_end')
    if stamps: stamp_start(a)
    a(f'''
    s_load_dwordx2 s[28:29], s[0:1], 104
    s_and_b32 s{sSl}, s2, 7
    s_lshr_b32 s{sMt}, s2, 3
    s_mul_i32 s{sTmp}, s{sMt}, 57
    s_lshr_b32 s{sTmp}, s{sTmp}, 9
    s_mul_i32 s{sTmp}, s{sTmp}, 9
    s_sub_u32 s{sRot}, s{sMt}, s{sTmp}
    v_lshrrev_b32 v{T}, 6, v0
    v_and_b32 v0, 63, v0
    v_readfirstlane_b32 s{sW}, v{T}
    v_lshlrev_b32 v{vL16}, 4, v0
    s_mul_i32 s{sTmp}, s{sSl}, {9*73728}
    s_mul_i32 s{sTmp2}, s{sW}, 18432
    s_add_u32 s{sTmp}, s{sTmp}, s{sTmp2}
    s_add_u32 s{sTmp}, s{sTmp}, {WS_WP3}
    s_mul_i32 s{sX}, s{sMt}, 73728
    s_add_u32 s{sX}, s{sX}, s{sTmp2}
    s_add_u32 s{sX}, s{sX}, {WS_X1F}
    s_mov_b32 m0, s{sTmp2}
    s_mov_b32 s18, {WS_END}
    s_mov_b32 s19, 0x20000
    s_waitcnt lgkmcnt(0)
    s_mov_b32 s16, s28
    s_mov_b32 s17, s29
    ''')
    for i in range(18):
        if i % 4 == 0 and i:
            a(f's_add_u32 m0, m0, 4096\ns_add_u32 s{sX}, s{sX}, 4096')
        a.vmem(f'buffer_load_dwordx4 v{vL16}, s[16:19], s{sX} offen offset:{(i%4)*1024} lds', ('x1', i // 6))
    if not rotate: a(f's_mov_b32 s{sRot}, 0')
    a(f's_mov_b32 s{sTmp2}, s{sRot}')
    for j in range(9):
        a(f'''s_mul_i32 s{sCh+j}, s{sTmp2}, 73728
        s_add_u32 s{sCh+j}, s{sCh+j}, s{sTmp}
        s_lshl_b32 s{sK+j}, s{sTmp2}, 11''')
        if j < 8:
            a(f'''s_add_u32 s{sTmp2}, s{sTmp2}, 1
            s_cmp_eq_u32 s{sTmp2}, 9
            s_cselect_b32 s{sTmp2}, 0, s{sTmp2}''')
    NST = 324
    def ld(n):
        if n >= NST: return
        ph, c, u = n // 162, (n % 162) // 18, n % 18
        r = W + 4 * (n % NB)
        if ph == 0:
            if u % 4 == 0 and u: a(f's_add_u32 s{sTmp}, s{sCh+c}, {u*1024}')
            so = f's{sCh+c}' if u < 4 else f's{sTmp}'
            a.vmem(f'buffer_load_dwordx4 {vr(r, 4)}, v{vL16}, s[16:19], {so} offen offset:{(u%4)*1024}', ('w', n))
        else:
            if u == 0: a(f's_add_u32 s{sCh+c}, s{sCh+c}, {WBYTES}')
            if u % 2 == 0: a(f's_add_u32 s{sTmp}, s{sCh+c}, s{sK+u//2}')
            a.vmem(f'buffer_load_dwordx4 {vr(r, 4)}, v{vL16}, s[16:19], s{sTmp} offen offset:{(u%2)*1024}', ('w', n))
    nld = 0
    for n in range(pre): ld(n)
    nld = pre
    SB = [ACC[1] + 2*c for c in range(8)] + [R]
    a(f'''
    s_lshl_b32 s{sTmp2}, s{sMt}, 6
    v_add_u32 v{T}, s{sTmp2}, v0
    v_lshlrev_b32 v{T}, 3, v{T}
    ''')
    for c in range(9):
        a(f's_mov_b32 s{sTmp2}, {WS_ST2 + c * 16384}')
        a.vmem(f'buffer_load_dwordx2 {vr(SB[c], 2)}, v{T}, s[16:19], s{sTmp2} offen', 'stat')
    a(f'''
    v_lshlrev_b32 v{T+1}, 2, v0
    s_mul_i32 s{sSt}, s{sSl}, 2304
    s_add_u32 s{sSt}, s{sSt}, {WS_CS3}''')
    for i in range(2):
        a(f'''s_add_u32 s{sX}, s{sW}, s{sRot}
        s_add_u32 s{sX}, s{sX}, {4*i}
        s_cmp_ge_u32 s{sX}, 9
        s_cselect_b32 s{sTmp2}, 9, 0
        s_sub_u32 s{sX}, s{sX}, s{sTmp2}
        s_lshl_b32 s{sX}, s{sX}, 8
        s_add_u32 s{sX}, s{sX}, s{sSt}
        s_lshl_b32 s{sTmp2}, s{sW}, 8
        s_add_u32 m0, s{sTmp2}, {CSB + 1024*i}
        s_nop 0''')
        a.vmem(f'buffer_load_dword v{T+1}, s[16:19], s{sX} offen lds', 'stat')
    a(f'''s_lshr_b32 s{sX}, s{sK+8}, 3
    s_add_u32 s{sX}, s{sX}, s{sSt}
    s_mov_b32 m0, {CSB + 8*256}
    s_nop 0''')
    a.vmem(f'buffer_load_dword v{T+1}, s[16:19], s{sX} offen lds', 'stat')
    a(f'''
    v_mov_b32 v{vB[0]}, v{vL16}
    v_add_u32 v{vB[1]}, 36864, v{vL16}
    v_add_u32 v{vB[2]}, {HB}, v{vL16}
    v_add_u32 v{vB[3]}, {HB + 36864}, v{vL16}
    s_lshr_b32 s{sTmp2}, s{sW}, 1
    s_lshl_b32 s{sX}, s{sTmp2}, 10
    s_and_b32 s{sTmp2}, s{sW}, 1
    s_lshl_b32 s{sTmp2}, s{sTmp2}, 3
    s_add_u32 s{sX}, s{sX}, s{sTmp2}
    s_add_u32 s{sX}, s{sX}, {HB}
    v_add_u32 v{vHw}, s{sX}, v{vL16}
    s_lshl_b32 s{sX}, s{sW}, 6
    s_add_u32 s{sX}, s{sX}, {CSB}
    v_and_b32 v{T+2}, 48, v0
    v_add_u32 v{vCS}, s{sX}, v{T+2}
    s_mul_i32 s{sSt}, s{sSl}, {MAT}
    s_mul_i32 s{sX}, s{sMt}, 73728
    s_add_u32 s{sSt}, s{sSt}, s{sX}
    s_lshl_b32 s{sX}, s{sW}, 10
    s_add_u32 s{sSt}, s{sSt}, s{sX}
    s_add_u32 s{sSt}, s{sSt}, {WS_PF}
    v_and_b32 v{T+3}, 15, v0
    v_lshlrev_b32 v{T+3}, 2, v{T+3}
    ''')
    def oprd(ph, u):
        ops = []
        for rt in range(4):
            if ph == 0: off = (rt & 1) * 18432 + u * 1024; b = vB[rt >> 1]
            else:
                o = u * 4096 + rt * 1024; b = vB[2 + (o >= 36864)]; off = o - (36864 if o >= 36864 else 0)
            ops.append(('lds', f'ds_read_b128 {opreg(u, rt)}, v{b} offset:{off}', ('op', ph, u)))
        return ops
    a(f'''s_lshr_b32 s{sTmp2}, s{sW}, 1
    s_mul_i32 s{sX}, s{sTmp2}, 3072
    v_add_u32 v{vHw}, s{sX}, v{vHw}''')
    def stats_code():
        s0 = SB[0]
        ops = [('waitvm', 'stat')]
        for c in range(1, 9):
            ops.append(f'v_add_f32 v{s0}, v{s0}, v{SB[c]}')
            ops.append(f'v_add_f32 v{s0+1}, v{s0+1}, v{SB[c]+1}')
        ops += [f'v_mul_f32 v{s0}, {fhex(1/576)}, v{s0}',
                f'v_mul_f32 v{s0+1}, {fhex(1/576)}, v{s0+1}',
                f'v_fma_f32 v{s0+1}, -v{s0}, v{s0}, v{s0+1}',
                f'v_max_f32 v{s0+1}, 0, v{s0+1}',
                f'v_cvt_pk_bf16_f32 v{s0+2}, v{s0}, v{s0+1}',
                f'v_and_b32 v{s0+1}, 0xffff0000, v{s0+2}',
                f'v_lshlrev_b32 v{s0}, 16, v{s0+2}',
                f'v_add_f32 v{s0+1}, {fhex(1e-5)}, v{s0+1}',
                f'v_cvt_pk_bf16_f32 v{s0+1}, v{s0+1}, v{s0+1}',
                f'v_lshlrev_b32 v{s0+1}, 16, v{s0+1}',
                f'v_sqrt_f32 v{s0+1}, v{s0+1}',
                f'v_cvt_pk_bf16_f32 v{s0+1}, v{s0+1}, v{s0+1}',
                f'v_lshlrev_b32 v{s0+1}, 16, v{s0+1}',
                f'v_rcp_f32 v{s0+4}, v{s0+1}',
                f'v_sub_f32 v{s0+5}, 0, v{s0}',
                f'v_mul_f32 v{s0+6}, {fhex(GELU_C0)}, v{s0+4}',
                f'v_mul_f32 v{s0+7}, v{s0+4}, v{s0+4}',
                f'v_mul_f32 v{s0+7}, v{s0+7}, v{s0+6}',
                f'v_mul_f32 v{s0+7}, {fhex(0.044715)}, v{s0+7}']
        for rt in range(4):
            for i in range(4):
                ops.append(('lds', f'ds_bpermute_b32 v{AB+4*rt+i}, v{T+3}, v{s0+4+i} offset:{64*rt}', 'ab'))
        return ops
    def gelu4(acc, x, cj):
        k = acc + 4 * x; r = R + 4 * (x & 1); al = AB + 4*x; t = T + 2 * x
        st = [lambda i: f'v_fma_f32 v{k+i}, v{CS+i}, v{al+1}, v{k+i}',
              lambda i: f'v_mul_f32 v{r+i}, v{k+i}, v{k+i}',
              lambda i: f'v_fma_f32 v{r+i}, v{r+i}, v{al+3}, v{al+2}',
              lambda i: f'v_mul_f32 v{r+i}, v{r+i}, v{k+i}',
              lambda i: f'v_exp_f32 v{r+i}, v{r+i}',
              lambda i: f'v_add_f32 v{r+i}, 1.0, v{r+i}',
              lambda i: f'v_rcp_f32 v{r+i}, v{r+i}',
              lambda i: f'v_mul_f32 v{k+i}, v{k+i}, v{r+i}']
        ops = [f(i) for f in st for i in range(4)]
        ops.append(f'v_cvt_pk_bf16_f32 v{t}, v{k}, v{k+1}')
        ops.append(f'v_cvt_pk_bf16_f32 v{t+1}, v{k+2}, v{k+3}')
        o = cj * 8192 + x * 1024
        if o > 65535 - 8:
            ops.append(f'v_add_u32 v{r}, {o}, v{vHw}')
            ops.append(('lds', f'ds_write_b64 v{r}, {vr(t, 2)}', 'hw'))
        else:
            ops.append(('lds', f'ds_write_b64 v{vHw}, {vr(t, 2)} offset:{o}', 'hw'))
        return ops
    def out16(acc, cj):
        ops = []
        ops.append(f's_lshl_b32 s{sTmp2}, s{sK+cj}, 2')
        ops.append(f's_add_u32 s{sTmp2}, s{sTmp2}, s{sSt}')
        for g in range(2):
            b = acc + 8 * g
            for i in range(8): ops.append(f'v_mul_f32 v{b+i}, v{b+i}, v{AB + 4*(2*g + i//4)}')
            for i in range(4): ops.append(f'v_cvt_pk_bf16_f32 v{T+4*g+i}, v{b+2*i}, v{b+2*i+1}')
            if g == 1: ops.append(f's_add_u32 s{sTmp2}, s{sTmp2}, 4096')
            ops.append(('vmem', f'buffer_store_dwordx4 {vr(T+4*g, 4)}, v{vL16}, s[16:19], s{sTmp2} offen {store_flags}', 'store'))
        return ops
    def cost(op):
        if not isinstance(op, str): return 0 if op[0] in ('wait', 'waitvm') else 1
        if op.startswith('v_exp') or op.startswith('v_rcp') or op.startswith('v_sqrt'): return 2
        return 1
    def emit(op):
        if isinstance(op, str): a(op)
        elif op[0] == 'wait': a.wait(lg=op[1])
        elif op[0] == 'waitvm': a.wait(vm=op[1])
        elif op[0] == 'lds': a.lds(op[1], op[2])
        elif op[0] == 'vmem':
            if not nostore: a.vmem(op[1], op[2])
        elif op[0] == 'bar':
            a.wait(lg_all=True); a('s_barrier')
        elif op[0] == 'barvm':
            a.wait(vm=op[1]); a('s_barrier')
    F = [[[] for m in range(4)] for n in range(NST)]
    def spread(ops, g0, g1):
        wts = [(0.55 if g % 4 == 3 else 1.0) for g in range(g0, g1)]
        tw = sum(wts); tot = sum(cost(o) for o in ops)
        cum = 0; gi = 0; acc_w = wts[0]
        for o in ops:
            while gi < len(wts) - 1 and (cum + cost(o) * 0.5) / max(tot, 1) > acc_w / tw:
                gi += 1; acc_w += wts[gi]
            g = g0 + gi
            F[g // 4][g % 4].append(o)
            cum += cost(o)
    a.wait(vm=('x1', 0)); a('s_barrier')
    for u in range(3):
        for op in oprd(0, u): emit(op)
    for u in range(3, 18):
        n = u - 3
        if u % 6 == 0: F[n][0].append(('barvm', ('x1', u // 6)))
        for m, o in enumerate(oprd(0, u)): F[n][m].append(o)
    spread(stats_code(), 4*12, 4*17)
    F[17][0] += [('bar',), ('lds', f'ds_read_b128 {vr(CS, 4)}, v{vCS} offset:0', ('cs', 0))]
    for gc in range(17):
        if no_epi: break
        n0 = 18 * (gc + 1)
        acc = ACC[gc % 2]
        if gc < 9:
            gs = [gelu4(acc, x, gc) for x in range(4)]
            E = [('wait', [('cs', gc), 'ab'])] + sum([g[:4] for g in gs], [])
            if gc < 8: E.append(('lds', f'ds_read_b128 {vr(CS, 4)}, v{vCS} offset:{(gc+1)*256}', ('cs', gc + 1)))
            for x in range(4): E += gs[x][4:]
            if gc == 8:
                F[n0][0] += [('bar',)] + oprd(1, 14) + oprd(1, 15)
                spread(E, 4*n0 + 2, 4*(n0 + 14))
                F[n0+13][3] += [('bar',)] + oprd(1, 16) + oprd(1, 17)
            else:
                spread(E, 4*n0 + 2, 4*(n0 + 18))
        else:
            spread(out16(acc, gc - 9), 4*n0 + 2, 4*(n0 + 6))
    F[144][0].insert(0, ('bar',))
    for u in range(14):
        for m, o in enumerate(oprd(1, u)): F[144 + u + 1][m].append(o)
    if no_epi:
        F[162][0] += oprd(1, 14) + oprd(1, 15) + oprd(1, 16) + oprd(1, 17)
    for c in range(18):
        if trace and c in (0, 1, 2, 5, 8, 9, 10, 13, 17):
            idx = (0, 1, 2, 5, 8, 9, 10, 13, 17).index(c)
            a.wait(lg_all=True)
            a(f's_memtime s[{70+2*idx}:{71+2*idx}]\ns_waitcnt lgkmcnt(0)')
        for u in range(18):
            n = 18 * c + u
            cnt = 0
            while nld < min(n + depth + 1, NST) and cnt < 2:
                ld(nld); nld += 1; cnt += 1
            if wait2 and n >= 18:
                if n % 2 == 0: a.wait(vm=('w', n + 1))
            else: a.wait(vm=('w', n))
            if c in (0, 9): a.wait(lg=('op', c // 9, u))
            r = W + 4 * (n % NB); acc = ACC[c % 2]
            for rt in range(4):
                cin = '0' if u == 0 else vr(acc + 4*rt, 4)
                a(f'v_mfma_f32_16x16x32_bf16 {vr(acc + 4*rt, 4)}, {vr(r, 4)}, {opreg(u, rt)}, {cin}')
                for op in F[n][rt]: emit(op)
    if not no_epi:
        for op in out16(ACC[1], 8): emit(op)
    if trace:
        a('s_memtime s[88:89]\ns_waitcnt vmcnt(0)\ns_memtime s[90:91]\ns_waitcnt lgkmcnt(0)')
        for i in range(11):
            a(f's_sub_u32 s{70+2*i}, s{70+2*i}, s96\nv_mov_b32 v{W+8+i}, s{70+2*i}')
        a(f's_lshl_b32 s70, s2, 3\ns_add_u32 s70, s70, s{sW}\ns_lshl_b32 s70, s70, 6\ns_add_u32 s70, s70, {WS_TS + 65536}\nv_mov_b32 v{W+20}, s70')
        for i in range(3): a(f'global_store_dwordx4 v{W+20}, {vr(W+8+4*i, 4)}, s[28:29] offset:{16*i}')
    if stamps:
        a('s_waitcnt vmcnt(0)')
        stamp_end(a, 28, 2, vtmp=W)
    a('K3_end:\ns_endpgm')
    return a.text(), nv, LDS
```

```python
from common import *
K4_LDS = 9216 * 2

def gen_k4(stamps=False):
    a = Gen()
    P = 4; X1 = 36; ST = 40; XV = 44; Z = 48; B = 56; T = 64; U = 72
    sCh, sS8, sG, sMt, sTmp, sTmp2, sRow, sW = 20, 21, 22, 23, 24, 25, 26, 27
    a('s_cmp_ge_u32 s2, 256\ns_cbranch_scc1 K4_end')
    if stamps: stamp_start(a)
    a(f'''
    s_load_dwordx2 s[4:5], s[0:1], 0
    s_load_dwordx2 s[6:7], s[0:1], 88
    s_load_dwordx2 s[28:29], s[0:1], 104
    s_bfe_u32 s{sCh}, s2, 0x10003
    s_bfe_u32 s{sS8}, s2, 0x10004
    s_bfe_u32 s{sG}, s2, 0x10005
    s_and_b32 s{sMt}, s2, 7
    s_lshr_b32 s{sTmp}, s2, 6
    s_lshl_b32 s{sMt}, s{sMt}, 2
    s_add_u32 s{sMt}, s{sMt}, s{sTmp}
    v_lshrrev_b32 v1, 6, v0
    v_lshrrev_b32 v2, 3, v0
    v_readfirstlane_b32 s{sW}, v1
    s_mul_i32 s{sTmp}, s{sCh}, 72
    v_add_u32 v3, s{sTmp}, v2
    v_and_b32 v1, 7, v0
    s_lshl_b32 s{sTmp}, s{sS8}, 3
    v_add_u32 v{T}, s{sTmp}, v1
    v_and_b32 v{T+1}, 3, v3
    v_lshl_add_u32 v{T}, v{T+1}, 4, v{T}
    v_lshlrev_b32 v{T}, 4, v{T}
    v_lshrrev_b32 v{T+1}, 4, v3
    v_lshl_add_u32 v{T+2}, v{T+1}, 13, v{T}
    v_bfe_u32 v{T+1}, v3, 2, 2
    v_lshl_add_u32 v{T+2}, v{T+1}, 10, v{T+2}
    v_lshrrev_b32 v{T+3}, 3, v3
    v_lshl_add_u32 v{T+3}, v{T+3}, 10, v{T}
    v_and_b32 v{T+1}, 1, v{T+1}
    v_lshl_add_u32 v{T+3}, v{T+1}, 3, v{T+3}
    s_mul_i32 s{sTmp}, s{sMt}, 73728
    s_lshl_b32 s{sTmp2}, s{sG}, 12
    s_add_u32 s30, s{sTmp}, s{sTmp2}
    s_add_u32 s30, s30, {WS_PF}
    s_mul_i32 s{sTmp2}, s{sG}, 36864
    s_add_u32 s31, s{sTmp}, s{sTmp2}
    s_add_u32 s31, s31, {WS_X1F}
    s_lshl_b32 s{sRow}, s{sMt}, 6
    s_lshl_b32 s{sTmp}, s{sG}, 5
    s_add_u32 s{sRow}, s{sRow}, s{sTmp}
    s_lshl_b32 s{sTmp}, s{sS8}, 3
    s_add_u32 s{sRow}, s{sRow}, s{sTmp}
    s_waitcnt lgkmcnt(0)''')
    a.srd(8, 4, 5, MAT); a.srd(12, 6, 7, MAT); a.srd(16, 28, 29, WS_END)
    a(f'''
    v_mul_u32_u24 v{T+4}, 1821, v0
    v_lshrrev_b32 v{T+4}, 16, v{T+4}
    v_mul_u32_u24 v{T+5}, 36, v{T+4}
    v_sub_u32 v{T+5}, v0, v{T+5}
    v_and_b32 v{T+6}, 8, v{T+4}
    v_add_u32 v{T+4}, v{T+4}, v{T+6}
    v_mul_u32_u24 v{T+4}, 1152, v{T+4}
    v_lshl_add_u32 v{T+4}, v{T+5}, 4, v{T+4}
    s_mul_i32 s32, s{sRow}, 1152
    s_mul_i32 s{sTmp}, s{sCh}, 576
    s_add_u32 s32, s32, s{sTmp}
    s_lshl_b32 m0, s{sW}, 10
    v_lshrrev_b32 v{T+5}, 1, v0
    v_lshlrev_b32 v{T+5}, 12, v{T+5}
    v_and_b32 v{T+6}, 1, v0
    v_lshl_add_u32 v{T+5}, v{T+6}, 5, v{T+5}''')
    a.vmem(f'buffer_load_dwordx4 v{T+4}, s[8:11], s32 offen lds', 'l')
    a(f'''s_mul_i32 s{sTmp}, s{sCh}, {288*4096}
    s_lshl_b32 s{sTmp2}, s{sRow}, 1
    s_add_u32 s{sTmp}, s{sTmp}, s{sTmp2}
    s_add_u32 s{sTmp}, s{sTmp}, {WS_ZT}
    s_add_u32 m0, m0, 9216
    v_lshlrev_b32 v{T+6}, 3, v1''')
    a.vmem(f'buffer_load_dwordx4 v{T+5}, s[16:19], s{sTmp} offen lds', 'l')
    a(f's_lshl_b32 s{sTmp}, s{sRow}, 3\ns_add_u32 s{sTmp}, s{sTmp}, {WS_ST1}')
    a.vmem(f'buffer_load_dwordx2 {vr(ST, 2)}, v{T+6}, s[16:19], s{sTmp} offen', 's')
    a.vmem(f'buffer_load_dwordx2 {vr(ST+2, 2)}, v{T+6}, s[16:19], s{sTmp} offen offset:128', 's')
    a.vmem(f'buffer_load_dwordx2 {vr(X1, 2)}, v{T+3}, s[16:19], s31 offen', 'x1')
    a(f's_add_u32 s31, s31, 18432')
    a.vmem(f'buffer_load_dwordx2 {vr(X1+2, 2)}, v{T+3}, s[16:19], s31 offen', 'x1')
    for s in range(8):
        a.vmem(f'buffer_load_dwordx4 {vr(P+4*s, 4)}, v{T+2}, s[16:19], s30 offen', ('p', s))
        if s < 7: a(f's_add_u32 s30, s30, {MAT}')
    a(f'''
    v_mul_u32_u24 v{T}, 576, v1
    v_lshl_add_u32 v{T}, v2, 3, v{T}
    v_lshlrev_b32 v{T+1}, 7, v2
    v_lshl_add_u32 v{T+1}, v1, 1, v{T+1}''')
    a.wait(vm='l'); a('s_barrier')
    a.lds(f'ds_read_b64 {vr(XV, 2)}, v{T}', 'x')
    a.lds(f'ds_read_b64 {vr(XV+2, 2)}, v{T} offset:{8*576}', 'x')
    for x in range(2):
        for jj in range(4):
            a.lds(f'ds_read_u16_d16_hi v{Z+4*x+jj}, v{T+1} offset:{9216 + 32*jj + 16*x}', 'z')
    def unp(d, s, i): return f'v_lshlrev_b32 v{d}, 16, v{s+i//2}' if i % 2 == 0 else f'v_and_b32 v{d}, 0xffff0000, v{s+i//2}'
    def rnd8(r, tmp):
        for i in range(4): a(f'v_cvt_pk_bf16_f32 v{tmp+i}, v{r+2*i}, v{r+2*i+1}')
        for i in range(8): a(unp(r+i, tmp, i))
    XF = 80; S = 88; TM = 96
    a.wait(lg='x', vm='s')
    for i in range(8): a(unp(XF+i, XV, i))
    for i in range(8): a(f'v_sub_f32 v{S+i}, v{XF+i}, v{ST+2*(i//4)}')
    rnd8(S, TM)
    for i in range(8): a(f'v_mul_f32 v{S+i}, v{S+i}, v{ST+2*(i//4)+1}')
    rnd8(S, TM)
    a.wait(lg='z')
    for i in range(8): a(f'v_and_b32 v{Z+i}, 0xffff0000, v{Z+i}')
    for i in range(8): a(f'v_mul_f32 v{S+i}, v{S+i}, v{Z+i}')
    rnd8(S, TM)
    a.wait(vm=('p', 0))
    for i in range(8): a(unp(B+i, P, i))
    for s in range(1, 8):
        a.wait(vm=('p', s))
        for i in range(8): a(unp(U+i, P+4*s, i))
        for i in range(8): a(f'v_add_f32 v{B+i}, v{B+i}, v{U+i}')
    rnd8(B, TM)
    for i in range(8): a(unp(U+i, X1, i))
    for i in range(8): a(f'v_add_f32 v{B+i}, v{B+i}, v{U+i}')
    rnd8(B, TM)
    for i in range(8): a(f'v_mul_f32 v{U+i}, {fhex(-1.4426950408889634)}, v{B+i}')
    for i in range(8): a(f'v_exp_f32 v{U+i}, v{U+i}')
    for i in range(8): a(f'v_add_f32 v{U+i}, 1.0, v{U+i}')
    for i in range(8): a(f'v_rcp_f32 v{U+i}, v{U+i}')
    for i in range(8): a(f'v_mul_f32 v{B+i}, v{B+i}, v{U+i}')
    rnd8(B, TM)
    for i in range(8): a(f'v_mul_f32 v{B+i}, v{B+i}, v{S+i}')
    rnd8(B, TM)
    for i in range(8): a(f'v_add_f32 v{B+i}, v{B+i}, v{XF+i}')
    for i in range(4): a(f'v_cvt_pk_bf16_f32 v{TM+i}, v{B+2*i}, v{B+2*i+1}')
    a(f'''ds_write_b64 v{T}, {vr(TM, 2)}
    ds_write_b64 v{T}, {vr(TM+2, 2)} offset:{8*576}
    v_lshlrev_b32 v1, 4, v0
    s_waitcnt lgkmcnt(0)
    s_barrier
    ds_read_b128 {vr(P, 4)}, v1
    s_waitcnt lgkmcnt(0)
    buffer_store_dwordx4 {vr(P, 4)}, v{T+4}, s[12:15], s32 offen''')
    if stamps:
        a('s_waitcnt vmcnt(0)')
        stamp_end(a, 28, 3, vtmp=8)
    a('K4_end:\ns_endpgm')
    return a.text(), 104, K4_LDS
```

```python
import sys, hz
from common import *
from k1 import gen_k1
from k2 import gen_k2, NG2, NCV, NRP
from k3s import gen_k3
from k4 import gen_k4
HEADER = open('recurrent_scan__ssm_conv_h3__mixer_s_mlp__prompt.s.ref').read().split('; Override launch')[0] if __name__ == '__main__' else ''
def build(stamps=False, k3kw={}, extra_empty=0):
    b1, n1, l1 = gen_k1(stamps); b2, n2, l2 = gen_k2(stamps)
    kw = dict(store_flags='nt', pre=4); kw.update(k3kw)
    b3, n3, l3 = gen_k3(stamps=stamps, **kw); b4, n4, l4 = gen_k4(stamps)
    L = [('k1_kernel', 252, 576, l1), ('k2_kernel', NG2+NCV+NRP, 512, l2), ('k3_kernel', 256, 256, l3), ('k4_kernel', 256, 576, l4)]
    K = [('k1_kernel', hz.fix(b1), n1, 102, None), ('k2_kernel', hz.fix(b2), n2, 102, None), ('k3_kernel', hz.fix(b3), 512, 102, 256), ('k4_kernel', hz.fix(b4), n4, 102, None)]
    if extra_empty:
        L += [('empty_kernel', 256, 64, 0)] * extra_empty
        K.append(('empty_kernel', '    s_endpgm\n', 8, 16, None))
    return build_file(L, K)
if __name__ == '__main__':
    out = sys.argv[1]
    kw = eval(sys.argv[2]) if len(sys.argv) > 2 else {}
    open(out, 'w').write(HEADER + build(**kw))
```

```python
from asmlib import *
import struct
MAT = 2048 * 576 * 2
WS_HF   = 0
WS_X1F  = 1 * MAT
WS_KVR  = 2 * MAT
WS_ZT   = 3 * MAT
WS_PF   = 4 * MAT
WS_ST1  = 12 * MAT
WS_ST2  = WS_ST1 + 16384
WS_CS3  = WS_ST2 + 9 * 16384
WS_FL   = WS_CS3 + 9 * 4608 * 4
FL_H, FL_X, FL_W3, FL_W4, FL_KV, FL_Z = [WS_FL + 128 * i for i in (128, 192, 224, 232, 240, 249)]
WS_TS   = 13 * MAT
WBYTES  = 576 * 4608 * 2
WS_WP3  = 14 * MAT
WS_WP4  = WS_WP3 + WBYTES
WS_END  = WS_WP4 + WBYTES

def f2u(x):
    return struct.unpack('<I', struct.pack('<f', x))[0]
def fhex(x):
    return '0x%08x' % f2u(x)

class Gen(Asm):
    def __init__(self):
        super().__init__()
        self.vm = []
        self.lg = []
    def vmem(self, s, tag=None):
        self(s); self.vm.append(tag)
    def lds(self, s, tag=None):
        self(s); self.lg.append(tag)
    def _n(self, q, tags):
        if not isinstance(tags, (list, tuple, set)) or (isinstance(tags, tuple)): tags = [tags]
        last = -1
        for i, t in enumerate(q):
            if t in tags: last = i
        if last < 0: return None
        return len(q) - 1 - last
    def wait(self, vm=None, lg=None, vm_all=False, lg_all=False):
        parts = []
        if vm_all: nv = 0 if self.vm else None
        else: nv = self._n(self.vm, vm) if vm is not None else None
        if lg_all: nl = 0 if self.lg else None
        else: nl = self._n(self.lg, lg) if lg is not None else None
        if nv is not None:
            nv = min(nv, 63)
            parts.append(f'vmcnt({nv})'); self.vm = self.vm[len(self.vm) - nv:] if nv else []
        if nl is not None:
            nl = min(nl, 15)
            parts.append(f'lgkmcnt({nl})'); self.lg = self.lg[len(self.lg) - nl:] if nl else []
        if parts: self('s_waitcnt ' + ' '.join(parts))
    trace = False
    def tr(self, i):
        if self.trace: self(f's_mem{"real" if self.trace == 2 else ""}time s[{68+2*i}:{69+2*i}]')
    def srd(self, d, lo, hi, size):
        self(f's_mov_b32 s{d}, s{lo}\ns_mov_b32 s{d+1}, s{hi}\ns_mov_b32 s{d+2}, {size}\ns_mov_b32 s{d+3}, 0x20000')

GELU_C0 = -2.0 * 1.4426950408889634 * 0.7978845608028654
GELU_C1 = GELU_C0 * 0.044715

def stamp_start(a, s=92):
    a(f's_memrealtime s[{s}:{s+1}]\ns_memtime s[{s+4}:{s+5}]')
def stamp_end(a, ws_lo, kidx, s=92, vtmp=0):
    a(f'''s_memrealtime s[{s+2}:{s+3}]
    s_memtime s[{s+6}:{s+7}]
    s_waitcnt lgkmcnt(0)
    s_lshl_b32 s{s+1}, s2, 4
    s_add_u32 s{s+1}, s{s+1}, {WS_TS + kidx * 16384}
    s_sub_u32 s{s+6}, s{s+6}, s{s+4}
    s_getreg_b32 s{s+7}, hwreg(HW_REG_XCC_ID)
    v_mov_b32 v{vtmp}, s{s}
    v_mov_b32 v{vtmp+1}, s{s+2}
    v_mov_b32 v{vtmp+2}, s{s+6}
    v_mov_b32 v{vtmp+3}, s{s+7}
    v_mov_b32 v{vtmp+4}, s{s+1}
    global_store_dwordx4 v{vtmp+4}, v[{vtmp}:{vtmp+3}], s[{ws_lo}:{ws_lo+1}]''')

def trace_init(a):
    if a.trace:
        for i in range(12): a(f's_mov_b32 s{68+2*i}, 0')
def trace_dump(a, ws_lo, kidx, vtmp, s=92):
    if not a.trace: return
    a('s_waitcnt lgkmcnt(0)')
    for i in range(12):
        if a.trace != 2: a(f's_sub_u32 s{68+2*i}, s{68+2*i}, s{s+4}')
        a(f'v_mov_b32 v{vtmp+i}, s{68+2*i}')
    a(f's_lshl_b32 s68, s2, 4\ns_add_u32 s68, s68, s67\ns_lshl_b32 s68, s68, 6\ns_add_u32 s68, s68, {WS_TS + 65536 + kidx * 524288}\nv_mov_b32 v{vtmp+12}, s68')
    for i in range(3): a(f'global_store_dwordx4 v{vtmp+12}, v[{vtmp+4*i}:{vtmp+4*i+3}], s[{ws_lo}:{ws_lo+1}] offset:{16*i}')
def trace_wave(a):
    if a.trace: a('v_lshrrev_b32 v1, 6, v0\ns_nop 0\nv_readfirstlane_b32 s67, v1')

def touch_code(a, label, nbytes, sp, vaddr, vdst, uniq):
    a(f's_getpc_b64 s[{sp}:{sp+1}]\n{uniq}:\ns_add_u32 s{sp}, s{sp}, {label}-{uniq}\ns_addc_u32 s{sp+1}, s{sp+1}, 0\nv_lshlrev_b32 v{vaddr}, 7, v0')
    n = (nbytes + 8191) // 8192
    for i in range(n):
        if i == n - 1:
            a(f'v_min_u32 v{vaddr}, {nbytes - 4}, v{vaddr}')
        a(f'global_load_dword v{vdst}, v{vaddr}, s[{sp}:{sp+1}]')
        if i < n - 1: a(f'v_add_u32 v{vaddr}, 8192, v{vaddr}')
```

```python
from common import *

def bf16r(a, d, s):
    a(f'v_cvt_pk_bf16_f32 v{d}, v{s}, v{s}\nv_lshlrev_b32 v{d}, 16, v{d}')

def gelu_ops(x, t, n, sC1, vC0):
    st = [lambda i: f'v_mul_f32 v{t+i}, v{x+i}, v{x+i}',
          lambda i: f'v_fma_f32 v{t+i}, v{t+i}, s{sC1}, v{vC0}',
          lambda i: f'v_mul_f32 v{t+i}, v{t+i}, v{x+i}',
          lambda i: f'v_exp_f32 v{t+i}, v{t+i}',
          lambda i: f'v_add_f32 v{t+i}, 1.0, v{t+i}',
          lambda i: f'v_rcp_f32 v{t+i}, v{t+i}',
          lambda i: f'v_mul_f32 v{x+i}, v{x+i}, v{t+i}']
    return [f(i) for f in st for i in range(n)]

K1_LDS = 73728 + 81920 + 256
K1_GRID = 252
K1_BLOCK = 576

def gen_gemm1(a, stamps):
    X = 4; ACC = 76; SUM = 92; GR = 96; ONE = 100; WF = 104
    T = 136; CSR = 104
    vXo, vWo, vXr, vTr, vTr2, vC0 = 144, 145, 146, 147, 148, 149
    sMt, sC, sW, sTmp, sTmp2, sXo, sWo, sXl, sC1 = 20, 21, 22, 23, 24, 25, 26, 27, 30
    XB = 73728; CSB = 73728 + 81920
    a(f'''
    s_load_dwordx2 s[4:5], s[0:1], 0
    s_load_dwordx2 s[6:7], s[0:1], 56
    s_load_dwordx2 s[28:29], s[0:1], 104
    s_and_b32 s{sMt}, s2, 7
    s_lshl_b32 s{sMt}, s{sMt}, 1
    s_bfe_u32 s{sTmp}, s2, 0x10003
    s_add_u32 s{sMt}, s{sMt}, s{sTmp}
    s_lshr_b32 s{sC}, s2, 4
    v_lshrrev_b32 v1, 6, v0
    v_and_b32 v0, 63, v0
    v_readfirstlane_b32 s{sW}, v1
    ''')
    a(f'''
    v_lshrrev_b32 v1, 4, v0
    v_bfe_u32 v2, v0, 2, 2
    v_lshl_add_u32 v3, v1, 3, v2
    v_lshlrev_b32 v3, 7, v3
    v_lshrrev_b32 v2, 1, v2
    v_and_b32 v1, 1, v1
    v_lshl_add_u32 v2, v1, 1, v2
    v_lshl_add_u32 v3, v2, 5, v3
    v_and_b32 v2, 3, v0
    v_lshl_add_u32 v152, v2, 3, v3
    v_xor_b32 v153, 32, v152
    v_xor_b32 v154, 64, v152
    v_xor_b32 v155, 96, v152
    ''')
    for t in range(4): a(f'v_add_u32 v{156+t}, 36864, v{152+t}')
    for i in range(4): a(f'v_mov_b32 v{ONE+i}, 0x3f803f80')
    def wrd(u, buf):
        for t in range(4):
            for h in range(2):
                o = u * 4096 + h * 512
                b = 152 + t + (4 if o >= 36864 else 0); o -= 36864 if o >= 36864 else 0
                a.lds(f'ds_read_b64_tr_b16 {vr(WF + 16*buf + 4*t + 2*h, 2)}, v{b} offset:{o}', ('wr', u))
    a(f's_cmp_eq_u32 s{sW}, 8\ns_cbranch_scc1 K1_cswave')
    a(f'''
    v_lshrrev_b32 v1, 2, v0
    v_mul_u32_u24 v{vXo}, 1152, v1
    v_and_b32 v2, 3, v0
    v_lshrrev_b32 v3, 4, v0
    v_and_b32 v3, 2, v3
    v_xor_b32 v2, v2, v3
    v_lshl_add_u32 v{vXo}, v2, 4, v{vXo}
    s_lshl_b32 s{sTmp}, s{sMt}, 7
    s_lshl_b32 s{sTmp2}, s{sW}, 4
    s_add_u32 s{sTmp}, s{sTmp}, s{sTmp2}
    s_mul_i32 s{sXo}, s{sTmp}, 1152
    s_mul_i32 s{sXl}, s{sW}, 10240
    s_add_u32 s{sXl}, s{sXl}, {XB}
    v_lshrrev_b32 v1, 3, v0
    v_mul_u32_u24 v{vWo}, 1152, v1
    v_bfe_u32 v2, v0, 4, 1
    s_and_b32 s{sTmp2}, s{sW}, 1
    s_lshl_b32 s{sTmp2}, s{sTmp2}, 1
    v_or_b32 v2, s{sTmp2}, v2
    v_lshlrev_b32 v2, 1, v2
    v_and_b32 v3, 7, v0
    v_xor_b32 v2, v2, v3
    v_lshl_add_u32 v{vWo}, v2, 4, v{vWo}
    s_mul_i32 s{sWo}, s{sW}, {8*1152}
    s_lshl_b32 s{sTmp2}, s{sC}, 7
    s_add_u32 s{sWo}, s{sWo}, s{sTmp2}
    s_lshl_b32 s31, s{sW}, 10
    s_waitcnt lgkmcnt(0)
    ''')
    a.tr(0)
    a.srd(8, 4, 5, MAT); a.srd(12, 6, 7, 576*1152); a.srd(16, 28, 29, WS_END)
    def xdma(u):
        a(f's_add_u32 m0, s{sXl}, {(u % 10) * 1024 - u * 64}')
        a('s_nop 0')
        a.vmem(f'buffer_load_dwordx4 v{vXo}, s[8:11], s{sXo} offen offset:{u*64} lds', ('x', u))
    def wdma(i):
        a(f's_add_u32 m0, s31, {i * 8192}')
        a(f's_add_u32 s{sTmp}, s{sWo}, {i * 64 * 1152}')
        a.vmem(f'buffer_load_dwordx4 v{vWo}, s[12:15], s{sTmp} offen lds', ('w', i))
    for i in range(5):
        xdma(2*i); xdma(2*i + 1); wdma(i)
    for i in range(5, 9): wdma(i)
    a.tr(1)
    a(f'''
    v_and_b32 v1, 15, v0
    v_lshrrev_b32 v2, 4, v0
    v_lshrrev_b32 v3, 3, v1
    v_lshlrev_b32 v3, 1, v3
    v_xor_b32 v2, v2, v3
    v_lshl_add_u32 v2, v1, 2, v2
    v_lshl_add_u32 v{vXr}, v2, 4, s{sXl}
    s_mov_b32 s{sC1}, {fhex(GELU_C1)}
    v_mov_b32 v{vC0}, {fhex(GELU_C0)}
    ''')
    def xrd(u): a.lds(f'ds_read_b128 {vr(X + 4*u, 4)}, v{vXr} offset:{(u % 10) * 1024}', ('xr', u))
    def step(u, nxt):
        if nxt is not None: wrd(nxt, nxt % 2)
        a.wait(lg=[('wr', u), ('xr', u)])
        x = vr(X + 4*u, 4)
        for t in range(4):
            a(f'v_mfma_f32_16x16x32_bf16 {vr(ACC+4*t, 4)}, {vr(WF + 16*(u%2) + 4*t, 4)}, {x}, {"0" if u == 0 else vr(ACC+4*t, 4)}')
        a(f'v_mfma_f32_16x16x32_bf16 {vr(SUM, 4)}, {vr(ONE, 4)}, {x}, {"0" if u == 0 else vr(SUM, 4)}')
        a(f'v_mfma_f32_16x16x32_bf16 {vr(GR, 4)}, {x}, {x}, {"0" if u == 0 else vr(GR, 4)}')
    a.wait(vm=('w', 2)); a.tr(2); a('s_barrier'); a.tr(3)
    for u in range(6): xrd(u)
    wrd(0, 0)
    a.wait(lg=('xr', 5))
    for u in range(10, 16): xdma(u)
    for u in range(6): step(u, u + 1 if u < 5 else None)
    a.tr(4); a.wait(vm=('w', 5)); a('s_barrier'); a.tr(5)
    for u in range(6, 10): xrd(u)
    wrd(6, 0)
    a.wait(lg=('xr', 9))
    xdma(16); xdma(17)
    for u in range(6, 10): step(u, u + 1)
    a.wait(vm=('x', 11)); xrd(10); xrd(11)
    step(10, 11); step(11, None)
    a.tr(6); a('s_barrier'); a.tr(7)
    wrd(12, 0)
    a.wait(vm=('x', 15))
    for u in range(12, 16): xrd(u)
    step(12, 13); step(13, 14)
    a.wait(vm=('x', 17)); xrd(16); xrd(17)
    for u in range(14, 18): step(u, u + 1 if u < 17 else None)
    a.tr(8)
    a(f'''
    v_and_b32 v1, 3, v0
    v_cmp_eq_u32 vcc, 1, v1
    v_cmp_eq_u32 s[32:33], 2, v1
    v_cmp_eq_u32 s[34:35], 3, v1
    v_and_b32 v2, 15, v0
    v_lshrrev_b32 v3, 2, v2
    v_lshl_add_u32 v3, v3, 4, v2
    v_lshlrev_b32 v3, 2, v3
    v_cndmask_b32 v{GR}, v{GR}, v{GR+1}, vcc
    v_cndmask_b32 v{GR}, v{GR}, v{GR+2}, s[32:33]
    v_cndmask_b32 v{GR}, v{GR}, v{GR+3}, s[34:35]
    ''')
    a.lds(f'ds_bpermute_b32 v{GR+1}, v3, v{GR}', 'gr')
    m, var, m1, r1, t0, t1 = T, T+1, T+2, T+3, T+4, T+5
    al, be = T+6, T+7
    a(f'v_mul_f32 v{m}, {fhex(1/576)}, v{SUM}')
    bf16r(a, m1, m)
    a.wait(lg='gr')
    a(f'''v_mul_f32 v{var}, {fhex(1/576)}, v{GR+1}
    v_fma_f32 v{var}, -v{m}, v{m}, v{var}
    v_max_f32 v{var}, 0, v{var}''')
    def dn(dst, v):
        bf16r(a, dst, v)
        a(f'v_add_f32 v{dst}, {fhex(1e-5)}, v{dst}')
        bf16r(a, dst, dst)
        a(f'v_sqrt_f32 v{dst}, v{dst}')
        bf16r(a, dst, dst)
        a(f'v_rcp_f32 v{dst}, v{dst}')
    dn(r1, var)
    a(f'''v_sub_f32 v{t0}, v{m}, v{m1}
    v_mul_f32 v{t0}, v{t0}, v{r1}
    v_mul_f32 v{var}, v{var}, v{r1}
    v_mul_f32 v{var}, v{var}, v{r1}''')
    bf16r(a, t0, t0)
    dn(t1, var)
    a(f'''v_fma_f32 v{t0}, v{m1}, v{r1}, v{t0}
    v_mul_f32 v{al}, v{r1}, v{t1}
    v_mul_f32 v{be}, v{t0}, v{t1}
    v_sub_f32 v{be}, 0, v{be}''')
    a(f'''s_lshl_b32 s{sTmp}, s{sMt}, 7
    s_lshl_b32 s{sTmp2}, s{sW}, 4
    s_add_u32 s{sTmp}, s{sTmp}, s{sTmp2}
    v_add_u32 v2, s{sTmp}, v2
    v_and_b32 v1, 48, v0
    v_add_u32 v{vTr}, {CSB}, v1
    s_barrier''')
    for t in range(4): a.lds(f'ds_read_b128 {vr(CSR+4*t, 4)}, v{vTr} offset:{64*t}', 'cs')
    a(f'''v_lshlrev_b32 v3, 3, v2
    s_cmp_eq_u32 s{sC}, 0
    s_mov_b32 s{sTmp}, {WS_ST1}
    s_cselect_b32 s{sTmp}, s{sTmp}, {WS_END}
    buffer_store_dwordx2 {vr(m1, 2)}, v3, s[16:19], s{sTmp} offen''')
    for t in range(4):
        a(f'''s_lshl_b32 s{sTmp}, s{sC}, 2
        s_add_u32 s{sTmp}, s{sTmp}, {t}
        s_mul_i32 s{sTmp}, s{sTmp}, 57
        s_lshr_b32 s{sTmp}, s{sTmp}, 9
        s_lshr_b32 s{sTmp2}, s{sTmp}, 1
        s_add_u32 s{sTmp2}, s{sTmp2}, 1
        s_bitcmp1_b32 s{sTmp}, 0
        s_cselect_b32 s{sTmp}, -1, 1
        s_mul_i32 s{sTmp}, s{sTmp}, s{sTmp2}
        v_add_u32 v{X+4}, s{sTmp}, v2
        v_cmp_gt_u32 s[{40+2*t}:{41+2*t}], 0x800, v{X+4}
        v_and_b32 v{X+4}, 0x7ff, v{X+4}
        v_lshrrev_b32 v{X+5}, 4, v{X+4}
        v_mul_u32_u24 v{X+5}, 18432, v{X+5}
        v_and_b32 v{X+4}, 15, v{X+4}
        v_add_u32 v{X+4}, v{X+4}, v1
        v_lshl_add_u32 v{X+t}, v{X+4}, 4, v{X+5}'''.replace('v_cmp_gt_u32 s[', 's_movk_i32 s36, 0x800\nv_cmp_gt_u32 s[').replace(', 0x800, v', ', s36, v'))
    a.wait(lg='cs'); a.tr(9)
    for i in range(16): a(f'v_mul_f32 v{CSR+i}, v{CSR+i}, v{be}')
    for i in range(16): a(f'v_fma_f32 v{ACC+i}, v{ACC+i}, v{al}, v{CSR+i}')
    for op in gelu_ops(ACC, CSR, 16, sC1, vC0): a(op)
    a(f's_lshl_b32 s{sTmp}, s{sC}, 11\ns_add_u32 s{sTmp}, s{sTmp}, {WS_HF}')
    for t in range(4):
        d = X + 8 + 2*t
        a(f'''v_cvt_pk_bf16_f32 v{d}, v{ACC+4*t}, v{ACC+4*t+1}
        v_cvt_pk_bf16_f32 v{d+1}, v{ACC+4*t+2}, v{ACC+4*t+3}
        v_cndmask_b32 v{d}, 0, v{d}, s[{40+2*t}:{41+2*t}]
        v_cndmask_b32 v{d+1}, 0, v{d+1}, s[{40+2*t}:{41+2*t}]
        buffer_store_dwordx2 {vr(d, 2)}, v{X+t}, s[16:19], s{sTmp} offen offset:{(t >> 1) * 1024 + (t & 1) * 8}''')
    a('s_branch K1_fin')
    a.label('K1_cswave')
    a.vm = []; a.lg = []
    a('s_waitcnt lgkmcnt(0)')
    for th in range(3):
        a('s_barrier')
        wrd(6*th, 0)
        for u in range(6*th, 6*th + 6):
            if u % 6 < 5: wrd(u + 1, (u + 1) % 2)
            a.wait(lg=('wr', u))
            for t in range(4):
                a(f'v_mfma_f32_16x16x32_bf16 {vr(ACC+4*t, 4)}, {vr(WF + 16*(u%2) + 4*t, 4)}, {vr(ONE, 4)}, {"0" if u == 0 else vr(ACC+4*t, 4)}')
    a(f'v_and_b32 v1, 48, v0\nv_add_u32 v{vTr}, {CSB}, v1')
    for t in range(4): a(f'ds_write_b128 v{vTr}, {vr(ACC+4*t, 4)} offset:{64*t}')
    a('s_waitcnt lgkmcnt(0)\ns_barrier\ns_branch K1_fin')

def gen_repack_unit(a, sSrcOff, pitch, srd_src, sDst, sLds, colsum_acc=None, vb=4):
    D = vb; vS = vb + 32; vR = vb + 33; vL = vb + 37
    a(f'''
    v_lshrrev_b32 v1, 3, v0
    v_mul_u32_u24 v{vS}, {pitch}, v1
    v_lshrrev_b32 v2, 3, v0
    v_and_b32 v2, 6, v2
    v_and_b32 v3, 7, v0
    v_xor_b32 v2, v2, v3
    v_lshl_add_u32 v{vS}, v2, 4, v{vS}
    s_mov_b32 m0, s{sLds}''')
    for i in range(8):
        a.vmem(f'buffer_load_dwordx4 v{vS}, s[{srd_src}:{srd_src+3}], s{sSrcOff} offen lds', ('rp', i // 4))
        if i < 7: a(f's_add_u32 m0, m0, 1024\ns_add_u32 s{sSrcOff}, s{sSrcOff}, {8*pitch}')
    a(f'''
    v_lshrrev_b32 v1, 2, v0
    v_lshlrev_b32 v3, 7, v1
    v_bfe_u32 v2, v1, 1, 2
    v_lshl_add_u32 v3, v2, 5, v3
    v_and_b32 v2, 3, v0
    v_lshl_add_u32 v3, v2, 3, v3
    v_add_u32 v{vR}, s{sLds}, v3
    v_xor_b32 v{vR+1}, 32, v{vR}
    v_xor_b32 v{vR+2}, 64, v{vR}
    v_xor_b32 v{vR+3}, 96, v{vR}
    v_lshlrev_b32 v{vL}, 4, v0''')
    for uu in range(2):
        a.tr(1 + 2*uu); a.wait(vm=('rp', uu)); a.tr(2 + 2*uu)
        for t in range(4):
            for h in range(2):
                a.lds(f'ds_read_b64_tr_b16 {vr(D + 16*uu + 4*t + 2*h, 2)}, v{vR+t} offset:{uu*4096 + h*2048}', ('rr', uu, t))
    for uu in range(2):
        for t in range(4):
            a.wait(lg=('rr', uu, t))
            if t: a(f's_add_u32 s{sDst}, s{sDst}, 18432')
            a.vmem(f'buffer_store_dwordx4 {vr(D + 16*uu + 4*t, 4)}, v{vL}, s[16:19], s{sDst} offen offset:{uu*1024}', 'st')
            if colsum_acc is not None:
                acc, one = colsum_acc
                a(f'v_mfma_f32_16x16x32_bf16 {vr(acc+4*t, 4)}, {vr(one, 4)}, {vr(D + 16*uu + 4*t, 4)}, {"0" if uu == 0 else vr(acc+4*t, 4)}')
        if uu == 0: a(f's_sub_u32 s{sDst}, s{sDst}, {3*18432}')

def gen_repack3(a):
    sSl, sC, sW, sSrc, sDst, sLds, sTmp = 20, 21, 22, 23, 24, 25, 26
    ACC = 48; ONE = 64
    a(f'''
    s_load_dwordx2 s[4:5], s[0:1], 72
    s_load_dwordx2 s[28:29], s[0:1], 104
    s_sub_u32 s{sC}, s2, 144
    s_and_b32 s{sSl}, s{sC}, 7
    s_lshr_b32 s{sC}, s{sC}, 3
    v_lshrrev_b32 v1, 6, v0
    v_and_b32 v0, 63, v0
    v_readfirstlane_b32 s{sW}, v1
    s_mul_i32 s{sSrc}, s{sSl}, 1152
    s_lshl_b32 s{sTmp}, s{sC}, 7
    s_add_u32 s{sSrc}, s{sSrc}, s{sTmp}
    s_mul_i32 s{sTmp}, s{sW}, {64*9216}
    s_add_u32 s{sSrc}, s{sSrc}, s{sTmp}
    s_mul_i32 s{sDst}, s{sSl}, 9
    s_add_u32 s{sDst}, s{sDst}, s{sC}
    s_lshl_b32 s27, s{sDst}, 8
    s_mul_i32 s{sDst}, s{sDst}, 73728
    s_lshl_b32 s{sTmp}, s{sW}, 11
    s_add_u32 s{sDst}, s{sDst}, s{sTmp}
    s_add_u32 s{sDst}, s{sDst}, {WS_WP3}
    s_lshl_b32 s{sLds}, s{sW}, 13
    s_waitcnt lgkmcnt(0)''')
    a.srd(8, 4, 5, WBYTES); a.srd(16, 28, 29, WS_END)
    a(f'''s_sub_u32 s36, s2, 144
    s_and_b32 s36, s36, 15
    s_lshl_b32 s36, s36, 10
    s_add_u32 s36, s36, {WS_FL}
    v_lshlrev_b32 v1, 4, v0''')
    for i in range(4): a(f'v_mov_b32 v{ACC+i}, 0')
    a(f'buffer_store_dwordx4 {vr(ACC, 4)}, v1, s[16:19], s36 offen')
    for i in range(4): a(f'v_mov_b32 v{ONE+i}, 0x3f803f80')
    a.vm = []; a.lg = []
    gen_repack_unit(a, sSrc, 9216, 8, sDst, sLds, (ACC, ONE))
    a(f'''
    v_lshrrev_b32 v1, 4, v0
    v_cmp_eq_u32 vcc, 1, v1
    v_cmp_eq_u32 s[32:33], 2, v1
    v_cmp_eq_u32 s[34:35], 3, v1
    s_lshl_b32 s{sTmp}, s{sW}, 8
    s_add_u32 s{sTmp}, s{sTmp}, 73728
    v_lshl_add_u32 v2, v0, 2, s{sTmp}
    v_cndmask_b32 v{ACC}, v{ACC}, v{ACC+4}, vcc
    v_cndmask_b32 v{ACC}, v{ACC}, v{ACC+8}, s[32:33]
    v_cndmask_b32 v{ACC}, v{ACC}, v{ACC+12}, s[34:35]
    ds_write_b32 v2, v{ACC}
    s_waitcnt lgkmcnt(0)
    s_barrier
    s_cmp_lg_u32 s{sW}, 0
    s_cbranch_scc1 K1_fin''')
    for i in range(1, 9): a(f'ds_read_b32 v{ACC+i}, v2 offset:{256*i}')
    a('s_waitcnt lgkmcnt(0)')
    for i in range(1, 9): a(f'v_add_f32 v{ACC}, v{ACC}, v{ACC+i}')
    a(f'''v_lshlrev_b32 v2, 2, v0
    s_add_u32 s27, s27, {WS_CS3}
    buffer_store_dword v{ACC}, v2, s[16:19], s27 offen
    s_branch K1_fin''')

def gen_kvprep(a):
    sTq, sC, sW, sTmp, sTmp2 = 20, 21, 22, 23, 24
    KR = 4; VR_ = 48; CF = 80; CU = 96; KC = 128; O = 140; P = 148; vK = 152; vKm = 153; vW = 154
    a(f'''
    s_load_dwordx4 s[4:7], s[0:1], 8
    s_load_dwordx2 s[36:37], s[0:1], 24
    s_load_dwordx2 s[28:29], s[0:1], 104
    s_sub_u32 s{sC}, s2, 216
    s_and_b32 s{sTq}, s{sC}, 3
    s_lshr_b32 s{sC}, s{sC}, 2
    v_lshrrev_b32 v1, 6, v0
    s_nop 0
    v_readfirstlane_b32 s{sW}, v1
    s_nop 0
    s_cmp_eq_u32 s{sW}, 8
    s_cbranch_scc1 K1_end
    v_lshrrev_b32 v1, 3, v0
    v_and_b32 v2, 7, v0
    s_lshl_b32 s{sTmp}, s{sTq}, 6
    v_add_u32 v3, s{sTmp}, v1
    v_mul_u32_u24 v{vK}, {8*1152}, v3
    v_lshl_add_u32 v{vK}, v2, 4, v{vK}
    s_lshl_b32 s{sTmp}, s{sC}, 7
    v_add_u32 v{vK}, s{sTmp}, v{vK}
    v_subrev_u32 v{vKm}, 3456, v{vK}
    v_lshlrev_b32 v3, 6, v2
    s_lshl_b32 s{sTmp2}, s{sC}, 9
    s_waitcnt lgkmcnt(0)''')
    a.srd(8, 4, 5, MAT); a.srd(12, 6, 7, MAT); a.srd(32, 36, 37, 576*8); a.srd(16, 28, 29, WS_END)
    a.vm = []; a.lg = []
    for i in range(4): a.vmem(f'buffer_load_dwordx4 {vr(CF+4*i, 4)}, v3, s[32:35], s{sTmp2} offen offset:{16*i}', 'cf')
    for i in range(3): a.vmem(f'buffer_load_dwordx4 {vr(KR+4*i, 4)}, v{vKm}, s[8:11], 0 offen offset:{1152*i}', 'k')
    for i in range(8):
        if i % 3 == 0: a(f's_mov_b32 s{sTmp}, {1152*i}')
        a.vmem(f'buffer_load_dwordx4 {vr(KR+12+4*i, 4)}, v{vK}, s[8:11], s{sTmp} offen offset:{1152*(i%3)}', 'k')
        a.vmem(f'buffer_load_dwordx4 {vr(VR_+4*i, 4)}, v{vK}, s[12:15], s{sTmp} offen offset:{1152*(i%3)}', 'k')
    a(f'''v_sub_u32 v1, 63, v1
    v_xor_b32 v1, v1, v2
    v_lshlrev_b32 v1, 4, v1
    v_lshl_add_u32 v{vW}, v2, 13, v1''')
    a.tr(1); a.wait(vm='cf'); a.tr(2)
    for i in range(16):
        a(f'v_lshlrev_b32 v{CU+2*i}, 16, v{CF+i}\nv_and_b32 v{CU+2*i+1}, 0xffff0000, v{CF+i}')
    a.wait(vm='k'); a.tr(3)
    for ch in range(8):
        def unp(d, s): return f'v_lshlrev_b32 v{d}, 16, v{s}' if ch % 2 == 0 else f'v_and_b32 v{d}, 0xffff0000, v{s}'
        for i in range(11): a(unp(KC + i, KR + 4*i + ch // 2))
        c = CU + 4 * ch
        for t in range(8): a(f'v_mul_f32 v{O+t}, v{KC+t}, v{c+3}')
        for j in (2, 1, 0):
            for t in range(8): a(f'v_fmac_f32 v{O+t}, v{KC+t+3-j}, v{c+j}')
        for t in range(8): a(unp(KC + t, VR_ + 4*t + ch // 2))
        for t in range(8): a(f'v_mul_f32 v{O+t}, v{O+t}, v{KC+t}')
        pp = P if ch % 2 == 0 else CF
        for i in range(4): a(f'v_cvt_pk_bf16_f32 v{pp+i}, v{O+7-2*i}, v{O+6-2*i}')
        a(f'ds_write_b128 v{vW}, {vr(pp, 4)} offset:{ch*1024}')
    a.tr(4)
    a(f'''v_and_b32 v0, 63, v0
    v_xor_b32 v1, s{sW}, v0
    v_lshlrev_b32 v1, 4, v1
    s_lshl_b32 s{sTmp}, s{sW}, 13
    v_add_u32 v1, s{sTmp}, v1
    v_lshlrev_b32 v2, 4, v0
    s_lshl_b32 s{sTmp}, s{sC}, 6
    s_lshl_b32 s{sTmp2}, s{sW}, 3
    s_add_u32 s{sTmp}, s{sTmp}, s{sTmp2}
    s_lshl_b32 s{sTmp}, s{sTmp}, 12
    s_sub_u32 s{sTmp2}, 3, s{sTq}
    s_lshl_b32 s{sTmp2}, s{sTmp2}, 10
    s_add_u32 s{sTmp}, s{sTmp}, s{sTmp2}
    s_add_u32 s{sTmp}, s{sTmp}, {WS_KVR}
    s_waitcnt lgkmcnt(0)
    s_barrier''')
    for i in range(8): a.lds(f'ds_read_b128 {vr(KR+4*i, 4)}, v1 offset:{1024*i}', i)
    for i in range(8):
        a.wait(lg=i)
        a(f'buffer_store_dwordx4 {vr(KR+4*i, 4)}, v2, s[16:19], s{sTmp} offen')
        if i < 7: a(f's_add_u32 s{sTmp}, s{sTmp}, 4096')
    a('s_branch K1_fin')

def gen_k1(stamps=False, trace=False):
    a = Gen(); a.trace = trace
    a('s_cmp_ge_u32 s2, 252\ns_cbranch_scc1 K1_end')
    if stamps: stamp_start(a)
    trace_init(a); trace_wave(a)
    a('s_cmp_ge_u32 s2, 216\ns_cbranch_scc1 K1_kv\ns_cmp_ge_u32 s2, 144\ns_cbranch_scc1 K1_rp')
    gen_gemm1(a, stamps)
    a.label('K1_rp'); gen_repack3(a)
    a.label('K1_kv'); gen_kvprep(a)
    a.label('K1_fin')
    if stamps:
        a.tr(10); a('s_waitcnt vmcnt(0)'); a.tr(11)
        trace_dump(a, 28, 0, 8)
        stamp_end(a, 28, 0, vtmp=4)
    a('K1_end:\ns_endpgm')
    return a.text(), 160, K1_LDS
```

```python
from common import *
from k1 import bf16r, gen_repack_unit

K2_LDS = 75776
K3_BYTES = [0]
NG2, NCV, NRP = 144, 288, 48

def gen_gemm2(a):
    X = 4; ACC = 76; WF = 92
    sMt, sC, sW, sTmp, sTmp2, sWo, sRow = 20, 21, 22, 23, 24, 26, 27
    TB = 124
    a(f'''
    s_load_dwordx2 s[4:5], s[0:1], 0
    s_load_dwordx2 s[6:7], s[0:1], 64
    s_load_dwordx2 s[28:29], s[0:1], 104
    s_and_b32 s{sMt}, s2, 7
    s_lshl_b32 s{sMt}, s{sMt}, 1
    s_bfe_u32 s{sTmp}, s2, 0x10003
    s_add_u32 s{sMt}, s{sMt}, s{sTmp}
    s_lshr_b32 s{sC}, s2, 4
    v_lshrrev_b32 v1, 6, v0
    v_and_b32 v0, 63, v0
    v_readfirstlane_b32 s{sW}, v1
    v_lshrrev_b32 v1, 3, v0
    v_mul_u32_u24 v3, 1152, v1
    v_and_b32 v1, 6, v1
    v_and_b32 v2, 7, v0
    v_lshl_add_u32 v{ACC}, v2, 4, v3
    v_xor_b32 v2, v1, v2
    v_lshl_add_u32 v3, v2, 4, v3
    v_lshlrev_b32 v2, 4, v0
    s_mul_i32 s{sWo}, s{sW}, {8*1152}
    s_lshl_b32 s{sTmp2}, s{sC}, 7
    s_add_u32 s{sWo}, s{sWo}, s{sTmp2}
    s_lshl_b32 s31, s{sW}, 10
    s_lshl_b32 s{sRow}, s{sMt}, 3
    s_add_u32 s{sRow}, s{sRow}, s{sW}
    s_mul_i32 s30, s{sRow}, 18432
    s_waitcnt lgkmcnt(0)
    ''')
    a.srd(8, 4, 5, MAT); a.srd(12, 6, 7, 576*1152); a.srd(16, 28, 29, WS_END)
    a.vm = []; a.lg = []
    def wdma(i):
        a(f's_add_u32 m0, s31, {i * 8192}')
        a(f's_add_u32 s{sTmp}, s{sWo}, {i * 64 * 1152}')
        a.vmem(f'buffer_load_dwordx4 v3, s[12:15], s{sTmp} offen lds', ('w', i))
    def hld(u):
        if u % 4 == 0: a(f's_add_u32 s{sTmp2}, s30, {WS_HF + u * 1024}')
        a.vmem(f'buffer_load_dwordx4 {vr(X+4*u, 4)}, v2, s[16:19], s{sTmp2} offen offset:{(u%4)*1024}', ('h', u))
    a.tr(0)
    for i in range(9):
        wdma(i); hld(2*i); hld(2*i+1)
    a.tr(1)
    a(f'''
    v_lshrrev_b32 v1, 2, v0
    v_lshlrev_b32 v3, 7, v1
    v_bfe_u32 v1, v1, 1, 2
    v_lshl_add_u32 v3, v1, 5, v3
    v_and_b32 v1, 3, v0
    v_lshl_add_u32 v{TB}, v1, 3, v3
    v_xor_b32 v{TB+1}, 32, v{TB}
    v_xor_b32 v{TB+2}, 64, v{TB}
    v_xor_b32 v{TB+3}, 96, v{TB}
    v_mov_b32 v3, v{ACC}
    ''')
    hi = [0]
    def wrd(u, buf):
        if u == 9:
            for t in range(4): a(f'v_add_u32 v{TB+t}, 36864, v{TB+t}')
            hi[0] = 36864
        for t in range(4):
            for h in range(2):
                a.lds(f'ds_read_b64_tr_b16 {vr(WF + 16*buf + 4*t + 2*h, 2)}, v{TB+t} offset:{u * 4096 + h * 2048 - hi[0]}', ('wr', u))
    def step(u, nxt):
        if nxt is not None: wrd(nxt, nxt % 2)
        a.wait(lg=('wr', u), vm=('h', u))
        for t in range(4):
            a(f'v_mfma_f32_16x16x32_bf16 {vr(ACC+4*t, 4)}, {vr(WF + 16*(u%2) + 4*t, 4)}, {vr(X+4*u, 4)}, {"0" if u == 0 else vr(ACC+4*t, 4)}')
    XR = X; ST = X + 8
    for th in range(3):
        a.tr(2+2*th); a.wait(vm=('w', 3*th + 2)); a('s_barrier'); a.tr(3+2*th)
        wrd(6*th, 0)
        if th == 1:
            a(f's_mul_i32 s{sTmp}, s{sRow}, {16*1152}\ns_lshl_b32 s{sTmp2}, s{sC}, 7\ns_add_u32 s{sTmp}, s{sTmp}, s{sTmp2}')
            a.vmem(f'buffer_load_dwordx4 {vr(XR, 4)}, v3, s[8:11], s{sTmp} offen', 'x')
            a(f's_add_u32 s{sTmp}, s{sTmp}, {8*1152}')
            a.vmem(f'buffer_load_dwordx4 {vr(XR+4, 4)}, v3, s[8:11], s{sTmp} offen', 'x')
            a(f'v_and_b32 v1, 56, v0\ns_lshl_b32 s{sTmp}, s{sRow}, 7\ns_add_u32 s{sTmp}, s{sTmp}, {WS_ST1}')
            a.vmem(f'buffer_load_dwordx2 {vr(ST, 2)}, v1, s[16:19], s{sTmp} offen', 'x')
            a.vmem(f'buffer_load_dwordx2 {vr(ST+2, 2)}, v1, s[16:19], s{sTmp} offen offset:64', 'x')
        if th == 2:
            a.wait(vm='x')
            U = X + 12
            for hrow in range(2):
                for i in range(4):
                    s = XR + 4*hrow + i
                    a(f'''v_lshlrev_b32 v{U}, 16, v{s}
                    v_and_b32 v{U+1}, 0xffff0000, v{s}
                    v_sub_f32 v{U}, v{U}, v{ST+2*hrow}
                    v_sub_f32 v{U+1}, v{U+1}, v{ST+2*hrow}
                    v_cvt_pk_bf16_f32 v{U+2}, v{U}, v{U+1}
                    v_lshlrev_b32 v{U}, 16, v{U+2}
                    v_and_b32 v{U+1}, 0xffff0000, v{U+2}
                    v_mul_f32 v{U}, v{U}, v{ST+2*hrow+1}
                    v_mul_f32 v{U+1}, v{U+1}, v{ST+2*hrow+1}
                    v_cvt_pk_bf16_f32 v{s}, v{U}, v{U+1}''')
            a(f'''v_lshrrev_b32 v1, 3, v0
            v_mul_u32_u24 v1, 144, v1
            v_and_b32 v3, 7, v0
            v_lshl_add_u32 v1, v3, 4, v1
            s_mul_i32 s{sTmp}, s{sW}, 2304
            v_add_u32 v1, s{sTmp}, v1''')
            a.lds(f'ds_write_b128 v1, {vr(XR, 4)}', 'xw')
            a.lds(f'ds_write_b128 v1, {vr(XR+4, 4)} offset:{8*144}', 'xw')
            a(f'''v_and_b32 v1, 15, v0
            v_mul_u32_u24 v1, 144, v1
            v_lshrrev_b32 v3, 4, v0
            v_lshl_add_u32 v1, v3, 3, v1
            v_add_u32 v1, s{sTmp}, v1''')
            for t in range(4): a.lds(f'ds_read_b64 {vr(X+16+2*t, 2)}, v1 offset:{32*t}', 'xn')
        for u in range(6*th, 6*th + 6): step(u, u + 1 if u % 6 < 5 else None)
    XN = X + 16; P = X + 24; U = X + 32; S = X + 48
    a.tr(8); a.wait(lg='xn')
    for i in range(8): a(f'v_cvt_pk_bf16_f32 v{P+i}, v{ACC+2*i}, v{ACC+2*i+1}')
    for i in range(8):
        a(f'''v_lshlrev_b32 v{ACC+2*i}, 16, v{P+i}
        v_and_b32 v{ACC+2*i+1}, 0xffff0000, v{P+i}
        v_lshlrev_b32 v{U+2*i}, 16, v{XN+i}
        v_and_b32 v{U+2*i+1}, 0xffff0000, v{XN+i}''')
    for i in range(16): a(f'v_add_f32 v{ACC+i}, v{ACC+i}, v{U+i}')
    for i in range(8): a(f'v_cvt_pk_bf16_f32 v{P+i}, v{ACC+2*i}, v{ACC+2*i+1}')
    a(f's_lshl_b32 s{sTmp}, s{sC}, 11\ns_add_u32 s{sTmp}, s{sTmp}, s30\ns_add_u32 s{sTmp}, s{sTmp}, {WS_X1F}')
    a(f'buffer_store_dwordx4 {vr(P, 4)}, v2, s[16:19], s{sTmp} offen')
    a(f'buffer_store_dwordx4 {vr(P+4, 4)}, v2, s[16:19], s{sTmp} offen offset:1024')
    for i in range(8):
        a(f'v_lshlrev_b32 v{ACC+2*i}, 16, v{P+i}\nv_and_b32 v{ACC+2*i+1}, 0xffff0000, v{P+i}')
    a(f'v_add_f32 v{S}, v{ACC}, v{ACC+1}\nv_mul_f32 v{S+1}, v{ACC}, v{ACC}\nv_fmac_f32 v{S+1}, v{ACC+1}, v{ACC+1}')
    for i in range(2, 16):
        a(f'v_add_f32 v{S}, v{S}, v{ACC+i}\nv_fmac_f32 v{S+1}, v{ACC+i}, v{ACC+i}')
    for sw in ('v_permlane32_swap_b32', 'v_permlane16_swap_b32'):
        a(f'''v_mov_b32 v{S+2}, v{S}
        v_mov_b32 v{S+3}, v{S+1}
        {sw} v{S}, v{S+2}
        {sw} v{S+1}, v{S+3}
        v_add_f32 v{S}, v{S}, v{S+2}
        v_add_f32 v{S+1}, v{S+1}, v{S+3}''')
    a(f'''v_and_b32 v1, 15, v0
    v_lshlrev_b32 v1, 3, v1
    s_lshl_b32 s{sTmp}, s{sC}, 14
    s_lshl_b32 s{sTmp2}, s{sRow}, 7
    s_add_u32 s{sTmp}, s{sTmp}, s{sTmp2}
    s_add_u32 s{sTmp}, s{sTmp}, {WS_ST2}
    buffer_store_dwordx2 {vr(S, 2)}, v1, s[16:19], s{sTmp} offen
    s_branch K2_fin''')

def gen_conv(a):
    sD, sW, sE, sLb, sTmp, sTmp2 = 20, 22, 21, 25, 23, 24
    CH = 37888; RO = 33280; CST = 4160
    G = 4; ACC = 68; FB = 100
    D = 4; E = 12; O = 20; O2 = 28
    vF, vG, vT = 116, 117, 118
    a(f'''
    s_load_dwordx4 s[4:7], s[0:1], 32
    s_load_dwordx2 s[28:29], s[0:1], 104
    v_lshrrev_b32 v1, 6, v0
    s_sub_u32 s{sD}, s2, {NG2}
    v_readfirstlane_b32 s{sW}, v1
    s_lshl_b32 s{sD}, s{sD}, 1
    v_and_b32 v2, 255, v0
    v_and_b32 v0, 63, v0
    s_lshr_b32 s{sTmp}, s{sW}, 2
    s_add_u32 s{sD}, s{sD}, s{sTmp}
    s_mul_i32 s{sLb}, s{sTmp}, {CH}
    s_and_b32 s{sE}, s{sW}, 3
    v_lshlrev_b32 v2, 4, v2
    v_subrev_u32 v3, 16, v2
    s_lshl_b32 s{sTmp}, s{sD}, 12
    s_waitcnt lgkmcnt(0)
    s_add_u32 s8, s4, s{sTmp}
    s_addc_u32 s9, s5, 0
    s_mov_b32 s10, 4096
    s_mov_b32 s11, 0x20000
    ''')
    a.srd(12, 6, 7, 1152); a.srd(16, 28, 29, WS_END)
    a.vm = []; a.lg = []
    a.tr(0)
    a.vmem(f'buffer_load_dwordx4 {vr(D, 4)}, v3, s[8:11], 0 offen', 'k')
    a.vmem(f'buffer_load_dwordx4 {vr(D+4, 4)}, v2, s[8:11], 0 offen', 'k')
    a(f'''s_lshl_b32 s{sTmp2}, s{sE}, 10
    s_add_u32 s{sTmp2}, s{sTmp2}, s{sLb}
    s_add_u32 m0, s{sTmp2}, {RO}
    s_add_u32 s{sTmp}, s{sTmp}, {WS_KVR}''')
    a.vmem(f'buffer_load_dwordx4 v2, s[16:19], s{sTmp} offen lds', 'r')
    a(f's_lshl_b32 s{sTmp2}, s{sD}, 1\nv_mov_b32 v1, 0')
    a.vmem(f'buffer_load_ushort v{vT+1}, v1, s[12:15], s{sTmp2} offen', 'r')
    a(f'''
    v_mov_b32 v{ACC}, 0
    v_mov_b32 v{ACC+1}, 0
    v_mov_b32 v{ACC+2}, 0
    v_mov_b32 v{ACC+3}, 0
    v_lshlrev_b32 v1, 4, v0
    v_add_u32 v1, {RO + 4096}, v1
    v_and_b32 v3, 7, v0
    v_mul_u32_u24 v3, {CST}, v3
    v_cmp_gt_u32 vcc, 32, v0
    v_add_u32 v2, s{sLb}, v2
    v_cndmask_b32 v1, v3, v1, vcc
    v_add_u32 v1, s{sLb}, v1''')
    a.lds(f'ds_write_b128 v1, {vr(ACC, 4)}', 'z')
    a(f'''
    v_bfe_u32 v1, v0, 3, 1
    v_lshrrev_b32 v{vT}, 4, v0
    v_add_u32 v1, v1, v{vT}
    v_lshl_add_u32 v{vF}, v1, 4, v3
    s_lshl_b32 s{sTmp2}, s{sE}, 6
    s_add_u32 s{sTmp2}, s{sTmp2}, s{sLb}
    v_add_u32 v{vF}, s{sTmp2}, v{vF}
    v_and_b32 v1, 15, v0
    v_lshlrev_b32 v1, 5, v1
    v_lshlrev_b32 v{vG}, 4, v{vT}
    v_sub_u32 v{vG}, v{vG}, v1
    s_add_u32 s{sTmp2}, s{sTmp2}, {RO + 4064 - 14*256}
    v_add_u32 v{vG}, s{sTmp2}, v{vG}
    ''')
    a.tr(1); a.wait(vm='k'); a.tr(2)
    for i in range(6): a(f'v_mov_b32 v{E+i}, v{D+1+i}')
    for i in range(6): a(f'v_alignbit_b32 v{O+i}, v{D+i+1}, v{D+i}, 16')
    for i in range(6): a(f'v_alignbit_b32 v{O2+i}, v{D+i+2}, v{D+i+1}, 16')
    src = {1: O, 2: E, 3: O2, 4: D+2, 5: O+2, 6: E+2, 7: O2+2, 8: D+4}
    for c in range(1, 9):
        a.lds(f'ds_write_b128 v2, {vr(src[c], 4)} offset:{(c-1)*CST + 16}', 'cw')
    a.wait(vm_all=True, lg_all=True); a.tr(3); a('s_barrier'); a.tr(4)
    def grd(y): a.lds(f'ds_read_b128 {vr(G + 4*(y+1), 4)}, v{vG} offset:{(14-y)*256}', ('g', y))
    def frd(x): a.lds(f'ds_read_b128 {vr(FB + 4*(x%4), 4)}, v{vF} offset:{x*256}', ('f', x))
    frd(0)
    for y in range(14, -2, -2): grd(y)
    frd(1)
    for y in range(13, -2, -2): grd(y)
    frd(2)
    for x in range(16):
        if x + 3 < 16: frd(x + 3)
        for j in range(7, -1, -1):
            if x <= 2*j + 1:
                y = 2*j - x
                a.wait(lg=[('f', x), ('g', y)])
                a(f'v_mfma_f32_16x16x32_bf16 {vr(ACC+4*j, 4)}, {vr(FB + 4*(x%4), 4)}, {vr(G + 4*(y+1), 4)}, {"0" if x == 0 else vr(ACC+4*j, 4)}')
    a.tr(5)
    a(f'''
    v_lshrrev_b32 v1, 2, v0
    v_and_b32 v1, 8, v1
    v_xor_b32 v1, v1, v0
    s_lshl_b32 s{sTmp}, s{sE}, 13
    s_add_u32 s{sTmp}, s{sTmp}, s{sLb}
    v_lshl_add_u32 v1, v1, 4, s{sTmp}
    v_bfe_u32 v2, v0, 1, 4
    v_and_b32 v3, 1, v0
    v_lshlrev_b32 v{vT}, 3, v3
    v_xor_b32 v2, v2, v{vT}
    v_lshl_add_u32 v2, v3, 5, v2
    v_lshrrev_b32 v3, 5, v0
    v_lshl_add_u32 v2, v3, 6, v2
    s_lshl_b32 s{sTmp}, s{sE}, 11
    s_add_u32 s{sTmp}, s{sTmp}, s{sLb}
    v_lshl_add_u32 v2, v2, 4, s{sTmp}
    s_lshl_b32 s{sTmp}, s{sE}, 10
    s_sub_u32 s{sTmp2}, s{sLb}, s{sTmp}
    s_add_u32 s{sTmp2}, s{sTmp2}, {RO + 4080}
    v_lshlrev_b32 v{vT}, 4, v0
    v_sub_u32 v3, s{sTmp2}, v{vT}
    s_barrier''')
    a.tr(6)
    for j in range(8): a.lds(f'ds_write_b128 v1, {vr(ACC+4*j, 4)} offset:{1024*j}', 'aw')
    a.lds(f'ds_read_b128 {vr(FB, 4)}, v3', 'u')
    a.wait(lg_all=True); a.tr(7); a('s_barrier'); a.tr(8)
    for e in range(4):
        for h in range(2): a.lds(f'ds_read_b128 {vr(G + 8*e + 4*h, 4)}, v2 offset:{8192*e + 256*h}', ('p', e))
    U = ACC
    a(f'v_lshlrev_b32 v{vT+1}, 16, v{vT+1}')
    for r in range(8):
        pos = 7 - r
        a(f'v_lshlrev_b32 v{U+r}, 16, v{FB+pos//2}' if pos % 2 == 0 else f'v_and_b32 v{U+r}, 0xffff0000, v{FB+pos//2}')
    for r in range(8): a(f'v_mul_f32 v{U+r}, v{U+r}, v{vT+1}')
    for i in range(4): a(f'v_cvt_pk_bf16_f32 v{U+8+i}, v{U+2*i}, v{U+2*i+1}')
    for i in range(4): a(f'v_lshlrev_b32 v{U+2*i}, 16, v{U+8+i}\nv_and_b32 v{U+2*i+1}, 0xffff0000, v{U+8+i}')
    for e in range(1, 4):
        a.wait(lg=('p', e))
        for r in range(8): a(f'v_add_f32 v{G+r}, v{G+r}, v{G+8*e+r}')
    for i in range(4): a(f'v_cvt_pk_bf16_f32 v{U+8+i}, v{G+2*i}, v{G+2*i+1}')
    for i in range(4): a(f'v_lshlrev_b32 v{G+2*i}, 16, v{U+8+i}\nv_and_b32 v{G+2*i+1}, 0xffff0000, v{U+8+i}')
    for r in range(8): a(f'v_add_f32 v{G+r}, v{G+r}, v{U+r}')
    for i in range(4): a(f'v_cvt_pk_bf16_f32 v{U+8+i}, v{G+2*i}, v{G+2*i+1}')
    a(f'''s_lshl_b32 s{sTmp2}, s{sD}, 12
    s_add_u32 s{sTmp}, s{sTmp}, s{sTmp2}
    s_add_u32 s{sTmp}, s{sTmp}, {WS_ZT}
    buffer_store_dwordx4 {vr(U+8, 4)}, v{vT}, s[16:19], s{sTmp} offen
    s_branch K2_fin''')

def gen_repack4(a):
    sSl, sU, sW, sSrc, sDst, sLds, sTmp, sRb, sC = 20, 21, 22, 23, 24, 25, 26, 27, 30
    a(f'''
    s_load_dwordx2 s[4:5], s[0:1], 80
    s_load_dwordx2 s[28:29], s[0:1], 104
    s_sub_u32 s{sU}, s2, {NG2 + NCV}
    s_and_b32 s{sSl}, s{sU}, 7
    s_lshr_b32 s{sU}, s{sU}, 3
    v_lshrrev_b32 v1, 6, v0
    v_and_b32 v0, 63, v0
    v_readfirstlane_b32 s{sW}, v1
    s_lshl_b32 s{sU}, s{sU}, 3
    s_add_u32 s{sU}, s{sU}, s{sW}
    s_lshl_b32 s{sLds}, s{sW}, 13
    s_waitcnt lgkmcnt(0)''')
    a.srd(8, 4, 5, WBYTES); a.srd(16, 28, 29, WS_END)
    if K3_BYTES[0]:
        a(f'''s_and_b32 s{sTmp}, s{sSl}, 3
        s_mul_i32 s{sTmp}, s{sTmp}, {2*9*73728}
        s_mul_i32 s{sRb}, s{sU}, {216*128}
        s_add_u32 s{sTmp}, s{sTmp}, s{sRb}
        s_add_u32 s{sTmp}, s{sTmp}, {WS_WP3}
        v_lshlrev_b32 v1, 7, v0''')
        for i in range(4):
            a(f'buffer_load_dword v{60+i}, v1, s[16:19], s{sTmp} offen')
            a(f's_add_u32 s{sTmp}, s{sTmp}, {8192 if i < 2 else (216-192)*128}')
        a(f's_cmp_lg_u32 s{sU}, 47\ns_cbranch_scc1 K2_rp_loop')
        touch_code(a, 'k3_kernel', K3_BYTES[0], 34, 1, 64, 'K2_tc')
    a.label('K2_rp_loop')
    a(f'''
    s_mul_i32 s{sRb}, s{sU}, 57
    s_lshr_b32 s{sRb}, s{sRb}, 9
    s_mul_i32 s{sTmp}, s{sRb}, 9
    s_sub_u32 s{sC}, s{sU}, s{sTmp}
    s_mul_i32 s{sSrc}, s{sSl}, 9
    s_add_u32 s{sDst}, s{sSrc}, s{sC}
    s_add_u32 s{sSrc}, s{sSrc}, s{sRb}
    s_mul_i32 s{sSrc}, s{sSrc}, {64*1152}
    s_lshl_b32 s{sTmp}, s{sC}, 7
    s_add_u32 s{sSrc}, s{sSrc}, s{sTmp}
    s_mul_i32 s{sDst}, s{sDst}, 73728
    s_lshl_b32 s{sTmp}, s{sRb}, 11
    s_add_u32 s{sDst}, s{sDst}, s{sTmp}
    s_add_u32 s{sDst}, s{sDst}, {WS_WP4}''')
    a.vm = []; a.lg = []
    gen_repack_unit(a, sSrc, 1152, 8, sDst, sLds)
    a(f'''s_add_u32 s{sU}, s{sU}, 48
    s_cmp_lt_u32 s{sU}, 81
    s_cbranch_scc1 K2_rp_loop
    s_branch K2_fin''')

def gen_k2(stamps=False, trace=False):
    a = Gen(); a.trace = trace
    a(f's_cmp_ge_u32 s2, {NG2+NCV+NRP}\ns_cbranch_scc1 K2_end')
    if stamps: stamp_start(a)
    trace_init(a); trace_wave(a)
    a(f's_cmp_ge_u32 s2, {NG2+NCV}\ns_cbranch_scc1 K2_rp\ns_cmp_ge_u32 s2, {NG2}\ns_cbranch_scc1 K2_cv')
    gen_gemm2(a)
    a.label('K2_cv'); gen_conv(a)
    a.label('K2_rp'); gen_repack4(a)
    a.label('K2_fin')
    if stamps:
        a.tr(10); a('s_waitcnt vmcnt(0)'); a.tr(11)
        trace_dump(a, 28, 1, 8)
        stamp_end(a, 28, 1, vtmp=4)
    a('K2_end:\ns_endpgm')
    return a.text(), 128, K2_LDS
```

```python
from common import *

SPIN_MAX = 200000

def gen_k3(depth=20, stamps=False, trace=False, pre=4, trc=None, sflag='sc1', WLN=16, a_at=5, b_at=10):
    a = Gen(); a.trace = trace
    if trc is not None: a.tr = lambda i: Gen.tr(a, i) if i >= 10 else None
    NB = depth + 2
    V = Regs(1, 256)
    AV = V.alloc('Av', 32, 4)
    ACC = [V.alloc('acc0', 16, 4), V.alloc('acc1', 16, 4)]
    W = V.alloc('w', 4 * NB, 4)
    CS = V.alloc('cs', 4, 4); R = V.alloc('r', 8, 4); T = V.alloc('t', 8, 4)
    AB = V.alloc('ab', 16, 4)
    PA = V.alloc('pa', 32, 4); X1R = V.alloc('x1r', 10, 2)
    ST1 = V.alloc('st1', 4, 4)
    vL16 = V.alloc('l16'); vCS = V.alloc('vcs'); vHw = V.alloc('hw')
    vB = [V.alloc('b0'), V.alloc('b1'), V.alloc('b2'), V.alloc('b3')]
    vWL = V.alloc('wl'); vFl = V.alloc('fl'); vTmp = V.alloc('tmp'); vTmp2 = V.alloc('tmp2')
    nv = V.n
    def opreg(u, rt):
        return ar(16*u + 4*rt, 4) if u < 16 else vr(AV + 16*(u-16) + 4*rt, 4)
    HB = 0; CSB = 73728; STG = CSB + 2304; XB = 90112; WLB = STG + 18432; LDS = 163840
    assert WLB + WLN * 4096 <= LDS
    sSl, sMt, sRot, sW, sG, sCq, sRow = 20, 21, 22, 23, 24, 25, 26
    sCh, sK = 30, 40
    sPh = 50
    sFw, sFr, sPf, sSpin, sWl, sNeed = 55, 56, 57, 58, 59, 53
    sLg = 61
    sLo, sHi = 54, 27
    sSt, sTmp, sTmp2, sX = 60, 64, 65, 66
    a('s_cmp_ge_u32 s2, 256\ns_cbranch_scc1 K3_end')
    if stamps: stamp_start(a)
    trace_init(a); trace_wave(a)
    a(f'''
    s_load_dwordx2 s[28:29], s[0:1], 104
    s_load_dwordx2 s[4:5], s[0:1], 0
    s_load_dwordx2 s[6:7], s[0:1], 88
    s_and_b32 s{sSl}, s2, 3
    s_lshl_b32 s{sSl}, s{sSl}, 1
    s_bfe_u32 s{sTmp}, s2, 0x10003
    s_add_u32 s{sSl}, s{sSl}, s{sTmp}
    s_lshr_b32 s{sMt}, s2, 4
    s_bfe_u32 s{sTmp}, s2, 0x10002
    s_lshl_b32 s{sTmp}, s{sTmp}, 4
    s_add_u32 s{sMt}, s{sMt}, s{sTmp}
    s_mul_i32 s{sTmp}, s{sMt}, 57
    s_lshr_b32 s{sTmp}, s{sTmp}, 9
    s_mul_i32 s{sTmp}, s{sTmp}, 9
    s_sub_u32 s{sRot}, s{sMt}, s{sTmp}
    v_lshrrev_b32 v{T}, 6, v0
    v_and_b32 v0, 63, v0
    v_readfirstlane_b32 s{sW}, v{T}
    v_lshlrev_b32 v{vL16}, 4, v0
    s_mul_i32 s{sTmp}, s{sSl}, {9*73728}
    s_mul_i32 s{sTmp2}, s{sW}, 18432
    s_add_u32 s{sTmp}, s{sTmp}, s{sTmp2}
    s_add_u32 s{sTmp}, s{sTmp}, {WS_WP3}
    s_mul_i32 s{sX}, s{sMt}, 73728
    s_add_u32 s{sX}, s{sX}, s{sTmp2}
    s_add_u32 s{sX}, s{sX}, {WS_X1F}
    s_add_u32 m0, s{sTmp2}, {XB}
    s_mul_i32 s{sCh}, s{sRot}, 73728
    s_add_u32 s{sCh}, s{sCh}, s{sTmp}
    s_mov_b32 s18, {WS_END}
    s_mov_b32 s19, 0x20000
    s_waitcnt lgkmcnt(0)
    s_mov_b32 s16, s28
    s_mov_b32 s17, s29
    ''')
    a.tr(0)
    NST = 324
    NLD = NST - WLN
    def ld(n):
        if n >= NLD: return
        ph, c, u = n // 162, (n % 162) // 18, n % 18
        r = W + 4 * (n % NB)
        if ph == 0:
            if u % 4 == 0 and u: a(f's_add_u32 s{sTmp}, s{sCh+c}, {u*1024}')
            so = f's{sCh+c}' if u < 4 else f's{sTmp}'
            a.vmem(f'buffer_load_dwordx4 {vr(r, 4)}, v{vL16}, s[16:19], {so} offen offset:{(u%4)*1024}', ('w', n))
        else:
            if u == 0: a(f's_add_u32 s{sCh+c}, s{sCh+c}, {WBYTES}')
            if u % 2 == 0: a(f's_add_u32 s{sTmp}, s{sCh+c}, s{sK+u//2}')
            a.vmem(f'buffer_load_dwordx4 {vr(r, 4)}, v{vL16}, s[16:19], s{sTmp} offen offset:{(u%2)*1024}', ('w', n))
    def xdma(i):
        if i % 4 == 0 and i:
            a(f's_add_u32 m0, m0, 4096\ns_add_u32 s{sX}, s{sX}, 4096')
        a.vmem(f'buffer_load_dwordx4 v{vL16}, s[16:19], s{sX} offen offset:{(i%4)*1024} lds', ('x1', i // 6))
    for i in range(6): xdma(i)
    for n in range(pre): ld(n)
    nld = pre
    a('s_barrier')
    for i in range(6, 12): xdma(i)
    a('s_barrier')
    for i in range(12, 18): xdma(i)
    a.srd(8, 4, 5, MAT); a.srd(12, 6, 7, MAT)
    a(f's_mul_i32 s{sTmp2}, s{sRot}, 73728\ns_sub_u32 s{sX}, s{sCh}, s{sTmp2}\ns_mov_b32 s{sTmp2}, s{sRot}')
    for j in range(9):
        if j: a(f's_mul_i32 s{sCh+j}, s{sTmp2}, 73728\ns_add_u32 s{sCh+j}, s{sCh+j}, s{sX}')
        a(f's_lshl_b32 s{sK+j}, s{sTmp2}, 11')
        if j < 8:
            a(f'''s_add_u32 s{sTmp2}, s{sTmp2}, 1
            s_cmp_eq_u32 s{sTmp2}, 9
            s_cselect_b32 s{sTmp2}, 0, s{sTmp2}''')
    SB = [PA + 2*c for c in range(9)]
    a(f'''
    s_lshl_b32 s{sTmp2}, s{sMt}, 6
    v_add_u32 v{T}, s{sTmp2}, v0
    v_lshlrev_b32 v{T}, 3, v{T}
    ''')
    late = []
    for c in range(9):
        late.append([f's_mov_b32 s{sTmp2}, {WS_ST2 + c * 16384}', ('vmem', f'buffer_load_dwordx2 {vr(SB[c], 2)}, v{T}, s[16:19], s{sTmp2} offen', 'stat')])
    def physof(dst, add_reg, add_const):
        s = f's_add_u32 s{dst}, s{sRot}, {add_const}\n'
        if add_reg is not None: s += f's_add_u32 s{dst}, s{dst}, s{add_reg}\n'
        s += f's_cmp_ge_u32 s{dst}, 9\ns_cselect_b32 s{sTmp2}, 9, 0\ns_sub_u32 s{dst}, s{dst}, s{sTmp2}'
        return s
    a(f'''
    v_lshlrev_b32 v{T+1}, 2, v0
    s_mul_i32 s{sSt}, s{sSl}, 2304
    s_add_u32 s{sSt}, s{sSt}, {WS_CS3}''')
    a(physof(sPh, sW, 0)); a(physof(sPh+1, sW, 4)); a(physof(sPh+2, None, 8))
    for i, (pr, lo) in enumerate([(sPh, 0), (sPh+1, 1024), (sPh+2, None)]):
        a(f's_lshl_b32 s{sX}, s{pr}, 8\ns_add_u32 s{sX}, s{sX}, s{sSt}')
        if lo is None: a(f's_mov_b32 m0, {CSB + 2048}')
        else: a(f's_lshl_b32 s{sTmp2}, s{sW}, 8\ns_add_u32 m0, s{sTmp2}, {CSB + lo}')
        a('s_nop 0')
        a.vmem(f'buffer_load_dword v{T+1}, s[16:19], s{sX} offen lds', 'stat')
    a(f's_lshl_b32 s{sLg}, s{sW}, 11\ns_add_u32 s{sLg}, s{sLg}, {STG}\ns_add_u32 s{sLg+1}, s{sLg}, 8192\ns_mov_b32 s{sLg+2}, {STG + 16384}')
    a(f'''
    v_add_u32 v{vB[0]}, {XB}, v{vL16}
    v_add_u32 v{vB[1]}, {XB + 36864}, v{vL16}
    v_add_u32 v{vB[2]}, {HB}, v{vL16}
    v_add_u32 v{vB[3]}, {HB + 36864}, v{vL16}
    s_lshr_b32 s{sTmp2}, s{sW}, 1
    s_lshl_b32 s{sX}, s{sTmp2}, 12
    s_and_b32 s{sTmp2}, s{sW}, 1
    s_lshl_b32 s{sTmp2}, s{sTmp2}, 3
    s_add_u32 s{sX}, s{sX}, s{sTmp2}
    s_add_u32 s{sX}, s{sX}, {HB}
    v_add_u32 v{vHw}, s{sX}, v{vL16}
    s_lshl_b32 s{sX}, s{sW}, 6
    s_add_u32 s{sX}, s{sX}, {CSB}
    v_and_b32 v{T+2}, 48, v0
    v_add_u32 v{vCS}, s{sX}, v{T+2}
    s_mul_i32 s{sX}, s{sMt}, 73728
    s_add_u32 s{sPf}, s{sX}, {WS_PF}
    s_mul_i32 s{sSt}, s{sSl}, {MAT}
    s_add_u32 s{sSt}, s{sSt}, s{sPf}
    s_lshl_b32 s{sX}, s{sW}, 10
    s_add_u32 s{sSt}, s{sSt}, s{sX}
    s_lshl_b32 s{sX}, s{sSl}, 10
    s_add_u32 s{sPf}, s{sPf}, s{sX}
    v_and_b32 v{T+3}, 15, v0
    v_lshlrev_b32 v{T+3}, 2, v{T+3}
    s_lshr_b32 s{sG}, s{sSl}, 2
    s_and_b32 s{sCq}, s{sSl}, 3
    s_lshl_b32 s{sRow}, s{sMt}, 6
    s_lshl_b32 s{sX}, s{sG}, 5
    s_add_u32 s{sRow}, s{sRow}, s{sX}
    s_mul_i32 s{sWl}, s{sW}, {WLN*1024}
    s_add_u32 s{sWl}, s{sWl}, {WLB}
    v_add_u32 v{vWL}, s{sWl}, v{vL16}
    s_lshl_b32 s{sX}, s{sMt}, 9
    s_add_u32 s{sX}, s{sX}, {WS_FL}
    s_lshl_b32 s{sFw}, s{sW}, 7
    s_add_u32 s{sFw}, s{sFw}, s{sX}
    s_lshl_b32 s{sFr}, s{sCq}, 7
    s_add_u32 s{sFr}, s{sFr}, s{sX}
    s_cmp_eq_u32 s{sW}, 3
    s_cselect_b32 s{sNeed}, 8, 4
    s_add_u32 s{sNeed}, s{sNeed}, s{sFr}
    ''')
    def oprd(ph, u):
        ops = []
        for rt in range(4):
            if ph == 0: off = (rt & 1) * 18432 + u * 1024; b = vB[rt >> 1]
            else:
                o = u * 4096 + rt * 1024; b = vB[2 + (o >= 36864)]; off = o - (36864 if o >= 36864 else 0)
            ops.append(('lds', f'ds_read_b128 {opreg(u, rt)}, v{b} offset:{off}', ('op', ph, u)))
        return ops
    def stats_code():
        s0 = SB[0]
        ops = [('waitvm', 'stat')]
        for c in range(1, 9):
            ops.append(f'v_add_f32 v{s0}, v{s0}, v{SB[c]}')
            ops.append(f'v_add_f32 v{s0+1}, v{s0+1}, v{SB[c]+1}')
        ops += [f'v_mul_f32 v{s0}, {fhex(1/576)}, v{s0}',
                f'v_mul_f32 v{s0+1}, {fhex(1/576)}, v{s0+1}',
                f'v_fma_f32 v{s0+1}, -v{s0}, v{s0}, v{s0+1}',
                f'v_max_f32 v{s0+1}, 0, v{s0+1}',
                f'v_cvt_pk_bf16_f32 v{s0+2}, v{s0}, v{s0+1}',
                f'v_and_b32 v{s0+1}, 0xffff0000, v{s0+2}',
                f'v_lshlrev_b32 v{s0}, 16, v{s0+2}',
                f'v_add_f32 v{s0+1}, {fhex(1e-5)}, v{s0+1}',
                f'v_cvt_pk_bf16_f32 v{s0+1}, v{s0+1}, v{s0+1}',
                f'v_lshlrev_b32 v{s0+1}, 16, v{s0+1}',
                f'v_sqrt_f32 v{s0+1}, v{s0+1}',
                f'v_cvt_pk_bf16_f32 v{s0+1}, v{s0+1}, v{s0+1}',
                f'v_lshlrev_b32 v{s0+1}, 16, v{s0+1}',
                f'v_rcp_f32 v{s0+4}, v{s0+1}',
                f'v_sub_f32 v{s0+5}, 0, v{s0}',
                f'v_mul_f32 v{s0+6}, {fhex(GELU_C0)}, v{s0+4}',
                f'v_mul_f32 v{s0+7}, v{s0+4}, v{s0+4}',
                f'v_mul_f32 v{s0+7}, v{s0+7}, v{s0+6}',
                f'v_mul_f32 v{s0+7}, {fhex(0.044715)}, v{s0+7}']
        for rt in range(4):
            for i in range(4):
                ops.append(('lds', f'ds_bpermute_b32 v{AB+4*rt+i}, v{T+3}, v{s0+4+i} offset:{64*rt}', 'ab'))
        return ops
    def gelu4(acc, x, cj):
        k = acc + 4 * x; r = R + 4 * (x & 1); al = AB + 4*x; t = T + 2 * x
        st = [lambda i: f'v_fmac_f32 v{k+i}, v{CS+i}, v{al+1}',
              lambda i: f'v_mul_f32 v{r+i}, v{k+i}, v{k+i}',
              lambda i: f'v_fma_f32 v{r+i}, v{r+i}, v{al+3}, v{al+2}',
              lambda i: f'v_mul_f32 v{r+i}, v{r+i}, v{k+i}',
              lambda i: f'v_exp_f32 v{r+i}, v{r+i}',
              lambda i: f'v_add_f32 v{r+i}, 1.0, v{r+i}',
              lambda i: f'v_rcp_f32 v{r+i}, v{r+i}',
              lambda i: f'v_mul_f32 v{k+i}, v{k+i}, v{r+i}']
        ops = [f(i) for f in st for i in range(4)]
        ops.append(f'v_cvt_pk_bf16_f32 v{t}, v{k}, v{k+1}')
        ops.append(f'v_cvt_pk_bf16_f32 v{t+1}, v{k+2}, v{k+3}')
        o = cj * 8192 + x * 1024
        if o > 65535 - 8:
            ops.append(f'v_add_u32 v{r}, {o}, v{vHw}')
            ops.append(('lds', f'ds_write_b64 v{r}, {vr(t, 2)}', 'hw'))
        else:
            ops.append(('lds', f'ds_write_b64 v{vHw}, {vr(t, 2)} offset:{o}', 'hw'))
        return ops
    def out16(acc, cj):
        ops = [f's_lshl_b32 s{sTmp2}, s{sK+cj}, 2', f's_add_u32 s{sTmp2}, s{sTmp2}, s{sSt}']
        for g in range(2):
            b = acc + 8 * g
            for i in range(8): ops.append(f'v_mul_f32 v{b+i}, v{b+i}, v{AB + 4*(2*g + i//4)}')
            for i in range(4): ops.append(f'v_cvt_pk_bf16_f32 v{T+4*g+i}, v{b+2*i}, v{b+2*i+1}')
            if g == 1: ops.append(f's_add_u32 s{sTmp2}, s{sTmp2}, 4096')
            ops.append(('vmem', f'buffer_store_dwordx4 {vr(T+4*g, 4)}, v{vL16}, s[16:19], s{sTmp2} offen {sflag}', ('store', cj)))
        return ops
    def signal(cj, r):
        return [('waitvm', ('store', cj)), f's_mov_b32 s5, 1\ns_add_u32 s6, s{sFw}, {4*r}\ns_atomic_add s5, s[28:29], s6']
    def poll(areg):
        return [f's_load_dword s4, s[28:29], s{areg} glc']
    def spin(areg):
        l = a.newlabel('K3_sp'); l2 = a.newlabel('K3_ok')
        return [f's_mov_b32 s{sSpin}, 0\n{l}:\ns_cmp_ge_u32 s4, 8\ns_cbranch_scc1 {l2}\ns_add_u32 s{sSpin}, s{sSpin}, 1\ns_cmp_gt_u32 s{sSpin}, {SPIN_MAX}\ns_cbranch_scc1 {l2}\n'
                f's_load_dword s4, s[28:29], s{areg} glc\ns_waitcnt lgkmcnt(0)\ns_branch {l}\n{l2}:']
    RN = [8, 8, 2]
    def ploads(rd, buf):
        n = RN[rd] // 2
        ops = [f's_lshl_b32 s{sTmp2}, s{sPh+rd}, 13', f's_add_u32 s{sTmp2}, s{sTmp2}, s{sPf}']
        if n == 1: ops += [f's_lshl_b32 s{sX}, s{sW}, 2', f's_add_u32 s{sTmp2}, s{sTmp2}, s{sX}']
        mn = {4: 'buffer_load_dwordx4', 1: 'buffer_load_dword'}[n]
        for s in range(8):
            ops.append(('vmem', f'{mn} {vr(buf + n*s, n)}, v{vL16}, s[16:19], s{sTmp2} offen sc1', ('p', rd, s)))
            if s < 7: ops.append(f's_add_u32 s{sTmp2}, s{sTmp2}, {MAT}')
        return ops
    def stage(rd):
        x = [f's_lshl_b32 s{sX}, s{sPh+rd}, 7', f's_mov_b32 m0, s{sLg+rd}', f's_add_u32 s{sX}, s{sX}, s{sXo}',
             ('vmem', f'buffer_load_dwordx4 v{vTmp}, s[8:11], s{sX} offen lds', 'stg')]
        z = [f's_lshl_b32 s{sX}, s{sPh+rd}, 18', f's_add_u32 m0, s{sLg+rd}, 1024', f's_add_u32 s{sX}, s{sX}, s{sZo}',
             ('vmem', f'buffer_load_dwordx4 v{vTmp2}, s[16:19], s{sX} offen lds', 'stg')]
        return [x, z]
    sXo, sZo = 39, 49
    def x1reads():
        ops = [f's_mul_i32 s{sSpin}, s{sG}, 36864', f's_lshr_b32 s{sX}, s{sCq}, 1', f's_lshl_b32 s{sX}, s{sX}, 10', f's_add_u32 s{sSpin}, s{sSpin}, s{sX}',
               f's_and_b32 s{sX}, s{sCq}, 1', f's_lshl_b32 s{sX}, s{sX}, 3', f's_add_u32 s{sSpin}, s{sSpin}, s{sX}']
        for rd in range(3):
            ops += [f's_lshl_b32 s{sX}, s{sPh+rd}, 11', f's_add_u32 s{sX}, s{sX}, s{sSpin}']
            if rd == 2:
                ops += [f's_lshr_b32 s{sTmp2}, s{sW}, 1', f's_mul_i32 s{sTmp2}, s{sTmp2}, 18432', f's_add_u32 s{sX}, s{sX}, s{sTmp2}',
                        f's_and_b32 s{sTmp2}, s{sW}, 1', f's_lshl_b32 s{sTmp2}, s{sTmp2}, 2', f's_add_u32 s{sX}, s{sX}, s{sTmp2}']
            ops.append(f'v_add_u32 v{vTmp}, s{sX}, v{vB[0]}')
            ops.append(('lds', f'ds_read_b64 {vr(X1R + 4*rd, 2)}, v{vTmp}' if rd < 2 else f'ds_read_b32 v{X1R + 8}, v{vTmp}', 'x1r'))
            if rd < 2: ops.append(('lds', f'ds_read_b64 {vr(X1R + 4*rd + 2, 2)}, v{vTmp} offset:18432', 'x1r'))
        ops += [f's_mul_i32 s{sXo}, s{sRow}, 1152', f's_lshl_b32 s{sX}, s{sCq}, 5', f's_add_u32 s{sXo}, s{sXo}, s{sX}',
                f's_lshl_b32 s{sZo}, s{sCq}, 16', f's_lshl_b32 s{sX}, s{sRow}, 1', f's_add_u32 s{sZo}, s{sZo}, s{sX}', f's_add_u32 s{sZo}, s{sZo}, {WS_ZT}',
                f'v_lshrrev_b32 v{vTmp}, 1, v0', f'v_mul_u32_u24 v{vTmp}, 1152, v{vTmp}', f'v_and_b32 v{vTmp2}, 1, v0',
                f'v_lshl_add_u32 v{vTmp}, v{vTmp2}, 4, v{vTmp}', f'v_lshrrev_b32 v{vTmp2}, 2, v0', f'v_lshlrev_b32 v{vTmp2}, 12, v{vTmp2}',
                f'v_and_b32 v{vFl}, 3, v0', f'v_lshl_add_u32 v{vTmp2}, v{vFl}, 4, v{vTmp2}', f'v_and_b32 v{vFl}, 15, v0', f'v_lshlrev_b32 v{vFl}, 3, v{vFl}']
        return ops
    def unp(d, s, i): return f'v_lshlrev_b32 v{d}, 16, v{s+i//2}' if i % 2 == 0 else f'v_and_b32 v{d}, 0xffff0000, v{s+i//2}'
    def cvt(d, r, n): return [f'v_cvt_pk_bf16_f32 v{d+i}, v{r+2*i}, v{r+2*i+1}' for i in range(n//2)]
    def rnd(r, n, tmp): return cvt(tmp, r, n) + [unp(r+i, tmp, i) for i in range(n)]
    XP = [R, R + 4, CS]; SP = [[AB+1, AB+2, AB+3, AB+5], [AB+6, AB+7, AB+9, AB+10], [CS+2, CS+3]]; VO = [AB+11, AB+13, AB+14]
    def pre_ops(rd):
        n = RN[rd]; ops = []
        xr = XP[rd]; zr = PA; S = PA + 4; U = PA + 12; TM = PA + 20; vO = VO[rd]; a1, a2 = PA + 24, PA + 25
        if n == 8: ops += [f's_mov_b32 s{sX}, 0']
        else: ops += [f's_lshr_b32 s{sX}, s{sW}, 1']
        ops += [f'v_and_b32 v{a1}, 15, v0', f'v_lshrrev_b32 v{a2}, 4, v0', f'v_lshlrev_b32 v{a2}, 3, v{a2}',
                f'v_mul_u32_u24 v{vO}, 1152, v{a1}', f'v_add_u32 v{vO}, v{vO}, v{a2}', f'v_lshl_add_u32 v{a1}, v{a1}, 5, v{a2}',
                f's_lshl_b32 s{sSpin}, s{sX}, 9', f's_add_u32 s{sSpin}, s{sSpin}, s{sLg+rd}', f'v_add_u32 v{a1}, s{sSpin}, v{a1}']
        ops.append(('lds', f'ds_read_b64 {vr(xr, 2)}, v{a1}', ('x', rd)))
        if n == 8: ops.append(('lds', f'ds_read_b64 {vr(xr+2, 2)}, v{a1} offset:512', ('x', rd)))
        ops += [f'v_lshrrev_b32 v{a1}, 2, v0', f'v_and_b32 v{a2}, 3, v0', f'v_lshlrev_b32 v{a2}, 3, v{a2}', f'v_lshl_add_u32 v{a1}, v{a1}, 6, v{a2}',
                f's_lshl_b32 s{sSpin}, s{sX}, 5', f's_add_u32 s{sSpin}, s{sSpin}, s{sLg+rd}', f'v_add_u32 v{a1}, s{sSpin}, v{a1}']
        ops.append(('lds', f'ds_read_b64_tr_b16 {vr(zr, 2)}, v{a1} offset:1024', ('z', rd)))
        if n == 8: ops.append(('lds', f'ds_read_b64_tr_b16 {vr(zr+2, 2)}, v{a1} offset:{1024+32}', ('z', rd)))
        ops += [f's_mul_i32 s{sSpin}, s{sX}, {16*1152}', f's_add_u32 s{sSpin}, s{sSpin}, s{sXo}', f'v_add_u32 v{vO}, s{sSpin}, v{vO}',
                f's_lshl_b32 s{sSpin}, s{sPh+rd}, 7', f'v_add_u32 v{vO}, s{sSpin}, v{vO}']
        if n < 8:
            ops += [f's_cmp_eq_u32 s{sX}, 1\ns_cselect_b64 vcc, -1, 0', f'v_cndmask_b32 v{ST1}, v{ST1}, v{ST1+2}, vcc', f'v_cndmask_b32 v{ST1+1}, v{ST1+1}, v{ST1+3}, vcc']
        st = lambda i: ST1 + 2*(i//4)
        ops.append(('wait', ('x', rd)))
        if n == 2:
            ops += [('wait', ('z', rd)), f's_bitcmp1_b32 s{sW}, 0\ns_cselect_b64 vcc, -1, 0\ns_cselect_b32 s{sSpin}, 4, 0', f'v_cndmask_b32 v{xr}, v{xr}, v{xr+1}, vcc',
                    f'v_cndmask_b32 v{zr}, v{zr}, v{zr+1}, vcc', f'v_add_u32 v{vO}, s{sSpin}, v{vO}']
        ops += [unp(S+i, xr, i) for i in range(n)]
        ops += [f'v_sub_f32 v{S+i}, v{S+i}, v{st(i)}' for i in range(n)] + rnd(S, n, TM)
        ops += [f'v_mul_f32 v{S+i}, v{S+i}, v{st(i)+1}' for i in range(n)] + rnd(S, n, TM)
        ops.append(('wait', ('z', rd)))
        ops += [unp(U+i, zr, i) for i in range(n)] + [f'v_mul_f32 v{S+i}, v{S+i}, v{U+i}' for i in range(n)]
        ops += [f'v_cvt_pk_bf16_f32 v{SP[rd][i]}, v{S+2*i}, v{S+2*i+1}' for i in range(n//2)]
        return ops
    def cost(op):
        if not isinstance(op, str): return 0 if op[0] in ('wait', 'waitvm') else 1
        if op.startswith('v_exp') or op.startswith('v_rcp') or op.startswith('v_sqrt'): return 2
        return 1
    def emit(op):
        if isinstance(op, str): a(op)
        elif op[0] == 'wait': a.wait(lg=op[1])
        elif op[0] == 'waitvm': a.wait(vm=op[1])
        elif op[0] == 'lds': a.lds(op[1], op[2])
        elif op[0] == 'vmem': a.vmem(op[1], op[2])
        elif op[0] == 'bar':
            a.wait(lg_all=True); a('s_barrier')
        elif op[0] == 'barvm':
            a.wait(vm=op[1]); a('s_barrier')
    F = [[[] for m in range(4)] for n in range(NST)]
    def spread(ops, g0, g1):
        wts = [(0.55 if g % 4 == 3 else 1.0) for g in range(g0, g1)]
        tw = sum(wts); tot = sum(cost(o) for o in ops)
        cum = 0; gi = 0; acc_w = wts[0]
        for o in ops:
            while gi < len(wts) - 1 and (cum + cost(o) * 0.5) / max(tot, 1) > acc_w / tw:
                gi += 1; acc_w += wts[gi]
            g = g0 + gi
            F[g // 4][g % 4].append(o)
            cum += cost(o)
    a.tr(1)
    a.wait(vm=('x1', 0)); a('s_barrier')
    a.tr(2)
    for u in range(3):
        for op in oprd(0, u): emit(op)
    for i, l in enumerate(late): F[i // 3][i % 3] += l
    for u in range(3, 18):
        n = u - 3
        if u % 6 == 0: F[n][0].insert(0, ('barvm', ('x1', u // 6)))
        for m, o in enumerate(oprd(0, u)): F[n][m].append(o)
    spread(x1reads(), 4*9+1, 4*12)
    spread(stats_code(), 4*12, 4*17)
    F[17][0] += [('bar',), ('lds', f'ds_read_b128 {vr(CS, 4)}, v{vCS} offset:0', ('cs', 0))]
    for gc in range(17):
        n0 = 18 * (gc + 1)
        acc = ACC[gc % 2]
        if gc < 9:
            gs = [gelu4(acc, x, gc) for x in range(4)]
            E = [('wait', [('cs', gc), 'ab'])] + sum([g[:4] for g in gs], [])
            if gc < 8: E.append(('lds', f'ds_read_b128 {vr(CS, 4)}, v{vCS} offset:{(gc+1)*256}', ('cs', gc + 1)))
            for x in range(4): E += gs[x][4:]
            if gc == 8:
                F[n0][0] += [('bar',)] + oprd(1, 14) + oprd(1, 15)
                spread(E, 4*n0 + 2, 4*(n0 + 14))
                F[n0+13][3] += [('bar',)] + oprd(1, 16) + oprd(1, 17)
            else:
                spread(E, 4*n0 + 2, 4*(n0 + 18))
        else:
            spread(out16(acc, gc - 9), 4*n0 + 2, 4*(n0 + 5))
    F[144][0].insert(0, ('bar',))
    for u in range(14):
        for m, o in enumerate(oprd(1, u)): F[144 + u + 1][m].append(o)
    P2 = 162
    slow = []
    for i in range(WLN):
        u = 18 - WLN + i
        slow.append([f's_add_u32 s{sX}, s{sCh+8}, s{sK+u//2}', f's_add_u32 m0, s{sWl}, {1024*i}', f's_add_u32 s{sX}, s{sX}, {WBYTES + (u%2)*1024}',
                     ('vmem', f'buffer_load_dwordx4 v{vL16}, s[16:19], s{sX} offen lds', 'wl')])
    st_ = stage(0) + stage(1) + stage(2) + [[f's_lshl_b32 s{sX}, s{sRow}, 3', f's_add_u32 s{sX}, s{sX}, {WS_ST1}',
           ('vmem', f'buffer_load_dwordx2 {vr(ST1, 2)}, v{vFl}, s[16:19], s{sX} offen', 'stg'),
           ('vmem', f'buffer_load_dwordx2 {vr(ST1+2, 2)}, v{vFl}, s[16:19], s{sX} offen offset:128', 'stg')]]
    for i, x in enumerate(st_): slow.insert(min(len(slow), 3*i + 1), x)
    for i, x in enumerate(slow): F[22 + (i * 118) // len(slow)][3] += x
    def wreg(n):
        return W + 4 * (n % NB) if n < NLD + 4 else W + 4 * ((NLD - 2 + (n - NLD + 2) % 6) % NB)
    for n in range(NLD, NST):
        F[n-4][1].append(('lds', f'ds_read_b128 {vr(wreg(n), 4)}, v{vWL} offset:{(n-NLD)*1024}', ('wl', n)))
    busy = sorted({(wreg(n) - W) // 4 for n in range(NLD - 2, NST)})
    free = [i for i in range(NB) if i not in busy]
    runs = [i for i in range(NB - 7) if all((i + k) in free for k in range(8))]
    PB = W + 4 * runs[0]
    PD = AV
    for rd in range(3): spread(pre_ops(rd), 4*(P2 + 18*(2+rd) + 6), 4*(P2 + 18*(2+rd) + 18))
    F[P2+18*5+2][1] += signal(3, 0)
    F[P2+18*6+10][1] += poll(sFr)
    F[P2+18*7+a_at][0] += ['s_waitcnt lgkmcnt(0)'] + spin(sFr)
    spread(ploads(0, PA), 4*(P2+18*7+a_at)+1, 4*(P2+18*7+a_at+3))
    F[P2+18*7+14][1] += signal(6, 1)
    F[NST-1][0] += poll(sNeed)
    for c in range(18):
        if trc is None:
            if c in (1, 9, 10, 17): a.tr({1: 3, 9: 4, 10: 5, 17: 6}[c])
        elif trc <= c < trc + 10: Gen.tr(a, c - trc)
        for u in range(18):
            n = 18 * c + u
            cnt = 0
            while nld < min(n + depth + 1, NLD) and cnt < 2:
                ld(nld); nld += 1; cnt += 1
            if n >= NLD: a.wait(lg=('wl', n))
            elif n >= 18:
                if n % 2 == 0: a.wait(vm=('w', n + 1))
            else: a.wait(vm=('w', n))
            if c in (0, 9): a.wait(lg=('op', c // 9, u))
            r = wreg(n); acc = ACC[c % 2]
            for rt in range(4):
                cin = '0' if u == 0 else vr(acc + 4*rt, 4)
                a(f'v_mfma_f32_16x16x32_bf16 {vr(acc + 4*rt, 4)}, {vr(r, 4)}, {opreg(u, rt)}, {cin}')
                for op in F[n][rt]: emit(op)
    a.tr(7)
    def pk(op, d, s0, s1, n): return [f'{op} {vr(d+2*i, 2)}, {vr(s0+2*i, 2)}, {vr(s1+2*i, 2)}' for i in range(n//2)]
    def accb(d, s, n): return [f'v_dot2c_f32_bf16 v{d+i}, s{sLo if i % 2 == 0 else sHi}, v{s+i//2}' for i in range(n)]
    def fin_ops(rd, buf):
        n = RN[rd]; h = n // 2; B = ACC[0]; U = ACC[0] + 8; x1r = X1R + 4 * rd; TM = AV + 16; O = AV + 20 + 4 * rd; vO = VO[rd]
        ops = [('waitvm', ('p', rd, 0))] + [unp(B+i, buf, i) for i in range(n)]
        for s in range(1, 8):
            ops += [('waitvm', ('p', rd, s))] + accb(B, buf + h*s, n)
        ops += rnd(B, n, TM) + accb(B, x1r, n) + rnd(B, n, TM)
        ops += [f'v_mul_f32 v{U+i}, {fhex(-1.4426950408889634)}, v{B+i}' for i in range(n)]
        ops += [f'v_exp_f32 v{U+i}, v{U+i}' for i in range(n)] + [f'v_add_f32 v{U+i}, 1.0, v{U+i}' for i in range(n)] + [f'v_rcp_f32 v{U+i}, v{U+i}' for i in range(n)]
        ops += pk('v_pk_mul_f32', B, B, U, n) + [unp(U+i, SP[rd][i//2], i % 2) for i in range(n)] + rnd(B, n, TM) + pk('v_pk_mul_f32', B, B, U, n) + rnd(B, n, TM) + accb(B, XP[rd], n)
        ops += cvt(O, B, n)
        ops.append(('vmem', f'buffer_store_dwordx2 {vr(O, 2)}, v{vO}, s[12:15], 0 offen' if n > 2 else f'buffer_store_dword v{O}, v{vO}, s[12:15], 0 offen', 'o'))
        if n == 8: ops += [f's_movk_i32 s{sTmp}, {16*1152}', ('vmem', f'buffer_store_dwordx2 {vr(O+2, 2)}, v{vO}, s[12:15], s{sTmp} offen', 'o')]
        return ops
    fa = fin_ops(0, PA)
    def run(seq):
        for op in seq: emit(op)
    run(out16(ACC[1], 8) + [f's_mov_b32 s{sLo}, 0x3f80', f's_mov_b32 s{sHi}, 0x3f800000'] + signal(7, 2) + [f's_add_u32 s7, s{sFr}, 12'])
    half = len(fa) // 3
    run(fa[:half])
    a('s_waitcnt lgkmcnt(0)\ns_cmp_ge_u32 s4, 8\ns_cbranch_scc0 K3_p2')
    vm0 = list(a.vm)
    run(ploads(1, PB) + fa[half:-3] + signal(8, 3))
    a('s_branch K3_join\nK3_p2:')
    a.vm = vm0
    run(fa[half:-3] + signal(8, 3) + spin(sNeed) + ploads(1, PB))
    a('K3_join:')
    a.vm = [('p', 1, s) for s in range(8)]
    a.tr(8)
    run(poll(7) + fa[-3:])
    a('s_waitcnt lgkmcnt(0)\ns_cmp_ge_u32 s4, 8\ns_cbranch_scc0 K3_q2')
    vm0 = list(a.vm)
    fb = fin_ops(1, PB)
    run(ploads(2, PD) + fb[:-3])
    a('s_branch K3_join2\nK3_q2:')
    a.vm = vm0
    run(poll(7) + fb[:-3] + ['s_waitcnt lgkmcnt(0)'] + spin(7) + ploads(2, PD))
    a('K3_join2:')
    a.vm = [('p', 2, s) for s in range(8)]
    a.tr(9)
    run(fb[-3:] + fin_ops(2, PD))
    if stamps:
        a.tr(10); a('s_waitcnt vmcnt(0)'); a.tr(11)
        trace_dump(a, 28, 2, W + 8)
        stamp_end(a, 28, 2, vtmp=W)
    a('K3_end:\ns_endpgm')
    return a.text(), nv, LDS
```

```python
from common import *
SPIN_MAX = 200000
sW = 23
SC = 'sc1'

def bf16r(d, s): return [f'v_cvt_pk_bf16_f32 v{d}, v{s}, v{s}', f'v_lshlrev_b32 v{d}, 16, v{d}']
def unp(d, s, i): return f'v_lshlrev_b32 v{d}, 16, v{s+i//2}' if i % 2 == 0 else f'v_and_b32 v{d}, 0xffff0000, v{s+i//2}'

def spin(a, base, areg, target, first_loaded=False, vt=254):
    l = a.newlabel('SP'); l2 = a.newlabel('OK')
    if not first_loaded: a(f's_load_dword s4, s[{base}:{base+1}], {areg}')
    a(f'''s_mov_b32 s3, 0
    v_mov_b32 v{vt}, {areg}
    s_waitcnt lgkmcnt(0)
    {l}:
    s_cmp_ge_u32 s4, {target}
    s_cbranch_scc1 {l2}
    s_add_u32 s3, s3, 1
    s_cmp_gt_u32 s3, {SPIN_MAX}
    s_cbranch_scc1 {l2}
    global_load_dword v{vt+1}, v{vt}, s[{base}:{base+1}] sc1
    s_waitcnt vmcnt(0)
    v_readfirstlane_b32 s4, v{vt+1}
    s_nop 0
    s_branch {l}
    {l2}:''')
    a.lg = []
def check_go(a): spin(a, 100, '0', 4)
def sig(a, areg, val=1): a(f's_mov_b32 s5, {val}\ns_atomic_add s5, s[28:29], {areg}')

class Sched:
    def __init__(self, a): self.a = a; self.q = []
    def add(self, ops): self.q += ops
    def emit(self, op):
        a = self.a
        if isinstance(op, str): a(op)
        elif op[0] == 'wait': a.wait(lg=op[1])
        elif op[0] == 'waitvm': a.wait(vm=op[1])
        elif op[0] == 'lds': a.lds(op[1], op[2])
        elif op[0] == 'vmem': a.vmem(op[1], op[2])
    def fill(self, units):
        while self.q and units > 0:
            op = self.q.pop(0); self.emit(op)
            if isinstance(op, str): units -= 2 if op[:5] in ('v_exp', 'v_rcp', 'v_sqr') else 1
            elif op[0] in ('lds',): units -= 1
            elif op[0] == 'vmem': units -= 2
    def flush(self): self.fill(1 << 30)

CSL = 147456
W2B = 73728

def gen_G(a, opt):
    V = Regs(4, 256)
    X = V.alloc('x', 16, 4); WF = V.alloc('wf', 32, 4); ACC = V.alloc('acc', 32, 4)
    SUM = V.alloc('sum', 8, 4); GR = V.alloc('gr', 8, 4); CSA = V.alloc('csa', 8, 4); ONE = V.alloc('one', 4, 4)
    CSR = V.alloc('csr', 32, 4); TT = V.alloc('tt', 32, 4); PKD = SUM; XN = CSR
    ST = V.alloc('st', 16, 4)
    KC = V.alloc('kc', 4, 2)
    vXs = V.alloc('xs', 2); vWs = V.alloc('ws', 2); vXr = V.alloc('xr', 2); vTr = V.alloc('tr', 8); vHa = V.alloc('ha', 8)
    vCs = V.alloc('cs', 2); vL16 = V.alloc('l16'); vDg = V.alloc('dg'); vRow = V.alloc('row'); vW2 = V.alloc('w2')
    assert TT + 32 <= 200
    sMt, sC, sKb, sT, sT2, sXo, sWo, sG32, sW2, sW1 = 20, 21, 22, 24, 25, 26, 27, 30, 31, 32
    sSh = 34
    sMk = 40
    sXl, sWl = 56, 57
    a(f'''
    s_load_dwordx2 s[8:9], s[0:1], 0
    s_load_dwordx4 s[60:63], s[0:1], 56
    s_and_b32 s{sMt}, s2, 7
    s_lshl_b32 s{sMt}, s{sMt}, 1
    s_bfe_u32 s{sT}, s2, 0x10003
    s_add_u32 s{sMt}, s{sMt}, s{sT}
    s_lshr_b32 s{sC}, s2, 4
    s_add_u32 s{sKb}, s{sC}, s{sMt}
    s_mul_i32 s{sT}, s{sKb}, 57
    s_lshr_b32 s{sT}, s{sT}, 9
    s_mul_i32 s{sT}, s{sT}, 9
    s_sub_u32 s{sKb}, s{sKb}, s{sT}
    s_lshl_b32 s{sG32}, s{sMt}, 2
    s_add_u32 s{sG32}, s{sG32}, s{sW}
    s_mul_i32 s{sXo}, s{sG32}, {32*1152}
    s_mul_i32 s{sWo}, s{sW}, {16*1152}
    s_lshl_b32 s{sT}, s{sC}, 7
    s_add_u32 s{sWo}, s{sWo}, s{sT}
    s_lshl_b32 s{sXl}, s{sW}, 12
    s_add_u32 s{sXl}, s{sXl}, 8192
    s_lshl_b32 s{sWl}, s{sW}, 11
    s_and_b32 s{sW2}, s{sW}, 2
    s_and_b32 s{sW1}, s{sW}, 1
    v_lshrrev_b32 v1, 3, v0
    v_mul_u32_u24 v1, 1152, v1
    v_and_b32 v2, 7, v0
    v_lshrrev_b32 v3, 4, v0
    v_xor_b32 v{vXs}, v2, v3
    v_lshl_add_u32 v{vXs}, v{vXs}, 4, v1
    v_xor_b32 v{vXs+1}, 64, v{vXs}
    v_lshlrev_b32 v{vW2}, 1, v3
    v_xor_b32 v{vW2}, v2, v{vW2}
    v_lshl_add_u32 v{vW2}, v{vW2}, 4, v1
    v_and_b32 v3, 1, v3
    v_lshlrev_b32 v3, 1, v3
    v_xor_b32 v{vWs}, v2, v3
    v_lshl_add_u32 v{vWs}, v{vWs}, 4, v1
    v_xor_b32 v{vWs+1}, 64, v{vWs}
    s_mov_b32 s10, {MAT}
    s_mov_b32 s11, 0x20000
    s_mov_b32 s14, {576*1152}
    s_mov_b32 s15, 0x20000
    s_waitcnt lgkmcnt(0)
    s_mov_b32 s12, s60
    s_mov_b32 s13, s61
    ''')
    a.tr(0)
    def issue(t):
        sl = (t % 3) * 24576
        ops = [f's_lshl_b32 s{sT}, s{sKb}, 7\ns_add_u32 s{sT}, s{sT}, s{sXo}\ns_mul_i32 s{sT2}, s{sKb}, {64*1152}\ns_add_u32 s{sT2}, s{sT2}, s{sWo}']
        for i in range(4):
            ops.append(f's_add_u32 m0, s{sXl}, {sl + i*1024}' + (f'\ns_add_u32 s{sT}, s{sT}, {8*1152}' if i else '\ns_nop 0'))
            ops.append(('vmem', f'buffer_load_dwordx4 v{vXs + i%2}, s[8:11], s{sT} offen lds', ('st', t)))
        for j in range(2):
            ops.append(f's_add_u32 m0, s{sWl}, {sl + j*1024}' + (f'\ns_add_u32 s{sT2}, s{sT2}, {8*1152}' if j else '\ns_nop 0'))
            ops.append(('vmem', f'buffer_load_dwordx4 v{vWs + j}, s[12:15], s{sT2} offen lds', ('st', t)))
        ops.append(f's_add_u32 s{sKb}, s{sKb}, 1\ns_cmp_eq_u32 s{sKb}, 9\ns_cselect_b32 s{sKb}, 0, s{sKb}')
        return ops
    S = Sched(a)
    S.add(issue(0)); S.flush()
    if opt.get('gtouch', 0):
        gt = opt['gtouch']
        a(f's_lshr_b32 s{sT}, s2, 3\ns_lshl_b32 s{sT}, s{sT}, 2\ns_add_u32 s{sT}, s{sT}, s{sW}\ns_mul_i32 s{sT}, s{sT}, {gt*128}\nv_min_u32 v1, {gt-1}, v0\nv_lshlrev_b32 v1, 7, v1')
        a.vmem(f'buffer_load_dword v{TT}, v1, s[12:15], s{sT} offen', 'touch')
    a('s_barrier')
    S.add(issue(1)); S.flush()
    a(f'''
    v_lshlrev_b32 v{vL16}, 4, v0
    v_and_b32 v1, 15, v0
    v_lshrrev_b32 v2, 4, v0
    s_lshl_b32 s{sT}, s{sW1}, 2
    v_add_u32 v3, s{sT}, v2
    v_lshrrev_b32 v{vXr}, 1, v1
    v_xor_b32 v3, v3, v{vXr}
    v_lshlrev_b32 v3, 4, v3
    v_lshl_add_u32 v3, v1, 7, v3
    v_add_u32 v{vXr}, s{sXl}, v3
    v_xor_b32 v{vXr+1}, 64, v{vXr}
    s_lshl_b32 s{sT}, s{sG32}, 5
    v_add_u32 v{vRow}, s{sT}, v1
    v_lshrrev_b32 v3, 2, v1
    v_lshl_add_u32 v{vDg}, v3, 4, v1
    v_lshlrev_b32 v{vDg}, 2, v{vDg}
    v_lshl_add_u32 v{vTr}, v2, 3, v3
    v_lshlrev_b32 v{vTr}, 7, v{vTr}
    v_lshrrev_b32 v3, 1, v3
    v_and_b32 v{vTr+1}, 1, v2
    v_lshl_add_u32 v3, v{vTr+1}, 1, v3
    v_xor_b32 v3, s{sW2}, v3
    v_lshl_add_u32 v{vTr}, v3, 5, v{vTr}
    v_and_b32 v3, 3, v0
    v_lshl_add_u32 v{vTr}, v3, 3, v{vTr}
    s_lshl_b32 s{sT}, s{sW1}, 12
    v_add_u32 v{vTr}, s{sT}, v{vTr}
    s_lshl_b32 s{sT}, s{sW2}, 6
    s_add_u32 s{sT}, s{sT}, {CSL}
    v_lshl_add_u32 v{vCs}, v2, 4, s{sT}
    v_xor_b32 v{vCs+1}, 128, v{vCs}
    ''')
    for j in range(1, 4): a(f'v_xor_b32 v{vTr+j}, {32*j}, v{vTr}')
    for j in range(4): a(f'v_xor_b32 v{vTr+4+j}, 4096, v{vTr+j}')
    for i in range(4): a(f'v_mov_b32 v{ONE+i}, 0x3f803f80')
    a(f'v_mov_b32 v{KC}, {fhex(GELU_C0)}\nv_mov_b32 v{KC+1}, {fhex(GELU_C0)}\nv_mov_b32 v{KC+2}, {fhex(GELU_C1)}\nv_mov_b32 v{KC+3}, {fhex(GELU_C1)}')
    a(f'v_and_b32 v3, 48, v0\ns_movk_i32 s33, 0x800')
    for j in range(4):
        a(f'''s_xor_b32 s{sT}, s{sW2}, {j}
        s_lshl_b32 s{sT2}, s{sC}, 2
        s_add_u32 s{sT}, s{sT}, s{sT2}
        s_lshr_b32 s58, s{sT}, 1
        s_lshl_b32 s58, s58, 10
        s_add_u32 s58, s58, {WS_HF + (j & 1) * 8}
        s_mul_i32 s{sT}, s{sT}, 57
        s_lshr_b32 s{sT}, s{sT}, 9
        s_lshr_b32 s{sT2}, s{sT}, 1
        s_add_u32 s{sT2}, s{sT2}, 1
        s_bitcmp1_b32 s{sT}, 0
        s_cselect_b32 s{sT}, -1, 1
        s_mul_i32 s{sSh+j}, s{sT}, s{sT2}''')
        for rt in range(2):
            a(f'''s_add_u32 s{sT}, s{sSh+j}, {16*rt}
            v_add_u32 v1, s{sT}, v{vRow}
            v_cmp_gt_u32 s[{sMk+2*(4*rt+j)}:{sMk+2*(4*rt+j)+1}], s33, v1
            v_and_b32 v1, 0x7ff, v1
            v_lshrrev_b32 v2, 4, v1
            v_mul_u32_u24 v2, 18432, v2
            v_and_b32 v1, 15, v1
            v_add_u32 v1, v1, v3
            v_lshl_add_u32 v1, v1, 4, v2
            v_add_u32 v{vHa+4*rt+j}, s58, v1''')
    def reads(k):
        t, uu = k // 2, k % 2; sl = (t % 3) * 24576; ops = []
        for rt in range(2): ops.append(('lds', f'ds_read_b128 {vr(X + 8*uu + 4*rt, 4)}, v{vXr+uu} offset:{sl + rt*2048}', ('r', k)))
        for j in range(4):
            for h in range(2): ops.append(('lds', f'ds_read_b64_tr_b16 {vr(WF + 16*uu + 4*j + 2*h, 2)}, v{vTr+4*uu+j} offset:{sl + h*512}', ('r', k)))
        return ops
    def mf(d, A, B, first): return f'v_mfma_f32_16x16x32_bf16 {vr(d, 4)}, {vr(A, 4)}, {vr(B, 4)}, {"0" if first else vr(d, 4)}'
    def mfmas(k):
        uu = k % 2; st = []; mm = []
        for rt in range(2):
            x = X + 8*uu + 4*rt
            st += [mf(SUM+4*rt, ONE, x, k == 0), mf(GR+4*rt, x, x, k == 0)]
        if uu == 0: st += [mf(CSA+4*j, WF + 4*j, ONE, k == 0) for j in range(2)]
        for j in range(4):
            for rt in range(2): mm.append(mf(ACC + 16*rt + 4*j, WF + 16*uu + 4*j, X + 8*uu + 4*rt, k == 0))
        return st + mm
    def stats_ops():
        ops = [f'v_and_b32 v1, 3, v0', f'v_cmp_eq_u32 vcc, 1, v1', f'v_cmp_eq_u32 s[58:59], 2, v1', f'v_cmp_eq_u32 s[64:65], 3, v1']
        for rt in range(2):
            g = GR + 4*rt
            ops += [f'v_cndmask_b32 v{g}, v{g}, v{g+1}, vcc', f'v_cndmask_b32 v{g}, v{g}, v{g+2}, s[58:59]', f'v_cndmask_b32 v{g}, v{g}, v{g+3}, s[64:65]',
                    ('lds', f'ds_bpermute_b32 v{g+1}, v{vDg}, v{g}', 'gr')]
        ch = [[], []]
        for rt in range(2):
            m, var, m1, r1, t0, t1, al, be = [ST + 8*rt + i for i in range(8)]
            def dn(dst, v): return bf16r(dst, v) + [f'v_add_f32 v{dst}, {fhex(1e-5)}, v{dst}'] + bf16r(dst, dst) + [f'v_sqrt_f32 v{dst}, v{dst}'] + bf16r(dst, dst) + [f'v_rcp_f32 v{dst}, v{dst}']
            o = [f'v_mul_f32 v{m}, {fhex(1/576)}, v{SUM+4*rt}'] + bf16r(m1, m) + [('wait', 'gr'), f'v_mul_f32 v{var}, {fhex(1/576)}, v{GR+4*rt+1}',
                 f'v_fma_f32 v{var}, -v{m}, v{m}, v{var}', f'v_max_f32 v{var}, 0, v{var}'] + dn(r1, var) + [f'v_sub_f32 v{t0}, v{m}, v{m1}', f'v_mul_f32 v{t0}, v{t0}, v{r1}',
                 f'v_mul_f32 v{var}, v{var}, v{r1}', f'v_mul_f32 v{var}, v{var}, v{r1}'] + bf16r(t0, t0) + dn(t1, var) + [f'v_fma_f32 v{t0}, v{m1}, v{r1}, v{t0}',
                 f'v_mul_f32 v{al}, v{r1}, v{t1}', f'v_mul_f32 v{be}, v{t0}, v{t1}', f'v_sub_f32 v{be}, 0, v{be}']
            ch[rt] = o
        for x, y in zip(ch[0], ch[1]): ops += [x, y]
        return ops
    a.tr(1)
    for t in range(10):
        if t < 9: a.wait(vm=('st', t), lg_all=True)
        else: a.wait(lg_all=True)
        a('s_barrier')
        if t in (0, 4): a.tr(2 + t // 4)
        if t < 9:
            S.add(reads(2*t))
            if t == 0: S.flush()
            if t + 2 < 9: S.add(issue(t + 2))
        else:
            for par in range(2):
                for j in range(4): S.add([('lds', f'ds_read_b128 {vr(CSR + 16*par + 4*j, 4)}, v{vCs + j//2} offset:{par*256 + (j&1)*64}', 'cs')])
        if t > 0:
            ms = mfmas(2*t - 1)
            for i, m in enumerate(ms):
                a(m)
                if t == 9 and i == 5: S.add(stats_ops())
                S.fill(2 if t == 9 else 3)
        if t < 9:
            S.flush()
            S.add(reads(2*t + 1))
            a.wait(lg=('r', 2*t))
            ms = mfmas(2*t)
            for i, m in enumerate(ms):
                a(m); S.fill(2)
            S.flush()
            if t == 8:
                a(f's_lshl_b32 s{sT}, s{sW1}, 8\nv_add_u32 v1, s{sT}, v{vCs}')
                for j in range(2): a.lds(f'ds_write_b128 v1, {vr(CSA+4*j, 4)} offset:{64*j}', 'csw')
    S.flush()
    a.tr(4)
    a('s_load_dword s4, s[100:101], 0')
    a.wait(lg='cs')
    def pk(op, d, s0, s1, s2=None, sel=''): return f'{op} {vr(d, 2)}, {vr(s0, 2)}, {vr(s1, 2)}' + (f', {vr(s2, 2)}' if s2 is not None else '') + sel
    for i in range(8): a(pk('v_pk_add_f32', CSR + 2*i, CSR + 2*i, CSR + 16 + 2*i))
    a(f'''v_lshlrev_b32 v1, 3, v{vRow}
    s_mov_b32 s{sT}, {WS_ST1}
    s_cmp_eq_u32 s{sC}, 0
    s_cselect_b32 s{sT}, s{sT}, {WS_END}''')
    for rt in range(2): a.vmem(f'buffer_store_dwordx2 {vr(ST+8*rt+2, 2)}, v1, s[16:19], s{sT} offen offset:{128*rt} {SC}', 'hs')
    for rt in range(2):
        al = ST + 8*rt + 6; A_ = ACC + 16*rt; T_ = TT + 16*rt
        for i in range(8): a(pk('v_pk_mul_f32', T_+2*i, CSR+2*i, al, sel=' op_sel:[0,1] op_sel_hi:[1,1]'))
        for i in range(8): a(pk('v_pk_fma_f32', A_+2*i, A_+2*i, al, T_+2*i, sel=' op_sel_hi:[1,0,1]'))
        for i in range(8): a(pk('v_pk_mul_f32', T_+2*i, A_+2*i, A_+2*i))
        for i in range(8): a(pk('v_pk_fma_f32', T_+2*i, T_+2*i, KC+2, KC))
        for i in range(8): a(pk('v_pk_mul_f32', T_+2*i, T_+2*i, A_+2*i))
        for i in range(16): a(f'v_exp_f32 v{T_+i}, v{T_+i}')
        for i in range(8): a(f'v_pk_add_f32 {vr(T_+2*i, 2)}, {vr(T_+2*i, 2)}, 1.0 op_sel_hi:[1,0]')
        for i in range(16): a(f'v_rcp_f32 v{T_+i}, v{T_+i}')
        for i in range(8): a(pk('v_pk_mul_f32', A_+2*i, A_+2*i, T_+2*i))
        P_ = PKD + 8*rt
        for i in range(8): a(f'v_cvt_pk_bf16_f32 v{P_+i}, v{A_+2*i}, v{A_+2*i+1}')
        for i in range(8):
            mk = sMk + 2*(4*rt + i//2)
            a(f'v_cndmask_b32 v{P_+i}, 0, v{P_+i}, s[{mk}:{mk+1}]')
        for p in range(2):
            l1 = a.newlabel('HS'); l2 = a.newlabel('HE')
            a(f's_cmp_eq_u32 s{sSh+2*p}, s{sSh+2*p+1}\ns_cbranch_scc0 {l1}')
            a(f'buffer_store_dwordx4 {vr(P_+4*p, 4)}, v{vHa+4*rt+2*p}, s[16:19], 0 offen {SC}\ns_branch {l2}\n{l1}:')
            a(f'buffer_store_dwordx2 {vr(P_+4*p, 2)}, v{vHa+4*rt+2*p}, s[16:19], 0 offen {SC}')
            a(f'buffer_store_dwordx2 {vr(P_+4*p+2, 2)}, v{vHa+4*rt+2*p+1}, s[16:19], 0 offen {SC}\n{l2}:')
            a.vm.append('hs')
    a.tr(5)
    a(f's_mov_b32 s12, s62\ns_mov_b32 s13, s63\ns_mov_b32 s{sKb}, s{sC}')
    a(f's_lshl_b32 s{sT}, s{sC}, 7\ns_add_u32 s{sT}, s{sT}, s{sXo}')
    XBL = 49152
    for i in range(4):
        a(f's_add_u32 m0, s{sXl}, {XBL - 8192 + i*1024}' + (f'\ns_add_u32 s{sT}, s{sT}, {8*1152}' if i else '\ns_nop 0'))
        a.vmem(f'buffer_load_dwordx4 v{vXs + i%2}, s[8:11], s{sT} offen lds', 'xb')
    def w2issue(t):
        a(f's_mul_i32 s{sT2}, s{sKb}, {64*1152}\ns_add_u32 s{sT2}, s{sT2}, s{sWo}')
        for j in range(2):
            a(f's_add_u32 m0, s{sWl}, {W2B + t*8192 + j*1024}' + (f'\ns_add_u32 s{sT2}, s{sT2}, {8*1152}' if j else '\ns_nop 0'))
            a.vmem(f'buffer_load_dwordx4 v{vW2}, s[12:15], s{sT2} offen lds', 'w2')
        a(f's_add_u32 s{sKb}, s{sKb}, 1\ns_cmp_eq_u32 s{sKb}, 9\ns_cselect_b32 s{sKb}, 0, s{sKb}')
    NE = opt.get('w2early', 2)
    for t in range(NE): w2issue(t)
    spin(a, 100, '0', 4, first_loaded=True)
    a.wait(vm='hs')
    for d in (0, 1, 63):
        a(f's_add_u32 s{sT}, s{sG32}, {d}\ns_and_b32 s{sT}, s{sT}, 63\ns_lshl_b32 s{58+(d&3)%3}, s{sT}, 7\ns_add_u32 s{58+(d&3)%3}, s{58+(d&3)%3}, {FL_H}' if False else
          f's_add_u32 s{sT}, s{sG32}, {d}\ns_and_b32 s{sT}, s{sT}, 63\ns_lshl_b32 s{sT}, s{sT}, 7\ns_add_u32 s{40+(0,1,63).index(d)}, s{sT}, {FL_H}')
        sig(a, f's{40+(0,1,63).index(d)}')
    a.tr(6)
    for t in range(NE, 9): w2issue(t)
    gen_Gconv_load(a, X)
    a(f'''v_and_b32 v1, 15, v0
    v_lshrrev_b32 v2, 5, v0
    v_lshrrev_b32 v3, 1, v1
    v_xor_b32 v2, v2, v3
    v_lshlrev_b32 v2, 4, v2
    v_lshl_add_u32 v2, v1, 7, v2
    v_bfe_u32 v3, v0, 4, 1
    v_lshl_add_u32 v2, v3, 3, v2
    s_add_u32 s{sT}, s{sXl}, {XBL - 8192}
    v_add_u32 v2, s{sT}, v2
    v_lshrrev_b32 v1, 2, v0
    v_lshlrev_b32 v3, 7, v1
    v_bfe_u32 v1, v1, 1, 2
    v_lshl_add_u32 v3, v1, 5, v3
    v_and_b32 v1, 3, v0
    v_lshl_add_u32 v3, v1, 3, v3
    v_add_u32 v{vTr}, {W2B}, v3''')
    for j in range(1, 4): a(f'v_xor_b32 v{vTr+j}, {32*j}, v{vTr}')
    for j in range(4): a(f'v_add_u32 v{vTr+4+j}, 36864, v{vTr+j}')
    a.wait(vm='xb')
    for t in range(4):
        a(f'v_xor_b32 v1, {32*t}, v2')
        for rt in range(2): a.lds(f'ds_read_b64 {vr(XN + 8*rt + 2*t, 2)}, v1 offset:{2048*rt}', 'xn')
    a.wait(lg='xn')
    for rt in range(2):
        m1 = ST + 8*rt + 2; T_ = TT + 16*rt; N_ = XN + 8*rt
        for i in range(16): a(unp(T_+i, N_, i))
        for i in range(8): a(pk('v_pk_add_f32', T_+2*i, T_+2*i, m1, sel=' op_sel_hi:[1,0] neg_lo:[0,1] neg_hi:[0,1]'))
        for i in range(8): a(f'v_cvt_pk_bf16_f32 v{N_+i}, v{T_+2*i}, v{T_+2*i+1}')
        for i in range(16): a(unp(T_+i, N_, i))
        for i in range(8): a(pk('v_pk_mul_f32', T_+2*i, T_+2*i, m1, sel=' op_sel:[0,1] op_sel_hi:[1,1]'))
        for i in range(8): a(f'v_cvt_pk_bf16_f32 v{N_+i}, v{T_+2*i}, v{T_+2*i+1}')
    gen_Gconv_build(a, X, WF)
    a(f's_mul_i32 s{sXo}, s{sG32}, {2*18432}\ns_mov_b32 s{sKb}, s{sC}')
    spin(a, 28, 's40', 27)
    a.tr(7)
    def hld(k):
        ops = []
        if k % 2 == 0:
            ops.append(f's_lshl_b32 s{sT}, s{sKb}, 11\ns_add_u32 s{sT}, s{sT}, s{sXo}\ns_add_u32 s{sT2}, s{sT}, 18432\ns_add_u32 s{sKb}, s{sKb}, 1\ns_cmp_eq_u32 s{sKb}, 9\ns_cselect_b32 s{sKb}, 0, s{sKb}')
        for rt in range(2):
            ops.append(('vmem', f'buffer_load_dwordx4 {ar(8*k + 4*rt, 4)}, v{vL16}, s[16:19], s{sT if rt == 0 else sT2} offen offset:{(k%2)*1024} {SC}', ('h', k)))
        return ops
    assert WS_HF == 0
    LA = opt.get('hla', 5)
    for k in range(LA): S.add(hld(k))
    S.flush()
    a.wait(vm='w2'); a('s_barrier')
    def w2rd(k):
        ops = []
        for j in range(4):
            for h in range(2):
                o = k * 4096 + h * 2048; hi = o >= 36864
                ops.append(('lds', f'ds_read_b64_tr_b16 {vr(WF + 16*(k%2) + 4*j + 2*h, 2)}, v{vTr + 4*hi + j} offset:{o - 36864*hi}', ('r2', k)))
        return ops
    S.add(w2rd(0)); S.flush()
    for k in range(18):
        if k + 1 < 18: S.add(w2rd(k + 1))
        if k + LA < 18: S.add(hld(k + LA))
        a.wait(vm=('h', k), lg=('r2', k))
        for j in range(4):
            for rt in range(2):
                d = ACC + 16*rt + 4*j
                a(f'v_mfma_f32_16x16x32_bf16 {vr(d, 4)}, {vr(WF + 16*(k%2) + 4*j, 4)}, {ar(8*k + 4*rt, 4)}, {"0" if k == 0 else vr(d, 4)}')
                S.fill(2)
        S.flush()
    a.tr(8)
    a(f's_mov_b32 s6, 0x3f80\ns_mov_b32 s7, 0x3f800000\ns_lshl_b32 s{sT}, s{sC}, 11\ns_add_u32 s{sT}, s{sT}, s{sXo}\ns_add_u32 s{sT}, s{sT}, {WS_X1F}')
    for rt in range(2):
        A_ = ACC + 16*rt; P_ = PKD + 8*rt; N_ = XN + 8*rt
        for i in range(8): a(f'v_cvt_pk_bf16_f32 v{P_+i}, v{A_+2*i}, v{A_+2*i+1}')
        for i in range(16): a(unp(A_+i, P_, i))
        for i in range(16): a(f'v_dot2c_f32_bf16 v{A_+i}, s{6 + i%2}, v{N_+i//2}')
        for i in range(8): a(f'v_cvt_pk_bf16_f32 v{P_+i}, v{A_+2*i}, v{A_+2*i+1}')
        if rt: a(f's_add_u32 s{sT}, s{sT}, 18432')
        for p in range(2): a.vmem(f'buffer_store_dwordx4 {vr(P_+4*p, 4)}, v{vL16}, s[16:19], s{sT} offen offset:{1024*p} {SC}', 'xs')
    SS = TT
    for rt in range(2):
        a(f'v_mov_b32 v{SS+2*rt}, 0\nv_mov_b32 v{SS+2*rt+1}, 0')
    for i in range(8):
        for rt in range(2):
            a(f'v_dot2c_f32_bf16 v{SS+2*rt}, v{ONE}, v{PKD+8*rt+i}\nv_dot2c_f32_bf16 v{SS+2*rt+1}, v{PKD+8*rt+i}, v{PKD+8*rt+i}')
    a(f'''v_permlane16_swap_b32 v{SS}, v{SS+2}
    v_permlane16_swap_b32 v{SS+1}, v{SS+3}
    v_add_f32 v{SS}, v{SS}, v{SS+2}
    v_add_f32 v{SS+1}, v{SS+1}, v{SS+3}
    v_mov_b32 v{SS+2}, v{SS}
    v_mov_b32 v{SS+3}, v{SS+1}
    v_permlane32_swap_b32 v{SS}, v{SS+2}
    v_permlane32_swap_b32 v{SS+1}, v{SS+3}
    v_add_f32 v{SS}, v{SS}, v{SS+2}
    v_add_f32 v{SS+1}, v{SS+1}, v{SS+3}
    v_and_b32 v1, 31, v0
    v_lshlrev_b32 v1, 3, v1
    s_lshl_b32 s{sT}, s{sC}, 14
    s_lshl_b32 s{sT2}, s{sG32}, 8
    s_add_u32 s{sT}, s{sT}, s{sT2}
    s_add_u32 s{sT}, s{sT}, {WS_ST2}''')
    a.vmem(f'buffer_store_dwordx2 {vr(SS, 2)}, v1, s[16:19], s{sT} offen {SC}', 'xs')
    a(f's_lshr_b32 s{sT}, s{sG32}, 1\ns_lshl_b32 s{sT}, s{sT}, 7\ns_add_u32 s40, s{sT}, {FL_X}')
    return dict(sigX='s40')

CH = 37888; RO = 33280; CST = 4160

def conv_srd(a, sD):
    a(f'''s_lshl_b32 s24, s{sD}, 12
    s_add_u32 s8, s60, s24
    s_addc_u32 s9, s61, 0
    s_mov_b32 s10, 4096
    s_mov_b32 s11, 0x20000
    s_mov_b32 s12, s62
    s_mov_b32 s13, s63
    s_mov_b32 s14, 1152
    s_mov_b32 s15, 0x20000''')
def build_ops(D, E, vA, off):
    O = E + 6; O2 = E + 12
    ops = [f'v_mov_b32 v{E+i}, v{D+1+i}' for i in range(6)] + [f'v_alignbit_b32 v{O+i}, v{D+i+1}, v{D+i}, 16' for i in range(6)] + [f'v_alignbit_b32 v{O2+i}, v{D+i+2}, v{D+i+1}, 16' for i in range(6)]
    src = {1: O, 2: E, 3: O2, 4: D+2, 5: O+2, 6: E+2, 7: O2+2, 8: D+4}
    ops += [('lds', f'ds_write_b128 v{vA}, {vr(src[c], 4)} offset:{(c-1)*CST + 16 + off}', 'cw') for c in (4, 8, 2, 6, 1, 5, 3, 7)]
    return ops
def zero_fill(a, Z, sLb):
    a(f'''v_mov_b32 v{Z}, 0
    v_mov_b32 v{Z+1}, 0
    v_mov_b32 v{Z+2}, 0
    v_mov_b32 v{Z+3}, 0
    v_lshlrev_b32 v1, 4, v0
    v_add_u32 v1, {RO + 4096}, v1
    v_and_b32 v3, 7, v0
    v_mul_u32_u24 v3, {CST}, v3
    v_cmp_gt_u32 vcc, 32, v0
    s_nop 1
    v_cndmask_b32 v1, v3, v1, vcc
    v_add_u32 v1, {sLb}, v1''')
    a.lds(f'ds_write_b128 v1, {vr(Z, 4)}', 'z')

def gen_Gconv_load(a, RAW):
    a(f'''s_load_dwordx4 s[60:63], s[0:1], 32
    s_add_u32 s66, s2, 432
    s_lshl_b32 s24, s{sW}, 10
    v_lshl_add_u32 v252, v0, 4, s24
    v_subrev_u32 v3, 16, v252
    s_waitcnt lgkmcnt(0)''')
    a.lg = []
    conv_srd(a, 66)
    a.vmem(f'buffer_load_dwordx4 {vr(RAW, 4)}, v3, s[8:11], 0 offen', 'ck')
    a.vmem(f'buffer_load_dwordx4 {vr(RAW+4, 4)}, v252, s[8:11], 0 offen', 'ck')
    a(f's_lshl_b32 s25, s66, 1')
    a.vmem(f'buffer_load_ushort v253, off, s[12:15], s25', 'ck')
def gen_Gconv_build(a, RAW, E):
    S = Sched(a)
    zero_fill(a, E, 0)
    a.wait(vm='ck')
    S.add(build_ops(RAW, E + 4, 252, 0)); S.flush()
def gen_Gconv_r(a):
    a(f's_add_u32 s27, s2, 432\ns_lshr_b32 s54, s27, 6\ns_lshl_b32 s54, s54, 7\ns_add_u32 s54, s54, {FL_KV}')
    spin(a, 28, 's54', 32)
    a(f's_lshl_b32 s54, s{sW}, 10\ns_add_u32 m0, s54, {RO}\ns_lshl_b32 s54, s27, 12\ns_add_u32 s54, s54, {WS_KVR}')
    a.vmem(f'buffer_load_dwordx4 v252, s[16:19], s54 offen {SC} lds', 'cr')
def gen_Gconv_main(a):
    ACC = 36; FB = 4; vF, vG, vT = 20, 21, 22; PS = 156
    a(f'''
    v_and_b32 v3, 7, v0
    v_mul_u32_u24 v3, {CST}, v3
    v_bfe_u32 v1, v0, 3, 1
    v_lshrrev_b32 v{vT}, 4, v0
    v_add_u32 v1, v1, v{vT}
    v_lshl_add_u32 v{vF}, v1, 4, v3
    s_lshl_b32 s54, s{sW}, 6
    v_add_u32 v{vF}, s54, v{vF}
    v_and_b32 v1, 15, v0
    v_lshlrev_b32 v1, 5, v1
    v_lshlrev_b32 v{vG}, 4, v{vT}
    v_sub_u32 v{vG}, v{vG}, v1
    s_add_u32 s54, s54, {RO + 4064 - 14*256}
    v_add_u32 v{vG}, s54, v{vG}''')
    def grd(y): a.lds(f'ds_read_b128 {ar(4*(y+1), 4)}, v{vG} offset:{(14-y)*256}', ('g', y))
    def frd(x): a.lds(f'ds_read_b128 {vr(FB + 4*(x%4), 4)}, v{vF} offset:{x*256}', ('f', x))
    frd(0)
    for y in range(14, -2, -2): grd(y)
    frd(1)
    for y in range(13, -2, -2): grd(y)
    frd(2)
    S = Sched(a)
    S.add(f'''v_lshrrev_b32 v1, 2, v0
    v_and_b32 v1, 8, v1
    v_xor_b32 v1, v1, v0
    s_lshl_b32 s54, s{sW}, 13
    s_add_u32 s54, s54, {CH}
    v_lshl_add_u32 v1, v1, 4, s54
    v_bfe_u32 v2, v0, 1, 4
    v_and_b32 v3, 1, v0
    v_lshlrev_b32 v{vT}, 3, v3
    v_xor_b32 v2, v2, v{vT}
    v_lshl_add_u32 v2, v3, 5, v2
    v_lshrrev_b32 v3, 5, v0
    v_lshl_add_u32 v2, v3, 6, v2
    s_lshl_b32 s54, s{sW}, 11
    s_add_u32 s54, s54, {CH}
    v_lshl_add_u32 v2, v2, 4, s54
    v_sub_u32 v3, {RO + 4080}, v252'''.split('\n'))
    U = 24
    S.add([('lds', f'ds_read_b128 {vr(U+8, 4)}, v3', 'u'), f'v_lshlrev_b32 v253, 16, v253', ('wait', 'u')] + [unp(U+r, U+8, 7 - r) for r in range(8)] + [f'v_mul_f32 v{U+r}, v{U+r}, v253' for r in range(8)])
    S.add([f'v_cvt_pk_bf16_f32 v{U+8+i}, v{U+2*i}, v{U+2*i+1}' for i in range(4)] + [unp(U+i, U+8, i) for i in range(8)])
    for x in range(16):
        if x + 3 < 16: frd(x + 3)
        if x >= 4 and x % 2 == 0:
            j = x // 2 - 2
            S.add([('lds', f'ds_write_b128 v1, {vr(ACC+4*j, 4)} offset:{1024*j}', 'aw')])
        for j in range(7, -1, -1):
            if x <= 2*j + 1:
                y = 2*j - x
                a.wait(lg=[('f', x), ('g', y)])
                a(f'v_mfma_f32_16x16x32_bf16 {vr(ACC+4*j, 4)}, {vr(FB + 4*(x%4), 4)}, {ar(4*(y+1), 4)}, {"0" if x == 0 else vr(ACC+4*j, 4)}')
                if x >= 2: S.fill(2)
    S.flush()
    for j in (6, 7): a.lds(f'ds_write_b128 v1, {vr(ACC+4*j, 4)} offset:{1024*j}', 'aw')
    a.wait(lg_all=True); a('s_barrier')
    G = PS
    for e in range(4):
        for h in range(2): a.lds(f'ds_read_b128 {vr(G + 8*e + 4*h, 4)}, v2 offset:{8192*e + 256*h}', ('p', e))
    for e in range(1, 4):
        a.wait(lg=('p', e))
        for r in range(4): a(f'v_pk_add_f32 {vr(G+2*r, 2)}, {vr(G+2*r, 2)}, {vr(G+8*e+2*r, 2)}')
    for i in range(4): a(f'v_cvt_pk_bf16_f32 v{U+8+i}, v{G+2*i}, v{G+2*i+1}')
    for i in range(8): a(unp(G+i, U+8, i))
    for r in range(4): a(f'v_pk_add_f32 {vr(G+2*r, 2)}, {vr(G+2*r, 2)}, {vr(U+2*r, 2)}')
    for i in range(4): a(f'v_cvt_pk_bf16_f32 v{G+8+i}, v{G+2*i}, v{G+2*i+1}')
    a(f's_lshl_b32 s54, s27, 12\ns_add_u32 s54, s54, {WS_ZT}')
    a(f'buffer_store_dwordx4 {vr(G+8, 4)}, v252, s[16:19], s54 offen {SC}')
    a(f's_bfe_u32 s27, s27, 0x20004\ns_lshl_b32 s27, s27, 7\ns_add_u32 s27, s27, {FL_Z}\ns_mov_b32 s54, 1')

def rp_addr(a, vS3, vS4, vR, vL):
    a(f'''
    v_lshrrev_b32 v1, 3, v0
    v_and_b32 v2, 6, v1
    v_and_b32 v3, 7, v0
    v_xor_b32 v2, v2, v3
    v_lshlrev_b32 v2, 4, v2
    v_mul_u32_u24 v{vS3}, 9216, v1
    v_add_u32 v{vS3}, v{vS3}, v2
    v_mul_u32_u24 v{vS4}, 1152, v1
    v_add_u32 v{vS4}, v{vS4}, v2
    v_lshrrev_b32 v1, 2, v0
    v_lshlrev_b32 v3, 7, v1
    v_bfe_u32 v2, v1, 1, 2
    v_lshl_add_u32 v3, v2, 5, v3
    v_and_b32 v2, 3, v0
    v_lshl_add_u32 v3, v2, 3, v3
    s_mul_i32 s24, s{sW}, {CH}
    v_add_u32 v{vR}, s24, v3
    v_xor_b32 v{vR+1}, 32, v{vR}
    v_xor_b32 v{vR+2}, 64, v{vR}
    v_xor_b32 v{vR+3}, 96, v{vR}
    v_lshlrev_b32 v{vL}, 4, v0''')
def rp_decode(a, which, sU, sSrc, sDst, sFl, sCs=None):
    a(f'''s_mul_i32 s24, s{sU}, 3237
    s_lshr_b32 s24, s24, 18
    s_mul_i32 s25, s24, 81
    s_sub_u32 s25, s{sU}, s25
    s_mul_i32 s26, s25, 57
    s_lshr_b32 s26, s26, 9
    s_mul_i32 s27, s26, 9
    s_sub_u32 s25, s25, s27
    s_lshl_b32 s{sFl}, s24, 7
    s_add_u32 s{sFl}, s{sFl}, {FL_W3 if which == 3 else FL_W4}
    s_mul_i32 s27, s24, 9
    s_add_u32 s{sDst}, s27, s25''')
    if which == 3:
        a(f'''s_mul_i32 s{sCs}, s26, {4608*4}
        s_lshl_b32 s24, s{sDst}, 8
        s_add_u32 s{sCs}, s{sCs}, s24
        s_add_u32 s{sCs}, s{sCs}, {WS_CS3}
        s_lshl_b32 s{sSrc}, s{sDst}, 7
        s_mul_i32 s24, s26, {64*9216}
        s_add_u32 s{sSrc}, s{sSrc}, s24''')
    else:
        a(f'''s_add_u32 s{sSrc}, s27, s26
        s_mul_i32 s{sSrc}, s{sSrc}, {64*1152}
        s_lshl_b32 s24, s25, 7
        s_add_u32 s{sSrc}, s{sSrc}, s24''')
    a(f'''s_mul_i32 s{sDst}, s{sDst}, 73728
    s_lshl_b32 s24, s26, 11
    s_add_u32 s{sDst}, s{sDst}, s24
    s_add_u32 s{sDst}, s{sDst}, {WS_WP3 if which == 3 else WS_WP4}''')
def rp_issue(a, which, srd, vS, sSrc, lds_off, tag):
    pitch = 9216 if which == 3 else 1152
    a(f's_mul_i32 s24, s{sW}, {CH}\ns_add_u32 m0, s24, {lds_off}\ns_nop 0')
    for i in range(8):
        a.vmem(f'buffer_load_dwordx4 v{vS}, s[{srd}:{srd+3}], s{sSrc} offen lds', tag)
        if i < 7: a(f's_add_u32 m0, m0, 1024\ns_add_u32 s{sSrc}, s{sSrc}, {8*pitch}')
def rp_finish(a, which, D, vR, vL, sDst, lds_off, tag, stag, ONE=None, CA=None, sCs=None):
    a.wait(vm=tag)
    for uu in range(2):
        for t in range(4):
            for h in range(2):
                a.lds(f'ds_read_b64_tr_b16 {vr(D + 16*uu + 4*t + 2*h, 2)}, v{vR+t} offset:{lds_off + uu*4096 + h*2048}', ('rr', uu, t))
    for t in range(4):
        if t: a(f's_add_u32 s{sDst}, s{sDst}, 18432')
        for uu in range(2):
            a.wait(lg=('rr', uu, t))
            a.vmem(f'buffer_store_dwordx4 {vr(D + 16*uu + 4*t, 4)}, v{vL}, s[16:19], s{sDst} offen offset:{uu*1024} {SC}', stag)
            if which == 3:
                a(f'v_mfma_f32_16x16x32_bf16 {vr(CA+4*t, 4)}, {vr(ONE, 4)}, {vr(D + 16*uu + 4*t, 4)}, {"0" if uu == 0 else vr(CA+4*t, 4)}')
    if which == 3:
        a(f'''v_lshrrev_b32 v1, 4, v0
        v_cmp_eq_u32 vcc, 1, v1
        v_cmp_eq_u32 s[24:25], 2, v1
        v_cmp_eq_u32 s[26:27], 3, v1
        v_lshlrev_b32 v2, 2, v0
        v_cndmask_b32 v{CA}, v{CA}, v{CA+4}, vcc
        v_cndmask_b32 v{CA}, v{CA}, v{CA+8}, s[24:25]
        v_cndmask_b32 v{CA}, v{CA}, v{CA+12}, s[26:27]''')
        a.vmem(f'buffer_store_dword v{CA}, v2, s[16:19], s{sCs} offen {SC}', stag)

def gen_S(a, opt):
    sGw, sD, sQ, sRm = 20, 21, 22, 30
    sU = 31; sSrc = [32, 33, 34]; sDst = [35, 36, 37]; sFl = [38, 39, 40]; sCs = [41, 42, 43]; sKvF = 44; sLb = 45; sKo = 46
    vS3, vS4, vL = 250, 251, 252; vR = 244
    KRAW = 210
    ONE = 4; CA = 8; D = 24
    a(f'''
    s_load_dwordx4 s[48:51], s[0:1], 8
    s_load_dwordx2 s[52:53], s[0:1], 24
    s_load_dwordx4 s[60:63], s[0:1], 32
    s_load_dwordx4 s[56:59], s[0:1], 56
    s_load_dwordx4 s[64:67], s[0:1], 72
    s_sub_u32 s{sGw}, s2, 144
    s_lshl_b32 s{sGw}, s{sGw}, 2
    s_add_u32 s{sGw}, s{sGw}, s{sW}
    s_mul_i32 s{sQ}, s{sGw}, 4682
    s_lshr_b32 s{sQ}, s{sQ}, 16
    s_mul_i32 s24, s{sQ}, 14
    s_sub_u32 s{sRm}, s{sGw}, s24
    s_mul_i32 s{sLb}, s{sW}, {CH}
    ''')
    rp_addr(a, vS3, vS4, vR, vL)
    for i in range(4): a(f'v_mov_b32 v{ONE+i}, 0x3f803f80')
    a('s_waitcnt lgkmcnt(0)')
    if a.trace: a(f's_mov_b32 s54, s66\ns_mov_b32 s55, s67\ns_mov_b32 s67, s{sW}')
    else: a(f's_mov_b32 s54, s66\ns_mov_b32 s55, s67')
    a.tr(0)
    lz = a.newlabel('NZ')
    a(f's_cmp_lg_u32 s2, 255\ns_cbranch_scc1 {lz}')
    for i in range(4): a(f'v_mov_b32 v{CA+i}, 0')
    a(f's_lshl_b32 s24, s{sW}, 13\ns_add_u32 s24, s24, {WS_FL}')
    for i in range(8):
        if i == 4: a('s_add_u32 s24, s24, 4096')
        a(f'buffer_store_dwordx4 {vr(CA, 4)}, v{vL}, s[16:19], s24 offen offset:{(i%4)*1024} {SC}')
    a(f's_waitcnt vmcnt(0)\ns_mov_b32 s5, 1\ns_atomic_add s5, s[100:101], 0\n{lz}:')
    def touch(lo, hi, nl, first):
        a.srd(8, lo, hi, 576*1152)
        a(f's_lshr_b32 s24, s2, 3\ns_sub_u32 s24, s24, 18\ns_lshl_b32 s24, s24, 2\ns_add_u32 s24, s24, s{sW}\ns_mul_i32 s24, s24, {nl*128}\ns_add_u32 s24, s24, {first*128}\nv_lshlrev_b32 v1, 7, v0')
        for i in range((nl + 63) // 64):
            if (i + 1) * 64 > nl: a(f'v_min_u32 v1, {(nl - 1 - i*64)*128}, v1')
            a.vmem(f'buffer_load_dword v{253}, v1, s[8:11], s24 offen', 'touch')
            a('s_add_u32 s24, s24, 8192')
    gt = opt.get('gtouch', 0)
    if opt.get('w1touch', 0): touch(56, 57, (5184 - 72*gt + 55) // 56, 72*gt)
    for i in range(opt.get('sdelay', 0)): a('s_sleep 32')
    a.srd(12, 64, 65, WBYTES)
    lnk = a.newlabel('NOKV'); lj = a.newlabel('S1J')
    a(f's_cmp_ge_u32 s{sRm}, 9\ns_cbranch_scc1 {lnk}')
    vm0 = list(a.vm)
    KR = 56; VR_ = 100; CF = 132; CU = 148; KC = 180; O = 24; P = 40; vK, vKm, vWr = 204, 205, 206
    a(f'''
    v_lshrrev_b32 v1, 3, v0
    v_and_b32 v2, 7, v0
    s_lshl_b32 s24, s{sQ}, 3
    v_add_u32 v3, s24, v1
    v_mul_u32_u24 v{vK}, {8*1152}, v3
    v_lshl_add_u32 v{vK}, v2, 4, v{vK}
    s_lshl_b32 s24, s{sRm}, 7
    v_add_u32 v{vK}, s24, v{vK}
    v_subrev_u32 v{vKm}, 3456, v{vK}
    v_lshlrev_b32 v3, 6, v2
    s_add_u32 s{sKvF}, s24, {FL_KV}
    s_lshl_b32 s25, s{sRm}, 9''')
    a.srd(8, 48, 49, MAT)
    for i in range(3): a.vmem(f'buffer_load_dwordx4 {vr(KR+4*i, 4)}, v{vKm}, s[8:11], 0 offen offset:{1152*i}', 'k')
    for i in range(8):
        if i % 3 == 0: a(f's_mov_b32 s24, {1152*i}')
        a.vmem(f'buffer_load_dwordx4 {vr(KR+12+4*i, 4)}, v{vK}, s[8:11], s24 offen offset:{1152*(i%3)}', 'k')
    a('s_mov_b32 s8, s50\ns_mov_b32 s9, s51')
    for i in range(8):
        if i % 3 == 0: a(f's_mov_b32 s24, {1152*i}')
        a.vmem(f'buffer_load_dwordx4 {vr(VR_+4*i, 4)}, v{vK}, s[8:11], s24 offen offset:{1152*(i%3)}', 'k')
    a(f's_mov_b32 s8, s52\ns_mov_b32 s9, s53\ns_mov_b32 s10, {576*8}')
    for i in range(4): a.vmem(f'buffer_load_dwordx4 {vr(CF+4*i, 4)}, v3, s[8:11], s25 offen offset:{16*i}', 'k')
    a(f's_mul_i32 s{sU}, s{sQ}, 9\ns_add_u32 s{sU}, s{sU}, s{sRm}')
    rp_decode(a, 3, sU, sSrc[0], sDst[0], sFl[0], sCs[0])
    rp_issue(a, 3, 12, vS3, sSrc[0], 8192, 'rpA')
    a(f'''v_sub_u32 v1, 7, v1
    v_xor_b32 v1, v1, v2
    v_lshlrev_b32 v1, 4, v1
    v_lshl_add_u32 v{vWr}, v2, 10, v1
    v_add_u32 v{vWr}, s{sLb}, v{vWr}''')
    a.tr(1); a.wait(vm='k'); a.tr(2)
    for ch in range(8):
        for j in range(4): a(unp(CU + 8*(ch//2) + 2*j + ch%2, CF + 2*ch, j))
    def pk(op, d, s0, s1, s2=None): return f'{op} {vr(d, 2)}, {vr(s0, 2)}, {vr(s1, 2)}' + (f', {vr(s2, 2)}' if s2 is not None else '')
    for cp in range(4):
        for i in range(11):
            for e in range(2): a(unp(KC + 2*i + e, KR + 4*i + cp, e))
        c = CU + 8*cp
        for t in range(8): a(pk('v_pk_mul_f32', O+2*t, KC+2*t, c+6))
        for j in (2, 1, 0):
            for t in range(8): a(pk('v_pk_fma_f32', O+2*t, KC+2*(t+3-j), c+2*j, O+2*t))
        for t in range(8):
            for e in range(2): a(unp(KC + 2*t + e, VR_ + 4*t + cp, e))
        for t in range(8): a(pk('v_pk_mul_f32', O+2*t, O+2*t, KC+2*t))
        for e in range(2):
            pp = P + 8*(cp%2) + 4*e
            for i in range(4): a(f'v_cvt_pk_bf16_f32 v{pp+i}, v{O+2*(7-2*i)+e}, v{O+2*(6-2*i)+e}')
            a.lds(f'ds_write_b128 v{vWr}, {vr(pp, 4)} offset:{(2*cp+e)*128}', 'kw')
    a(f'''v_add_u32 v1, s{sLb}, v{vL}
    v_lshrrev_b32 v2, 3, v0
    v_lshlrev_b32 v2, 12, v2
    v_and_b32 v3, 7, v0
    v_lshl_add_u32 v2, v3, 4, v2
    s_lshl_b32 s24, s{sRm}, 18
    s_sub_u32 s25, 31, s{sQ}
    s_lshl_b32 s25, s25, 7
    s_add_u32 s24, s24, s25
    s_add_u32 s24, s24, {WS_KVR}''')
    for i in range(8):
        a(f'v_xor_b32 v3, {16*i}, v1')
        a.lds(f'ds_read_b128 {vr(KR+4*i, 4)}, v3 offset:{1024*i}', ('kr', i))
    for i in range(8):
        a.wait(lg=('kr', i))
        a.vmem(f'buffer_store_dwordx4 {vr(KR+4*i, 4)}, v2, s[16:19], s24 offen {SC}', 'ks')
        if i < 7: a(f's_add_u32 s24, s24, {8*4096}')
    a.tr(3)
    rp_finish(a, 3, D, vR, vL, sDst[0], 8192, 'rpA', 'rs', ONE, CA, sCs[0])
    check_go(a)
    a.wait(vm='ks'); sig(a, f's{sKvF}')
    a.tr(4)
    a.wait(vm='rs'); sig(a, f's{sFl[0]}')
    a(f's_branch {lj}\n{lnk}:')
    a.vm = vm0; a.lg = []
    a(f's_mul_i32 s{sU}, s{sQ}, 5\ns_add_u32 s{sU}, s{sU}, s{sRm}\ns_add_u32 s{sU}, s{sU}, {288-9}')
    for i in range(2):
        rp_decode(a, 3, sU, sSrc[i], sDst[i], sFl[i], sCs[i])
        rp_issue(a, 3, 12, vS3, sSrc[i], 8192*i, ('rp', i))
        a(f's_add_u32 s{sU}, s{sU}, 160')
    l3 = a.newlabel('N3')
    a(f's_cmp_ge_u32 s{sU}, 648\ns_cbranch_scc1 {l3}')
    rp_decode(a, 3, sU, sSrc[2], sDst[2], sFl[2], sCs[2])
    vm1 = list(a.vm)
    rp_issue(a, 3, 12, vS3, sSrc[2], 16384, ('rp', 2))
    rp_finish(a, 3, D, vR, vL, sDst[2], 16384, ('rp', 2), 'rs', ONE, CA, sCs[2])
    check_go(a)
    a.wait(vm='rs'); sig(a, f's{sFl[2]}')
    a(f'{l3}:')
    a.vm = vm1
    for i in range(2): rp_finish(a, 3, D + 32*i, vR, vL, sDst[i], 8192*i, ('rp', i), ('rs', i), ONE, CA, sCs[i])
    check_go(a)
    for i in range(2):
        a.wait(vm=('rs', i)); sig(a, f's{sFl[i]}')
    a(f'{lj}:')
    a.vm = []; a.lg = []
    a.tr(5)
    if opt.get('w2touch', 1): touch(58, 59, 93, 0)
    lnc = a.newlabel('NOCV')
    a(f's_cmp_ge_u32 s{sGw}, 432\ns_cbranch_scc1 {lnc}')
    conv_srd(a, sGw)
    a(f'v_subrev_u32 v3, 16, v{vL}')
    for i in range(4):
        a.vmem(f'buffer_load_dwordx4 {vr(KRAW+8*i, 4)}, v{3 if i == 0 else vL}, s[8:11], 0 offen offset:{max(0, 1024*i-16)}', ('ck', i))
        a.vmem(f'buffer_load_dwordx4 {vr(KRAW+8*i+4, 4)}, v{vL}, s[8:11], 0 offen offset:{1024*i}', ('ck', i))
    a(f's_lshl_b32 s25, s{sGw}, 1')
    a.vmem(f'buffer_load_ushort v242, off, s[12:15], s25', 'cd')
    ACC = 8; FB = 40; E = 72; UU = 112; TM = 128; vF, vG, vA, vU, vZ = 200, 201, 202, 203, 204
    NF = 8
    zero_fill(a, ACC, f's{sLb}')
    a(f'''
    v_bfe_u32 v1, v0, 3, 1
    v_lshrrev_b32 v2, 4, v0
    v_add_u32 v1, v1, v2
    v_lshl_add_u32 v{vF}, v1, 4, v3
    v_add_u32 v{vF}, s{sLb}, v{vF}
    v_and_b32 v1, 15, v0
    v_lshlrev_b32 v1, 5, v1
    v_lshlrev_b32 v{vG}, 4, v2
    v_sub_u32 v{vG}, v{vG}, v1
    s_add_u32 s24, s{sLb}, {RO + 480}
    v_add_u32 v{vG}, s24, v{vG}
    v_add_u32 v{vA}, s{sLb}, v{vL}
    v_lshl_add_u32 v{vZ}, v2, 3, v1
    s_add_u32 s24, s{sLb}, {RO + 4088 - 7*512}
    v_sub_u32 v{vU}, s24, v{vZ}
    v_add_u32 v{vZ}, s{sLb}, v{vZ}''')
    S = Sched(a)
    for i in range(4):
        a.wait(vm=('ck', i))
        S.add(build_ops(KRAW + 8*i, E + 20*(i%2), vA, 1024*i)); S.flush()
    a.tr(6)
    a(f's_lshr_b32 s24, s{sGw}, 6\ns_lshl_b32 s24, s24, 7\ns_add_u32 s{sKvF}, s24, {FL_KV}')
    spin(a, 28, f's{sKvF}', 32)
    a.tr(7)
    a(f's_lshl_b32 s24, s{sGw}, 12\ns_add_u32 m0, s{sLb}, {RO}\ns_add_u32 s24, s24, {WS_KVR}')
    for i in range(4): a.vmem(f'buffer_load_dwordx4 v{vL}, s[16:19], s24 offen offset:{1024*i} {SC} lds', 'cr')
    a.srd(12, 54, 55, WBYTES)
    a(f'v_mul_u32_u24 v1, 1152, v0\ns_mov_b32 s{sU}, s{sGw}')
    for i in range(2):
        rp_decode(a, 4, sU, sSrc[i], sDst[i], sFl[i])
        a.vmem(f'buffer_load_dword v253, v1, s[12:15], s{sSrc[i]} offen', 'touch')
        a(f's_add_u32 s{sU}, s{sU}, 448')
    a(f'v_lshlrev_b32 v242, 16, v242' if False else '')
    a.wait(vm='cr')
    a(f'v_lshlrev_b32 v242, 16, v242')
    def grd(d): return ('lds', f'ds_read_b128 {ar(4*(d+7), 4)}, v{vG} offset:{(56-d)*64}', ('g', d))
    def frd(e): return ('lds', f'ds_read_b128 {vr(FB + 4*(e%NF), 4)}, v{vF} offset:{e*64}', ('f', e))
    def epi(j):
        u = UU + 2*j; T_ = TM + 8*(j%2); A_ = ACC + 4*j
        ops = [('wait', ('u', j))] + [unp(T_+r, u, 3 - r) for r in range(4)] + [f'v_mul_f32 v{T_+r}, v{T_+r}, v242' for r in range(4)]
        ops += [f'v_cvt_pk_bf16_f32 v{u+i}, v{T_+2*i}, v{T_+2*i+1}' for i in range(2)] + [f'v_cvt_pk_bf16_f32 v{T_+4+i}, v{A_+2*i}, v{A_+2*i+1}' for i in range(2)]
        ops += [unp(T_+r, u, r) for r in range(4)] + [unp(A_+r, T_+4, r) for r in range(4)] + [f'v_add_f32 v{A_+r}, v{A_+r}, v{T_+r}' for r in range(4)]
        ops += [f'v_cvt_pk_bf16_f32 v{u+i}, v{A_+2*i}, v{A_+2*i+1}' for i in range(2)]
        return ops
    S.add([frd(0)] + [grd(8*j) for j in range(7, -1, -1)] + [frd(1)]); S.flush()
    pend = []
    for e in range(64):
        pre = []
        if e + 1 < 8: pre += [grd(8*j - e - 1) for j in range(7, -1, -1)]
        lo = 2 if e == 0 else min(e + 1 + e // 8, 64)
        la = min(NF - 1, 2 + e // 8)
        if e == 0: nf = 2
        while nf <= min(e + la, 63): pre.append(frd(nf)); nf += 1
        if e == 8: pre += [('lds', f'ds_read_b64 {vr(UU+2*j, 2)}, v{vU} offset:{(7-j)*512}', ('u', j)) for j in range(8)]
        S.q = pre + S.q
        if e % 8 == 2 and e >= 10: S.add(epi(e // 8 - 1))
        for j in range(7, -1, -1):
            if e <= 8*j + 7:
                while any((not isinstance(o, str)) and o[0] == 'lds' and o[2] in (('f', e), ('g', 8*j - e)) for o in S.q): S.fill(1)
                a.wait(lg=[('f', e), ('g', 8*j - e)])
                a(f'v_mfma_f32_16x16x32_bf16 {vr(ACC+4*j, 4)}, {vr(FB + 4*(e%NF), 4)}, {ar(4*(8*j-e+7), 4)}, {"0" if e == 0 else vr(ACC+4*j, 4)}')
                S.fill(2)
    S.add(epi(7)); S.flush()
    a.tr(8)
    for j in range(8): a.lds(f'ds_write_b64 v{vZ}, {vr(UU+2*j, 2)} offset:{512*j}', 'zw')
    for i in range(4): a.lds(f'ds_read_b128 {vr(FB+4*i, 4)}, v{vA} offset:{1024*i}', ('zr', i))
    a(f's_lshl_b32 s24, s{sGw}, 12\ns_add_u32 s24, s24, {WS_ZT}')
    for i in range(4):
        a.wait(lg=('zr', i))
        a.vmem(f'buffer_store_dwordx4 {vr(FB+4*i, 4)}, v{vL}, s[16:19], s24 offen offset:{1024*i} {SC}', 'zs')
    a(f's_bfe_u32 s24, s{sGw}, 0x20004\ns_lshl_b32 s24, s24, 7\ns_add_u32 s{sKvF}, s24, {FL_Z}\ns_mov_b32 s{sKo}, 4')
    lc2 = a.newlabel('CVJ')
    a(f's_branch {lc2}\n{lnc}:')
    a.srd(12, 54, 55, WBYTES)
    a(f's_mov_b32 s{sU}, s{sGw}\ns_mov_b32 s{sKvF}, {FL_Z}\ns_mov_b32 s{sKo}, 0')
    for i in range(2):
        rp_decode(a, 4, sU, sSrc[i], sDst[i], sFl[i])
        a(f's_add_u32 s{sU}, s{sU}, 448')
    a(f'{lc2}:')
    a.vm = ['zs']; a.lg = []
    rp_issue(a, 4, 12, vS4, sSrc[0], 8192, ('rp', 0))
    l4 = a.newlabel('N4')
    a(f's_cmp_ge_u32 s{sGw}, 200\ns_cbranch_scc1 {l4}')
    vm1 = list(a.vm)
    rp_issue(a, 4, 12, vS4, sSrc[1], 16384, ('rp', 1))
    rp_finish(a, 4, D + 32, vR, vL, sDst[1], 16384, ('rp', 1), 'rs1')
    a(f'{l4}:')
    a.vm = vm1
    rp_finish(a, 4, D + 64, vR, vL, sDst[0], 8192, ('rp', 0), 'rs0')
    a(f's_atomic_add s{sKo}, s[28:29], s{sKvF}')
    a.wait(vm_all=True)
    sig(a, f's{sFl[0]}')
    l5 = a.newlabel('N5')
    a(f's_cmp_ge_u32 s{sGw}, 200\ns_cbranch_scc1 {l5}')
    sig(a, f's{sFl[1]}')
    a(f'{l5}:')
    a.tr(9)
```

```python
from common import *
from front import spin as fspin

SPIN_MAX = 200000

def make_p3(a, depth=20, trc=None, sflag='sc1', WLN=16, a_at=5, LF='sc1', t1=100):
    trace = a.trace
    NB = depth + 2
    V = Regs(1, 256)
    AV = V.alloc('Av', 32, 4)
    ACC = [V.alloc('acc0', 16, 4), V.alloc('acc1', 16, 4)]
    W = V.alloc('w', 4 * NB, 4)
    CS = V.alloc('cs', 4, 4); R = V.alloc('r', 8, 4); T = V.alloc('t', 8, 4)
    AB = V.alloc('ab', 16, 4)
    PA = V.alloc('pa', 32, 4); X1R = V.alloc('x1r', 10, 2)
    ST1 = V.alloc('st1', 4, 4)
    vL16 = V.alloc('l16'); vCS = V.alloc('vcs'); vHw = V.alloc('hw')
    vB = [V.alloc('b0'), V.alloc('b1'), V.alloc('b2'), V.alloc('b3')]
    vWL = V.alloc('wl'); vFl = V.alloc('fl'); vTmp = V.alloc('tmp'); vTmp2 = V.alloc('tmp2')
    nv = V.n
    def opreg(u, rt):
        return ar(16*u + 4*rt, 4) if u < 16 else vr(AV + 16*(u-16) + 4*rt, 4)
    HB = 0; CSB = 73728; STG = CSB + 2304; XB = 90112; WLB = STG + 18432; LDS = 163840
    assert WLB + WLN * 4096 <= LDS
    sSl, sMt, sRot, sW, sG, sCq, sRow = 20, 21, 22, 23, 24, 25, 26
    sCh, sK = 30, 40
    sPh = 50
    sFw, sFr, sPf, sSpin, sWl, sNeed = 55, 56, 57, 58, 59, 53
    sLg = 61
    sLo, sHi = 54, 27
    sSt, sTmp, sTmp2, sX = 60, 64, 65, 66
    NST = 324
    NLD = NST - WLN
    SB = [PA + 2*c for c in range(9)]
    def ld(n):
        if n >= NLD: return
        ph, c, u = n // 162, (n % 162) // 18, n % 18
        r = W + 4 * (n % NB)
        if ph == 0:
            if u % 4 == 0 and u: a(f's_add_u32 s{sTmp}, s{sCh+c}, {u*1024}')
            so = f's{sCh+c}' if u < 4 else f's{sTmp}'
            a.vmem(f'buffer_load_dwordx4 {vr(r, 4)}, v{vL16}, s[16:19], {so} offen offset:{(u%4)*1024} {LF}', ('w', n))
        else:
            if u == 0: a(f's_add_u32 s{sCh+c}, s{sCh+c}, {WBYTES}')
            if u % 2 == 0: a(f's_add_u32 s{sTmp}, s{sCh+c}, s{sK+u//2}')
            a.vmem(f'buffer_load_dwordx4 {vr(r, 4)}, v{vL16}, s[16:19], s{sTmp} offen offset:{(u%2)*1024} {LF}', ('w', n))
    def physof(dst, add_reg, add_const):
        s = f's_add_u32 s{dst}, s{sRot}, {add_const}\n'
        if add_reg is not None: s += f's_add_u32 s{dst}, s{dst}, s{add_reg}\n'
        s += f's_cmp_ge_u32 s{dst}, 9\ns_cselect_b32 s{sTmp2}, 9, 0\ns_sub_u32 s{dst}, s{dst}, s{sTmp2}'
        return s
    def e1():
        a(f'''
        s_load_dwordx2 s[8:9], s[0:1], 0
        s_load_dwordx2 s[12:13], s[0:1], 88
        s_and_b32 s{sSl}, s2, 3
        s_lshl_b32 s{sSl}, s{sSl}, 1
        s_bfe_u32 s{sTmp}, s2, 0x10003
        s_add_u32 s{sSl}, s{sSl}, s{sTmp}
        s_lshl_b32 s{sX}, s{sSl}, 7
        s_add_u32 s{sX}, s{sX}, {FL_W3}
        s_load_dword s4, s[28:29], s{sX}
        s_lshr_b32 s{sMt}, s2, 4
        s_bfe_u32 s{sTmp}, s2, 0x10002
        s_lshl_b32 s{sTmp}, s{sTmp}, 4
        s_add_u32 s{sMt}, s{sMt}, s{sTmp}
        s_mul_i32 s{sTmp}, s{sMt}, 57
        s_lshr_b32 s{sTmp}, s{sTmp}, 9
        s_mul_i32 s{sTmp}, s{sTmp}, 9
        s_sub_u32 s{sRot}, s{sMt}, s{sTmp}
        v_lshlrev_b32 v{vL16}, 4, v0
        s_mul_i32 s{sTmp}, s{sSl}, {9*73728}
        s_mul_i32 s{sTmp2}, s{sW}, 18432
        s_add_u32 s{sTmp}, s{sTmp}, s{sTmp2}
        s_add_u32 s{sTmp}, s{sTmp}, {WS_WP3}
        s_mov_b32 s10, {MAT}
        s_mov_b32 s11, 0x20000
        s_mov_b32 s14, {MAT}
        s_mov_b32 s15, 0x20000
        s_mov_b32 s{sTmp2}, s{sRot}''')
        for j in range(9):
            a(f's_mul_i32 s{sCh+j}, s{sTmp2}, 73728\ns_add_u32 s{sCh+j}, s{sCh+j}, s{sTmp}\ns_lshl_b32 s{sK+j}, s{sTmp2}, 11')
            if j < 8: a(f's_add_u32 s{sTmp2}, s{sTmp2}, 1\ns_cmp_eq_u32 s{sTmp2}, 9\ns_cselect_b32 s{sTmp2}, 0, s{sTmp2}')
        a(physof(sPh, sW, 0)); a(physof(sPh+1, sW, 4)); a(physof(sPh+2, None, 8))
        fspin(a, 28, f's{sX}', 81, first_loaded=True)
        a(f'''v_mov_b32 v{vTmp}, s{sPh}
        v_mov_b32 v{vTmp2}, s{sPh+1}
        v_cmp_lt_u32 vcc, 15, v0
        s_lshl_b32 s{sTmp2}, s{sW}, 8
        v_mov_b32 v{vFl}, s{sTmp2}
        v_cndmask_b32 v{vTmp}, v{vTmp}, v{vTmp2}, vcc
        v_add_u32 v{vTmp2}, 1024, v{vFl}
        v_cndmask_b32 v{vFl}, v{vFl}, v{vTmp2}, vcc
        v_mov_b32 v{vTmp2}, s{sPh+2}
        v_cmp_lt_u32 vcc, 31, v0
        v_mov_b32 v{vWL}, 0x800
        v_and_b32 v{vHw}, 15, v0
        v_cndmask_b32 v{vTmp}, v{vTmp}, v{vTmp2}, vcc
        v_cndmask_b32 v{vFl}, v{vFl}, v{vWL}, vcc
        v_lshlrev_b32 v{vTmp}, 8, v{vTmp}
        v_lshl_add_u32 v{vTmp}, v{vHw}, 4, v{vTmp}
        v_lshl_add_u32 v{vFl}, v{vHw}, 4, v{vFl}
        v_add_u32 v{vFl}, {CSB}, v{vFl}
        s_mul_i32 s{sSt}, s{sSl}, 2304
        s_add_u32 s{sSt}, s{sSt}, {WS_CS3}''')
        for rb in range(9):
            d = PA + 4*rb if rb < 8 else ST1
            a.vmem(f'buffer_load_dwordx4 {vr(d, 4)}, v{vTmp}, s[16:19], s{sSt} offen {LF}', 'csp')
            if rb < 8: a(f's_add_u32 s{sSt}, s{sSt}, {4608*4}')
        for n in range(depth): ld(n)
        a.wait(vm='csp')
        for rb in range(8):
            for i in range(2): a(f'v_pk_add_f32 {vr(ST1+2*i, 2)}, {vr(ST1+2*i, 2)}, {vr(PA+4*rb+2*i, 2)}')
        a.lds(f'ds_write_b128 v{vFl}, {vr(ST1, 4)}', 'csw')
        a(f's_lshl_b32 s{sLg}, s{sW}, 11\ns_add_u32 s{sLg}, s{sLg}, {STG}\ns_add_u32 s{sLg+1}, s{sLg}, 8192\ns_mov_b32 s{sLg+2}, {STG + 16384}')
        a(f'''
        v_add_u32 v{vB[0]}, {XB}, v{vL16}
        v_add_u32 v{vB[1]}, {XB + 36864}, v{vL16}
        v_add_u32 v{vB[2]}, {HB}, v{vL16}
        v_add_u32 v{vB[3]}, {HB + 36864}, v{vL16}
        s_lshr_b32 s{sTmp2}, s{sW}, 1
        s_lshl_b32 s{sX}, s{sTmp2}, 12
        s_and_b32 s{sTmp2}, s{sW}, 1
        s_lshl_b32 s{sTmp2}, s{sTmp2}, 3
        s_add_u32 s{sX}, s{sX}, s{sTmp2}
        s_add_u32 s{sX}, s{sX}, {HB}
        v_add_u32 v{vHw}, s{sX}, v{vL16}
        s_lshl_b32 s{sX}, s{sW}, 6
        s_add_u32 s{sX}, s{sX}, {CSB}
        v_and_b32 v{vTmp}, 48, v0
        v_add_u32 v{vCS}, s{sX}, v{vTmp}
        s_mul_i32 s{sX}, s{sMt}, 73728
        s_add_u32 s{sPf}, s{sX}, {WS_PF}
        s_mul_i32 s{sSt}, s{sSl}, {MAT}
        s_add_u32 s{sSt}, s{sSt}, s{sPf}
        s_lshl_b32 s{sX}, s{sW}, 10
        s_add_u32 s{sSt}, s{sSt}, s{sX}
        s_lshl_b32 s{sX}, s{sSl}, 10
        s_add_u32 s{sPf}, s{sPf}, s{sX}
        s_lshr_b32 s{sG}, s{sSl}, 2
        s_and_b32 s{sCq}, s{sSl}, 3
        s_lshl_b32 s{sRow}, s{sMt}, 6
        s_lshl_b32 s{sX}, s{sG}, 5
        s_add_u32 s{sRow}, s{sRow}, s{sX}
        s_mul_i32 s{sWl}, s{sW}, {WLN*1024}
        s_add_u32 s{sWl}, s{sWl}, {WLB}
        v_add_u32 v{vWL}, s{sWl}, v{vL16}
        s_lshl_b32 s{sX}, s{sMt}, 9
        s_add_u32 s{sX}, s{sX}, {WS_FL}
        s_lshl_b32 s{sFw}, s{sW}, 7
        s_add_u32 s{sFw}, s{sFw}, s{sX}
        s_lshl_b32 s{sFr}, s{sCq}, 7
        s_add_u32 s{sFr}, s{sFr}, s{sX}
        s_cmp_eq_u32 s{sW}, 3
        s_cselect_b32 s{sNeed}, 8, 4
        s_add_u32 s{sNeed}, s{sNeed}, s{sFr}
        ''')
    def e2():
        a(f's_lshl_b32 s{sX}, s{sMt}, 7\ns_add_u32 s{sX}, s{sX}, {FL_X}')
        fspin(a, 28, f's{sX}', 18)
        a(f'''s_mul_i32 s{sTmp2}, s{sW}, 18432
        s_mul_i32 s{sX}, s{sMt}, 73728
        s_add_u32 s{sX}, s{sX}, s{sTmp2}
        s_add_u32 m0, s{sTmp2}, {XB}
        s_add_u32 s{sX}, s{sX}, {WS_X1F}
        s_lshl_b32 s{sTmp2}, s{sMt}, 6
        v_add_u32 v{vTmp}, s{sTmp2}, v0
        v_lshlrev_b32 v{vTmp}, 3, v{vTmp}''')
        for i in range(18):
            if i % 4 == 0 and i: a(f's_add_u32 m0, m0, 4096\ns_add_u32 s{sX}, s{sX}, 4096')
            a.vmem(f'buffer_load_dwordx4 v{vL16}, s[16:19], s{sX} offen offset:{(i%4)*1024} {LF} lds', ('x1', i // 6))
        for c in range(9):
            a(f's_mov_b32 s{sTmp2}, {WS_ST2 + c * 16384}')
            a.vmem(f'buffer_load_dwordx2 {vr(SB[c], 2)}, v{vTmp}, s[16:19], s{sTmp2} offen {LF}', 'stat')
    def oprd(ph, u):
        ops = []
        for rt in range(4):
            if ph == 0: off = (rt & 1) * 18432 + u * 1024; b = vB[rt >> 1]
            else:
                o = u * 4096 + rt * 1024; b = vB[2 + (o >= 36864)]; off = o - (36864 if o >= 36864 else 0)
            ops.append(('lds', f'ds_read_b128 {opreg(u, rt)}, v{b} offset:{off}', ('op', ph, u)))
        return ops
    def stats_code():
        s0 = SB[0]
        ops = [('waitvm', 'stat'), f'v_and_b32 v{T+3}, 15, v0', f'v_lshlrev_b32 v{T+3}, 2, v{T+3}']
        for c in range(1, 9):
            ops.append(f'v_add_f32 v{s0}, v{s0}, v{SB[c]}')
            ops.append(f'v_add_f32 v{s0+1}, v{s0+1}, v{SB[c]+1}')
        ops += [f'v_mul_f32 v{s0}, {fhex(1/576)}, v{s0}',
                f'v_mul_f32 v{s0+1}, {fhex(1/576)}, v{s0+1}',
                f'v_fma_f32 v{s0+1}, -v{s0}, v{s0}, v{s0+1}',
                f'v_max_f32 v{s0+1}, 0, v{s0+1}',
                f'v_cvt_pk_bf16_f32 v{s0+2}, v{s0}, v{s0+1}',
                f'v_and_b32 v{s0+1}, 0xffff0000, v{s0+2}',
                f'v_lshlrev_b32 v{s0}, 16, v{s0+2}',
                f'v_add_f32 v{s0+1}, {fhex(1e-5)}, v{s0+1}',
                f'v_cvt_pk_bf16_f32 v{s0+1}, v{s0+1}, v{s0+1}',
                f'v_lshlrev_b32 v{s0+1}, 16, v{s0+1}',
                f'v_sqrt_f32 v{s0+1}, v{s0+1}',
                f'v_cvt_pk_bf16_f32 v{s0+1}, v{s0+1}, v{s0+1}',
                f'v_lshlrev_b32 v{s0+1}, 16, v{s0+1}',
                f'v_rcp_f32 v{s0+4}, v{s0+1}',
                f'v_sub_f32 v{s0+5}, 0, v{s0}',
                f'v_mul_f32 v{s0+6}, {fhex(GELU_C0)}, v{s0+4}',
                f'v_mul_f32 v{s0+7}, v{s0+4}, v{s0+4}',
                f'v_mul_f32 v{s0+7}, v{s0+7}, v{s0+6}',
                f'v_mul_f32 v{s0+7}, {fhex(0.044715)}, v{s0+7}']
        for rt in range(4):
            for i in range(4):
                ops.append(('lds', f'ds_bpermute_b32 v{AB+4*rt+i}, v{T+3}, v{s0+4+i} offset:{64*rt}', 'ab'))
        return ops
    def gelu4(acc, x, cj):
        k = acc + 4 * x; r = R + 4 * (x & 1); al = AB + 4*x; t = T + 2 * x
        st = [lambda i: f'v_fmac_f32 v{k+i}, v{CS+i}, v{al+1}',
              lambda i: f'v_mul_f32 v{r+i}, v{k+i}, v{k+i}',
              lambda i: f'v_fma_f32 v{r+i}, v{r+i}, v{al+3}, v{al+2}',
              lambda i: f'v_mul_f32 v{r+i}, v{r+i}, v{k+i}',
              lambda i: f'v_exp_f32 v{r+i}, v{r+i}',
              lambda i: f'v_add_f32 v{r+i}, 1.0, v{r+i}',
              lambda i: f'v_rcp_f32 v{r+i}, v{r+i}',
              lambda i: f'v_mul_f32 v{k+i}, v{k+i}, v{r+i}']
        ops = [f(i) for f in st for i in range(4)]
        ops.append(f'v_cvt_pk_bf16_f32 v{t}, v{k}, v{k+1}')
        ops.append(f'v_cvt_pk_bf16_f32 v{t+1}, v{k+2}, v{k+3}')
        o = cj * 8192 + x * 1024
        if o > 65535 - 8:
            ops.append(f'v_add_u32 v{r}, {o}, v{vHw}')
            ops.append(('lds', f'ds_write_b64 v{r}, {vr(t, 2)}', 'hw'))
        else:
            ops.append(('lds', f'ds_write_b64 v{vHw}, {vr(t, 2)} offset:{o}', 'hw'))
        return ops
    def out16(acc, cj):
        ops = [f's_lshl_b32 s{sTmp2}, s{sK+cj}, 2', f's_add_u32 s{sTmp2}, s{sTmp2}, s{sSt}']
        for g in range(2):
            b = acc + 8 * g
            for i in range(8): ops.append(f'v_mul_f32 v{b+i}, v{b+i}, v{AB + 4*(2*g + i//4)}')
            for i in range(4): ops.append(f'v_cvt_pk_bf16_f32 v{T+4*g+i}, v{b+2*i}, v{b+2*i+1}')
            if g == 1: ops.append(f's_add_u32 s{sTmp2}, s{sTmp2}, 4096')
            ops.append(('vmem', f'buffer_store_dwordx4 {vr(T+4*g, 4)}, v{vL16}, s[16:19], s{sTmp2} offen {sflag}', ('store', cj)))
        return ops
    def signal(cj, r):
        return [('waitvm', ('store', cj)), f's_mov_b32 s5, 1\ns_add_u32 s6, s{sFw}, {4*r}\ns_atomic_add s5, s[28:29], s6']
    def poll(areg):
        return [f's_load_dword s4, s[28:29], s{areg} glc']
    def spin(areg):
        l = a.newlabel('K3_sp'); l2 = a.newlabel('K3_ok')
        return [f's_mov_b32 s{sSpin}, 0\n{l}:\ns_cmp_ge_u32 s4, 8\ns_cbranch_scc1 {l2}\ns_add_u32 s{sSpin}, s{sSpin}, 1\ns_cmp_gt_u32 s{sSpin}, {SPIN_MAX}\ns_cbranch_scc1 {l2}\n'
                f's_load_dword s4, s[28:29], s{areg} glc\ns_waitcnt lgkmcnt(0)\ns_branch {l}\n{l2}:']
    RN = [8, 8, 2]
    def ploads(rd, buf):
        n = RN[rd] // 2
        ops = [f's_lshl_b32 s{sTmp2}, s{sPh+rd}, 13', f's_add_u32 s{sTmp2}, s{sTmp2}, s{sPf}']
        if n == 1: ops += [f's_lshl_b32 s{sX}, s{sW}, 2', f's_add_u32 s{sTmp2}, s{sTmp2}, s{sX}']
        mn = {4: 'buffer_load_dwordx4', 1: 'buffer_load_dword'}[n]
        for s in range(8):
            ops.append(('vmem', f'{mn} {vr(buf + n*s, n)}, v{vL16}, s[16:19], s{sTmp2} offen sc1', ('p', rd, s)))
            if s < 7: ops.append(f's_add_u32 s{sTmp2}, s{sTmp2}, {MAT}')
        return ops
    def stage(rd):
        x = [f's_lshl_b32 s{sX}, s{sPh+rd}, 7', f's_mov_b32 m0, s{sLg+rd}', f's_add_u32 s{sX}, s{sX}, s{sXo}',
             ('vmem', f'buffer_load_dwordx4 v{vTmp}, s[8:11], s{sX} offen lds', 'stg')]
        z = [f's_lshl_b32 s{sX}, s{sPh+rd}, 18', f's_add_u32 m0, s{sLg+rd}, 1024', f's_add_u32 s{sX}, s{sX}, s{sZo}',
             ('vmem', f'buffer_load_dwordx4 v{vTmp2}, s[16:19], s{sX} offen {LF} lds', 'stg')]
        return [x, z]
    sXo, sZo = 39, 49
    def x1reads():
        ops = [f's_mul_i32 s{sSpin}, s{sG}, 36864', f's_lshr_b32 s{sX}, s{sCq}, 1', f's_lshl_b32 s{sX}, s{sX}, 10', f's_add_u32 s{sSpin}, s{sSpin}, s{sX}',
               f's_and_b32 s{sX}, s{sCq}, 1', f's_lshl_b32 s{sX}, s{sX}, 3', f's_add_u32 s{sSpin}, s{sSpin}, s{sX}']
        for rd in range(3):
            ops += [f's_lshl_b32 s{sX}, s{sPh+rd}, 11', f's_add_u32 s{sX}, s{sX}, s{sSpin}']
            if rd == 2:
                ops += [f's_lshr_b32 s{sTmp2}, s{sW}, 1', f's_mul_i32 s{sTmp2}, s{sTmp2}, 18432', f's_add_u32 s{sX}, s{sX}, s{sTmp2}',
                        f's_and_b32 s{sTmp2}, s{sW}, 1', f's_lshl_b32 s{sTmp2}, s{sTmp2}, 2', f's_add_u32 s{sX}, s{sX}, s{sTmp2}']
            ops.append(f'v_add_u32 v{vTmp}, s{sX}, v{vB[0]}')
            ops.append(('lds', f'ds_read_b64 {vr(X1R + 4*rd, 2)}, v{vTmp}' if rd < 2 else f'ds_read_b32 v{X1R + 8}, v{vTmp}', 'x1r'))
            if rd < 2: ops.append(('lds', f'ds_read_b64 {vr(X1R + 4*rd + 2, 2)}, v{vTmp} offset:18432', 'x1r'))
        ops += [f's_mul_i32 s{sXo}, s{sRow}, 1152', f's_lshl_b32 s{sX}, s{sCq}, 5', f's_add_u32 s{sXo}, s{sXo}, s{sX}',
                f's_lshl_b32 s{sZo}, s{sCq}, 16', f's_lshl_b32 s{sX}, s{sRow}, 1', f's_add_u32 s{sZo}, s{sZo}, s{sX}', f's_add_u32 s{sZo}, s{sZo}, {WS_ZT}',
                f'v_lshrrev_b32 v{vTmp}, 1, v0', f'v_mul_u32_u24 v{vTmp}, 1152, v{vTmp}', f'v_and_b32 v{vTmp2}, 1, v0',
                f'v_lshl_add_u32 v{vTmp}, v{vTmp2}, 4, v{vTmp}', f'v_lshrrev_b32 v{vTmp2}, 2, v0', f'v_lshlrev_b32 v{vTmp2}, 12, v{vTmp2}',
                f'v_and_b32 v{vFl}, 3, v0', f'v_lshl_add_u32 v{vTmp2}, v{vFl}, 4, v{vTmp2}', f'v_and_b32 v{vFl}, 15, v0', f'v_lshlrev_b32 v{vFl}, 3, v{vFl}']
        return ops
    def unp(d, s, i): return f'v_lshlrev_b32 v{d}, 16, v{s+i//2}' if i % 2 == 0 else f'v_and_b32 v{d}, 0xffff0000, v{s+i//2}'
    def cvt(d, r, n): return [f'v_cvt_pk_bf16_f32 v{d+i}, v{r+2*i}, v{r+2*i+1}' for i in range(n//2)]
    def rnd(r, n, tmp): return cvt(tmp, r, n) + [unp(r+i, tmp, i) for i in range(n)]
    XP = [R, R + 4, CS]; SP = [[AB+1, AB+2, AB+3, AB+5], [AB+6, AB+7, AB+9, AB+10], [CS+2, CS+3]]; VO = [AB+11, AB+13, AB+14]
    def pre_ops(rd):
        n = RN[rd]; ops = []
        xr = XP[rd]; zr = PA; S = PA + 4; U = PA + 12; TM = PA + 20; vO = VO[rd]; a1, a2 = PA + 24, PA + 25
        if n == 8: ops += [f's_mov_b32 s{sX}, 0']
        else: ops += [f's_lshr_b32 s{sX}, s{sW}, 1']
        ops += [f'v_and_b32 v{a1}, 15, v0', f'v_lshrrev_b32 v{a2}, 4, v0', f'v_lshlrev_b32 v{a2}, 3, v{a2}',
                f'v_mul_u32_u24 v{vO}, 1152, v{a1}', f'v_add_u32 v{vO}, v{vO}, v{a2}', f'v_lshl_add_u32 v{a1}, v{a1}, 5, v{a2}',
                f's_lshl_b32 s{sSpin}, s{sX}, 9', f's_add_u32 s{sSpin}, s{sSpin}, s{sLg+rd}', f'v_add_u32 v{a1}, s{sSpin}, v{a1}']
        ops.append(('lds', f'ds_read_b64 {vr(xr, 2)}, v{a1}', ('x', rd)))
        if n == 8: ops.append(('lds', f'ds_read_b64 {vr(xr+2, 2)}, v{a1} offset:512', ('x', rd)))
        ops += [f'v_lshrrev_b32 v{a1}, 2, v0', f'v_and_b32 v{a2}, 3, v0', f'v_lshlrev_b32 v{a2}, 3, v{a2}', f'v_lshl_add_u32 v{a1}, v{a1}, 6, v{a2}',
                f's_lshl_b32 s{sSpin}, s{sX}, 5', f's_add_u32 s{sSpin}, s{sSpin}, s{sLg+rd}', f'v_add_u32 v{a1}, s{sSpin}, v{a1}']
        ops.append(('lds', f'ds_read_b64_tr_b16 {vr(zr, 2)}, v{a1} offset:1024', ('z', rd)))
        if n == 8: ops.append(('lds', f'ds_read_b64_tr_b16 {vr(zr+2, 2)}, v{a1} offset:{1024+32}', ('z', rd)))
        ops += [f's_mul_i32 s{sSpin}, s{sX}, {16*1152}', f's_add_u32 s{sSpin}, s{sSpin}, s{sXo}', f'v_add_u32 v{vO}, s{sSpin}, v{vO}',
                f's_lshl_b32 s{sSpin}, s{sPh+rd}, 7', f'v_add_u32 v{vO}, s{sSpin}, v{vO}']
        if n < 8:
            ops += [f's_cmp_eq_u32 s{sX}, 1\ns_cselect_b64 vcc, -1, 0', f'v_cndmask_b32 v{ST1}, v{ST1}, v{ST1+2}, vcc', f'v_cndmask_b32 v{ST1+1}, v{ST1+1}, v{ST1+3}, vcc']
        st = lambda i: ST1 + 2*(i//4)
        ops.append(('wait', ('x', rd)))
        if n == 2:
            ops += [('wait', ('z', rd)), f's_bitcmp1_b32 s{sW}, 0\ns_cselect_b64 vcc, -1, 0\ns_cselect_b32 s{sSpin}, 4, 0', f'v_cndmask_b32 v{xr}, v{xr}, v{xr+1}, vcc',
                    f'v_cndmask_b32 v{zr}, v{zr}, v{zr+1}, vcc', f'v_add_u32 v{vO}, s{sSpin}, v{vO}']
        ops += [unp(S+i, xr, i) for i in range(n)]
        ops += [f'v_sub_f32 v{S+i}, v{S+i}, v{st(i)}' for i in range(n)] + rnd(S, n, TM)
        ops += [f'v_mul_f32 v{S+i}, v{S+i}, v{st(i)+1}' for i in range(n)] + rnd(S, n, TM)
        ops.append(('wait', ('z', rd)))
        ops += [unp(U+i, zr, i) for i in range(n)] + [f'v_mul_f32 v{S+i}, v{S+i}, v{U+i}' for i in range(n)]
        ops += [f'v_cvt_pk_bf16_f32 v{SP[rd][i]}, v{S+2*i}, v{S+2*i+1}' for i in range(n//2)]
        return ops
    def cost(op):
        if not isinstance(op, str): return 0 if op[0] in ('wait', 'waitvm') else 1
        if op.startswith('v_exp') or op.startswith('v_rcp') or op.startswith('v_sqrt'): return 2
        return 1
    def emit(op):
        if isinstance(op, str): a(op)
        elif op[0] == 'wait': a.wait(lg=op[1])
        elif op[0] == 'waitvm': a.wait(vm=op[1])
        elif op[0] == 'lds': a.lds(op[1], op[2])
        elif op[0] == 'vmem': a.vmem(op[1], op[2])
        elif op[0] == 'fspin': fspin(a, 28, 's7', op[1], first_loaded=True)
        elif op[0] == 'bar':
            a.wait(lg_all=True); a('s_barrier')
        elif op[0] == 'barvm':
            a.wait(vm=op[1]); a('s_barrier')
    F = [[[] for m in range(4)] for n in range(NST)]
    def spread(ops, g0, g1):
        wts = [(0.55 if g % 4 == 3 else 1.0) for g in range(g0, g1)]
        tw = sum(wts); tot = sum(cost(o) for o in ops)
        cum = 0; gi = 0; acc_w = wts[0]
        for o in ops:
            while gi < len(wts) - 1 and (cum + cost(o) * 0.5) / max(tot, 1) > acc_w / tw:
                gi += 1; acc_w += wts[gi]
            g = g0 + gi
            F[g // 4][g % 4].append(o)
            cum += cost(o)
    def run_main():
        nld = depth
        a.wait(vm=('x1', 0), lg_all=True); a('s_barrier')
        a.tr(2) if trc is None else None
        for u in range(3):
            for op in oprd(0, u): emit(op)
        for u in range(3, 18):
            n = u - 3
            if u % 6 == 0: F[n][0].insert(0, ('barvm', ('x1', u // 6)))
            for m, o in enumerate(oprd(0, u)): F[n][m].append(o)
        spread(x1reads(), 4*9+1, 4*12)
        spread(stats_code(), 4*12, 4*17)
        F[17][0] += [('bar',), ('lds', f'ds_read_b128 {vr(CS, 4)}, v{vCS} offset:0', ('cs', 0))]
        for gc in range(17):
            n0 = 18 * (gc + 1)
            acc = ACC[gc % 2]
            if gc < 9:
                gs = [gelu4(acc, x, gc) for x in range(4)]
                E = [('wait', [('cs', gc), 'ab'])] + sum([g[:4] for g in gs], [])
                if gc < 8: E.append(('lds', f'ds_read_b128 {vr(CS, 4)}, v{vCS} offset:{(gc+1)*256}', ('cs', gc + 1)))
                for x in range(4): E += gs[x][4:]
                if gc == 8:
                    F[n0][0] += [('bar',)] + oprd(1, 14) + oprd(1, 15)
                    spread(E, 4*n0 + 2, 4*(n0 + 14))
                    F[n0+13][3] += [('bar',)] + oprd(1, 16) + oprd(1, 17)
                else:
                    spread(E, 4*n0 + 2, 4*(n0 + 18))
            else:
                spread(out16(acc, gc - 9), 4*n0 + 2, 4*(n0 + 5))
        F[144][0].insert(0, ('bar',))
        for u in range(14):
            for m, o in enumerate(oprd(1, u)): F[144 + u + 1][m].append(o)
        P2 = 162
        slow = []
        for i in range(WLN):
            u = 18 - WLN + i
            slow.append([f's_add_u32 s{sX}, s{sCh+8}, s{sK+u//2}', f's_add_u32 m0, s{sWl}, {1024*i}', f's_add_u32 s{sX}, s{sX}, {WBYTES + (u%2)*1024}',
                         ('vmem', f'buffer_load_dwordx4 v{vL16}, s[16:19], s{sX} offen {LF} lds', 'wl')])
        sx = [stage(r)[0] for r in range(3)] + [[f's_lshl_b32 s{sX}, s{sRow}, 3', f's_add_u32 s{sX}, s{sX}, {WS_ST1}',
               ('vmem', f'buffer_load_dwordx2 {vr(ST1, 2)}, v{vFl}, s[16:19], s{sX} offen {LF}', 'stg'),
               ('vmem', f'buffer_load_dwordx2 {vr(ST1+2, 2)}, v{vFl}, s[16:19], s{sX} offen offset:128 {LF}', 'stg')]]
        slow = sx + slow + [stage(r)[1] for r in range(3)]
        pos = [22 + (i * 118) // len(slow) for i in range(len(slow))]
        for i, x in enumerate(slow): F[pos[i]][3] += x
        F[21][3] += [f's_atomic_add s{sLo}, s[28:29], s{sHi}']
        for (p_, base, idx, tgt) in ((pos[4], FL_W4, sSl, 81), (pos[-3], FL_Z, sCq, 576)):
            F[p_-9][2] += [f's_lshl_b32 s7, s{idx}, 7\ns_add_u32 s7, s7, {base}\ns_load_dword s4, s[28:29], s7']
            F[p_][2] += [('fspin', tgt)]
        def wreg(n):
            return W + 4 * (n % NB) if n < NLD + 4 else W + 4 * ((NLD - 2 + (n - NLD + 2) % 6) % NB)
        for n in range(NLD, NST):
            F[n-4][1].append(('lds', f'ds_read_b128 {vr(wreg(n), 4)}, v{vWL} offset:{(n-NLD)*1024}', ('wl', n)))
        busy = sorted({(wreg(n) - W) // 4 for n in range(NLD - 2, NST)})
        free = [i for i in range(NB) if i not in busy]
        runs = [i for i in range(NB - 7) if all((i + k) in free for k in range(8))]
        PB = W + 4 * runs[0]
        PD = AV
        for rd in range(3): spread(pre_ops(rd), 4*(P2 + 18*(2+rd) + 6), 4*(P2 + 18*(2+rd) + 18))
        F[P2+18*5+2][1] += signal(3, 0)
        F[P2+18*6+10][1] += poll(sFr)
        F[P2+18*7+a_at][0] += ['s_waitcnt lgkmcnt(0)'] + spin(sFr)
        spread(ploads(0, PA), 4*(P2+18*7+a_at)+1, 4*(P2+18*7+a_at+3))
        F[P2+18*7+14][1] += signal(6, 1)
        F[NST-1][0] += poll(sNeed)
        for c in range(18):
            if trc is None:
                if c in (1, 9, 10, 17): a.tr({1: 3, 9: 4, 10: 5, 17: 6}[c])
            elif trc <= c < trc + 10: Gen.tr(a, c - trc)
            for u in range(18):
                n = 18 * c + u
                cnt = 0
                while nld < min(n + depth + 1, NLD) and cnt < 2:
                    ld(nld); nld += 1; cnt += 1
                if n >= NLD: a.wait(lg=('wl', n))
                elif n >= 18:
                    if n % 2 == 0: a.wait(vm=('w', n + 1))
                else: a.wait(vm=('w', n))
                if c in (0, 9): a.wait(lg=('op', c // 9, u))
                r = wreg(n); acc = ACC[c % 2]
                for rt in range(4):
                    cin = '0' if u == 0 else vr(acc + 4*rt, 4)
                    a(f'v_mfma_f32_16x16x32_bf16 {vr(acc + 4*rt, 4)}, {vr(r, 4)}, {opreg(u, rt)}, {cin}')
                    for op in F[n][rt]: emit(op)
        a.tr(7)
        def pk(op, d, s0, s1, n): return [f'{op} {vr(d+2*i, 2)}, {vr(s0+2*i, 2)}, {vr(s1+2*i, 2)}' for i in range(n//2)]
        def accb(d, s, n): return [f'v_dot2c_f32_bf16 v{d+i}, s{sLo if i % 2 == 0 else sHi}, v{s+i//2}' for i in range(n)]
        def fin_ops(rd, buf):
            n = RN[rd]; h = n // 2; B = ACC[0]; U = ACC[0] + 8; x1r = X1R + 4 * rd; TM = AV + 16; O = AV + 20 + 4 * rd; vO = VO[rd]
            ops = [('waitvm', ('p', rd, 0))] + [unp(B+i, buf, i) for i in range(n)]
            for s in range(1, 8):
                ops += [('waitvm', ('p', rd, s))] + accb(B, buf + h*s, n)
            ops += rnd(B, n, TM) + accb(B, x1r, n) + rnd(B, n, TM)
            ops += [f'v_mul_f32 v{U+i}, {fhex(-1.4426950408889634)}, v{B+i}' for i in range(n)]
            ops += [f'v_exp_f32 v{U+i}, v{U+i}' for i in range(n)] + [f'v_add_f32 v{U+i}, 1.0, v{U+i}' for i in range(n)] + [f'v_rcp_f32 v{U+i}, v{U+i}' for i in range(n)]
            ops += pk('v_pk_mul_f32', B, B, U, n) + [unp(U+i, SP[rd][i//2], i % 2) for i in range(n)] + rnd(B, n, TM) + pk('v_pk_mul_f32', B, B, U, n) + rnd(B, n, TM) + accb(B, XP[rd], n)
            ops += cvt(O, B, n)
            ops.append(('vmem', f'buffer_store_dwordx2 {vr(O, 2)}, v{vO}, s[12:15], 0 offen' if n > 2 else f'buffer_store_dword v{O}, v{vO}, s[12:15], 0 offen', 'o'))
            if n == 8: ops += [f's_movk_i32 s{sTmp}, {16*1152}', ('vmem', f'buffer_store_dwordx2 {vr(O+2, 2)}, v{vO}, s[12:15], s{sTmp} offen', 'o')]
            return ops
        fa = fin_ops(0, PA)
        def run(seq):
            for op in seq: emit(op)
        run(out16(ACC[1], 8) + [f's_mov_b32 s{sLo}, 0x3f80', f's_mov_b32 s{sHi}, 0x3f800000'] + signal(7, 2) + [f's_add_u32 s7, s{sFr}, 12'])
        half = t1
        run(fa[:half] + signal(8, 3) + ['s_waitcnt lgkmcnt(1)' if False else 's_waitcnt lgkmcnt(0)'] + spin(sNeed) + ploads(1, PB) + fa[half:-3])
        a.tr(8)
        run(poll(7) + fa[-3:])
        a('s_waitcnt lgkmcnt(0)\ns_cmp_ge_u32 s4, 8\ns_cbranch_scc0 K3_q2')
        vm0 = list(a.vm)
        fb = fin_ops(1, PB)
        run(ploads(2, PD) + fb[:-3])
        a('s_branch K3_join2\nK3_q2:')
        a.vm = vm0
        run(poll(7) + fb[:-3] + ['s_waitcnt lgkmcnt(0)'] + spin(7) + ploads(2, PD))
        a('K3_join2:')
        a.vm = [('p', 2, s) for s in range(8)]
        a.tr(9)
        run(fb[-3:] + fin_ops(2, PD))
    return dict(e1=e1, e2=e2, main=run_main, W=W, nv=nv, regs=V.names)
```

```python
import sys, hz
from common import *
import front, p3
from front import sW, sig
NAME = 'recurrent_scan__ssm_conv_h3__mixer_s_mlp__prompt_kernel'

def gen(stamps=False, trace=False, opt={}, p3kw={}, trp='front'):
    a = Gen(); a.trace = trace
    on = [True]
    a.tr = lambda i: Gen.tr(a, i) if (on[0] or i >= 10) else None
    a('KSTART:\ns_cmp_ge_u32 s2, 256\ns_cbranch_scc1 K_end')
    if stamps: stamp_start(a)
    trace_init(a); trace_wave(a)
    a(f'''s_load_dwordx2 s[28:29], s[0:1], 104
    s_load_dwordx2 s[16:17], s[0:1], 104
    s_load_dwordx2 s[100:101], s[0:1], 96
    s_getpc_b64 s[6:7]
    s_lshr_b32 s3, s2, 3
    v_lshrrev_b32 v1, 4, v0
    v_lshl_add_u32 v1, s3, 4, v1
    v_lshlrev_b32 v1, 7, v1
    v_min_u32 v1, KEND - KSTART - 256, v1
    global_load_dword v255, v1, s[6:7]
    v_lshrrev_b32 v1, 6, v0
    v_and_b32 v0, 63, v0
    v_readfirstlane_b32 s{sW}, v1
    s_mov_b32 s18, {WS_END}
    s_mov_b32 s19, 0x20000
    s_cmp_ge_u32 s2, 144
    s_cbranch_scc1 K_side''')
    P = p3.make_p3(a, **p3kw)
    on[0] = trp == 'front'
    r = front.gen_G(a, opt)
    a.wait(vm='xs'); sig(a, r['sigX'])
    a.tr(9)
    on[0] = trp == 'p3'
    front.gen_Gconv_r(a)
    a('s_barrier')
    P['e1']()
    a.tr(0)
    a.wait(vm='cr', lg_all=True); a('s_barrier')
    P['e2']()
    a.tr(1)
    vmj = list(a.vm)
    front.gen_Gconv_main(a)
    a('s_branch K_p3\nK_side:')
    a.vm = []; a.lg = []
    on[0] = trp == 'front'
    front.gen_S(a, opt)
    on[0] = trp == 'p3'
    a('s_barrier')
    P['e1']()
    a.tr(0)
    P['e2']()
    a.tr(1)
    a(f's_mov_b32 s54, 0\ns_mov_b32 s27, {FL_Z}')
    assert a.vm[-len(vmj):] == vmj or vmj[-len(a.vm):] == a.vm
    a('K_p3:')
    a.lg = ['any']
    on[0] = trp == 'p3' and p3kw.get('trc') is None
    P['main']()
    if stamps:
        a.tr(10); a('s_waitcnt vmcnt(0) lgkmcnt(0)'); a.tr(11)
        trace_dump(a, 28, 0, P['W'] + 8)
        stamp_end(a, 28, 0, vtmp=P['W'])
    a('K_end:\ns_endpgm\n.fill 64, 4, 0xbf800000\nKEND:')
    return hz.fix(a.text())

def build(single=False, **kw):
    body = gen(**kw)
    t = build_file([(NAME, 256, 256, 163840)], [(NAME, body, 512, 102, 256)])
    if single: t = t.replace(f'; @launch kernel={NAME} grid', '; @launch grid')
    return t
if __name__ == '__main__':
    HEADER = open('recurrent_scan__ssm_conv_h3__mixer_s_mlp__prompt.s.ref').read().split('; Override launch')[0]
    kw = eval(sys.argv[2]) if len(sys.argv) > 2 else {}
    open(sys.argv[1], 'w').write(HEADER + build(single=True, **kw))
```

```python
import sys, hz
from common import *
import front, p3
from front import sW, sig
NAME = 'recurrent_scan__ssm_conv_h3__mixer_s_mlp__prompt_kernel'

def gen(stamps=False, trace=False, opt={}, p3kw={}, trp='front', dbg=False):
    a = Gen(); a.trace = trace
    on = [True]
    a.tr = lambda i: Gen.tr(a, i) if (on[0] or i >= 10) else None
    a('KSTART:\ns_cmp_ge_u32 s2, 256\ns_cbranch_scc1 K_end')
    if stamps: stamp_start(a)
    def dbgpt(i, inv=False):
        if not dbg: return
        l = a.newlabel('DB')
        a(f's_cmp_lg_u32 s{sW}, 0\ns_cbranch_scc1 {l}\ns_memrealtime s[96:97]\ns_waitcnt lgkmcnt(0)' if not inv else f's_cmp_lg_u32 s{sW}, 0\ns_cbranch_scc1 {l}\ns_not_b32 s96, s98')
        a(f's_atomic_umax s96, s[100:101], {4*i}\ns_waitcnt lgkmcnt(0)\n{l}:')
    if dbg: a('s_memrealtime s[98:99]')
    trace_init(a); trace_wave(a)
    a(f'''s_load_dwordx2 s[28:29], s[0:1], 104
    s_load_dwordx2 s[16:17], s[0:1], 104
    s_load_dwordx2 s[100:101], s[0:1], 96
    s_getpc_b64 s[6:7]
    s_lshr_b32 s3, s2, 3
    v_lshrrev_b32 v1, 4, v0
    v_lshl_add_u32 v1, s3, 4, v1
    v_lshlrev_b32 v1, 7, v1
    v_min_u32 v1, KEND - KSTART - 256, v1
    global_load_dword v255, v1, s[6:7]
    v_lshrrev_b32 v1, 6, v0
    v_and_b32 v0, 63, v0
    v_readfirstlane_b32 s{sW}, v1
    s_mov_b32 s18, {WS_END}
    s_mov_b32 s19, 0x20000
    s_cmp_ge_u32 s2, 144
    s_cbranch_scc1 K_side''')
    P = p3.make_p3(a, **p3kw)
    on[0] = trp == 'front'
    r = front.gen_G(a, opt)
    a.wait(vm='xs'); sig(a, r['sigX'])
    a.tr(9)
    if dbg: a('s_memrealtime s[94:95]')
    on[0] = trp == 'p3'
    front.gen_Gconv_r(a)
    a('s_barrier')
    P['e1']()
    a.tr(0)
    a.wait(vm='cr', lg_all=True); a('s_barrier')
    P['e2']()
    a.tr(1)
    vmj = list(a.vm)
    front.gen_Gconv_main(a)
    a('s_branch K_p3\nK_side:')
    a.vm = []; a.lg = []
    on[0] = trp == 'front'
    front.gen_S(a, opt)
    on[0] = trp == 'p3'
    if dbg: a('s_memrealtime s[94:95]')
    a('s_barrier')
    P['e1']()
    a.tr(0)
    P['e2']()
    a.tr(1)
    a(f's_mov_b32 s54, 0\ns_mov_b32 s27, {FL_Z}')
    assert a.vm[-len(vmj):] == vmj or vmj[-len(a.vm):] == a.vm
    a('K_p3:')
    if dbg: a('s_memrealtime s[92:93]')
    a.lg = ['any']
    on[0] = trp == 'p3' and p3kw.get('trc') is None
    P['main']()
    if dbg:
        a('s_waitcnt vmcnt(0) lgkmcnt(0)')
        dbgpt(2); dbgpt(1, True)
        l = a.newlabel('DB')
        a(f's_cmp_lg_u32 s{sW}, 0\ns_cbranch_scc1 {l}\ns_atomic_umax s98, s[100:101], 12\ns_atomic_umax s92, s[100:101], 24\ns_cmp_ge_u32 s2, 144\ns_cselect_b32 s3, 20, 16\ns_atomic_umax s94, s[100:101], s3\n{l}:')
    if stamps:
        a.tr(10); a('s_waitcnt vmcnt(0) lgkmcnt(0)'); a.tr(11)
        trace_dump(a, 28, 0, P['W'] + 8)
        stamp_end(a, 28, 0, vtmp=P['W'])
    a('K_end:\ns_endpgm\n.fill 64, 4, 0xbf800000\nKEND:')
    return hz.fix(a.text())

def build(single=False, **kw):
    body = gen(**kw)
    t = build_file([(NAME, 256, 256, 163840)], [(NAME, body, 512, 102, 256)])
    if single: t = t.replace(f'; @launch kernel={NAME} grid', '; @launch grid')
    return t
if __name__ == '__main__':
    HEADER = open('recurrent_scan__ssm_conv_h3__mixer_s_mlp__prompt.s.ref').read().split('; Override launch')[0]
    kw = eval(sys.argv[2]) if len(sys.argv) > 2 else {}
    open(sys.argv[1], 'w').write(HEADER + build(single=True, **kw))
```

```python
from asmlib import *
import struct
MAT = 2048 * 576 * 2
WS_HF   = 0
WS_X1F  = 1 * MAT
WS_KVR  = 2 * MAT
WS_ZT   = 3 * MAT
WS_PF   = 4 * MAT
WS_ST1  = 12 * MAT
WS_ST2  = WS_ST1 + 16384
WS_CS3  = WS_ST2 + 9 * 16384
import os
FLS = int(os.environ.get('FLS', 4352))
WS_FL   = WS_CS3 + 9 * 4608 * 4
FL_H, FL_X, FL_W3, FL_W4, FL_KV, FL_Z = [WS_FL + FLS * i for i in (128, 192, 224, 232, 240, 249)]
WS_TS   = 13 * MAT
WBYTES  = 576 * 4608 * 2
WS_WP3  = 14 * MAT
WS_WP4  = WS_WP3 + WBYTES
WS_END  = WS_WP4 + WBYTES

def f2u(x):
    return struct.unpack('<I', struct.pack('<f', x))[0]
def fhex(x):
    return '0x%08x' % f2u(x)

class Gen(Asm):
    def __init__(self):
        super().__init__()
        self.vm = []
        self.lg = []
    def vmem(self, s, tag=None):
        self(s); self.vm.append(tag)
    def lds(self, s, tag=None):
        self(s); self.lg.append(tag)
    def _n(self, q, tags):
        if not isinstance(tags, (list, tuple, set)) or (isinstance(tags, tuple)): tags = [tags]
        last = -1
        for i, t in enumerate(q):
            if t in tags: last = i
        if last < 0: return None
        return len(q) - 1 - last
    def wait(self, vm=None, lg=None, vm_all=False, lg_all=False):
        parts = []
        if vm_all: nv = 0 if self.vm else None
        else: nv = self._n(self.vm, vm) if vm is not None else None
        if lg_all: nl = 0 if self.lg else None
        else: nl = self._n(self.lg, lg) if lg is not None else None
        if nv is not None:
            nv = min(nv, 63)
            parts.append(f'vmcnt({nv})'); self.vm = self.vm[len(self.vm) - nv:] if nv else []
        if nl is not None:
            nl = min(nl, 15)
            parts.append(f'lgkmcnt({nl})'); self.lg = self.lg[len(self.lg) - nl:] if nl else []
        if parts: self('s_waitcnt ' + ' '.join(parts))
    trace = False
    def tr(self, i):
        if self.trace: self(f's_mem{"real" if self.trace == 2 else ""}time s[{68+2*i}:{69+2*i}]')
    def srd(self, d, lo, hi, size):
        self(f's_mov_b32 s{d}, s{lo}\ns_mov_b32 s{d+1}, s{hi}\ns_mov_b32 s{d+2}, {size}\ns_mov_b32 s{d+3}, 0x20000')

GELU_C0 = -2.0 * 1.4426950408889634 * 0.7978845608028654
GELU_C1 = GELU_C0 * 0.044715

def stamp_start(a, s=92):
    a(f's_memrealtime s[{s}:{s+1}]\ns_memtime s[{s+4}:{s+5}]')
def stamp_end(a, ws_lo, kidx, s=92, vtmp=0):
    a(f'''s_memrealtime s[{s+2}:{s+3}]
    s_memtime s[{s+6}:{s+7}]
    s_waitcnt lgkmcnt(0)
    s_lshl_b32 s{s+1}, s2, 4
    s_add_u32 s{s+1}, s{s+1}, {WS_TS + kidx * 16384}
    s_sub_u32 s{s+6}, s{s+6}, s{s+4}
    s_getreg_b32 s{s+7}, hwreg(HW_REG_XCC_ID)
    v_mov_b32 v{vtmp}, s{s}
    v_mov_b32 v{vtmp+1}, s{s+2}
    v_mov_b32 v{vtmp+2}, s{s+6}
    v_mov_b32 v{vtmp+3}, s{s+7}
    v_mov_b32 v{vtmp+4}, s{s+1}
    global_store_dwordx4 v{vtmp+4}, v[{vtmp}:{vtmp+3}], s[{ws_lo}:{ws_lo+1}]''')

def trace_init(a):
    if a.trace:
        for i in range(12): a(f's_mov_b32 s{68+2*i}, 0')
def trace_dump(a, ws_lo, kidx, vtmp, s=92):
    if not a.trace: return
    a('s_waitcnt lgkmcnt(0)')
    for i in range(12):
        if a.trace != 2: a(f's_sub_u32 s{68+2*i}, s{68+2*i}, s{s+4}')
        a(f'v_mov_b32 v{vtmp+i}, s{68+2*i}')
    a(f's_lshl_b32 s68, s2, 4\ns_add_u32 s68, s68, s67\ns_lshl_b32 s68, s68, 6\ns_add_u32 s68, s68, {WS_TS + 65536 + kidx * 524288}\nv_mov_b32 v{vtmp+12}, s68')
    for i in range(3): a(f'global_store_dwordx4 v{vtmp+12}, v[{vtmp+4*i}:{vtmp+4*i+3}], s[{ws_lo}:{ws_lo+1}] offset:{16*i}')
def trace_wave(a):
    if a.trace: a('v_lshrrev_b32 v1, 6, v0\ns_nop 0\nv_readfirstlane_b32 s67, v1')

def touch_code(a, label, nbytes, sp, vaddr, vdst, uniq):
    a(f's_getpc_b64 s[{sp}:{sp+1}]\n{uniq}:\ns_add_u32 s{sp}, s{sp}, {label}-{uniq}\ns_addc_u32 s{sp+1}, s{sp+1}, 0\nv_lshlrev_b32 v{vaddr}, 7, v0')
    n = (nbytes + 8191) // 8192
    for i in range(n):
        if i == n - 1:
            a(f'v_min_u32 v{vaddr}, {nbytes - 4}, v{vaddr}')
        a(f'global_load_dword v{vdst}, v{vaddr}, s[{sp}:{sp+1}]')
        if i < n - 1: a(f'v_add_u32 v{vaddr}, 8192, v{vaddr}')
```

```python
from common import *
SPIN_MAX = 200000
sW = 23
SC = 'sc1'
NT = 'nt'

def bf16r(d, s): return [f'v_cvt_pk_bf16_f32 v{d}, v{s}, v{s}', f'v_lshlrev_b32 v{d}, 16, v{d}']
def unp(d, s, i): return f'v_lshlrev_b32 v{d}, 16, v{s+i//2}' if i % 2 == 0 else f'v_and_b32 v{d}, 0xffff0000, v{s+i//2}'

def spin(a, base, areg, target, first_loaded=False, sleep=2, wg=False, vec=False):
    l = a.newlabel('SP'); l2 = a.newlabel('OK')
    if wg: a(f's_cmp_ge_u32 s{sW}, {int(wg)}\ns_cbranch_scc1 {l2}')
    if not first_loaded: a(f's_load_dword s4, s[{base}:{base+1}], {areg} glc')
    a(f'''s_mov_b32 s3, 0
    {l}:
    s_waitcnt lgkmcnt(0)
    s_cmp_ge_u32 s4, {target}
    s_cbranch_scc1 {l2}
    s_add_u32 s3, s3, 1
    s_cmp_gt_u32 s3, {SPIN_MAX}
    s_cbranch_scc1 {l2}''')
    if sleep: a(f's_sleep {sleep}')
    if vec: a(f'v_mov_b32 v254, {areg}\nglobal_load_dword v255, v254, s[{base}:{base+1}] sc1\ns_waitcnt vmcnt(0)\nv_readfirstlane_b32 s4, v255\ns_nop 0')
    else: a(f's_load_dword s4, s[{base}:{base+1}], {areg} glc')
    a(f's_branch {l}\n{l2}:')
    if wg: a('s_waitcnt lgkmcnt(0)\ns_barrier')
    a.lg = []
def check_go(a): spin(a, 100, '0', 4, sleep=32)
def sig(a, areg, val=1): a(f's_mov_b32 s5, {val}\ns_atomic_add s5, s[28:29], {areg}')

class Sched:
    def __init__(self, a): self.a = a; self.q = []
    def add(self, ops): self.q += ops
    def emit(self, op):
        a = self.a
        if isinstance(op, str): a(op)
        elif op[0] == 'wait': a.wait(lg=op[1])
        elif op[0] == 'waitvm': a.wait(vm=op[1])
        elif op[0] == 'lds': a.lds(op[1], op[2])
        elif op[0] == 'vmem': a.vmem(op[1], op[2])
    def fill(self, units):
        while self.q and units > 0:
            op = self.q.pop(0); self.emit(op)
            if isinstance(op, str): units -= 2 if op[:5] in ('v_exp', 'v_rcp', 'v_sqr') else 1
            elif op[0] in ('lds',): units -= 1
            elif op[0] == 'vmem': units -= 2
    def flush(self): self.fill(1 << 30)

CSL = 147456
W2B = 73728

def gen_G(a, opt):
    V = Regs(4, 256)
    X = V.alloc('x', 16, 4); WF = V.alloc('wf', 32, 4); ACC = V.alloc('acc', 32, 4)
    SUM = V.alloc('sum', 8, 4); GR = V.alloc('gr', 8, 4); CSA = V.alloc('csa', 8, 4); ONE = V.alloc('one', 4, 4)
    CSR = V.alloc('csr', 32, 4); TT = V.alloc('tt', 32, 4); PKD = SUM; XN = CSR
    ST = V.alloc('st', 16, 4)
    KC = V.alloc('kc', 4, 2); KRW = V.alloc('krw', 8, 4)
    vXs = V.alloc('xs', 2); vWs = V.alloc('ws', 2); vXr = V.alloc('xr', 2); vTr = V.alloc('tr', 8); vHa = V.alloc('ha', 8)
    vCs = V.alloc('cs', 2); vL16 = V.alloc('l16'); vDg = V.alloc('dg'); vRow = V.alloc('row'); vW2 = V.alloc('w2')
    assert TT + 32 <= 200
    sMt, sC, sKb, sT, sT2, sXo, sWo, sG32, sW2, sW1 = 20, 21, 22, 24, 25, 26, 27, 30, 31, 32
    sSh = 34
    sMk = 40
    sXl, sWl = 56, 57
    a(f'''
    s_load_dwordx2 s[8:9], s[0:1], 0
    s_load_dwordx4 s[60:63], s[0:1], 56
    s_and_b32 s{sMt}, s2, 7
    s_lshl_b32 s{sMt}, s{sMt}, 1
    s_bfe_u32 s{sT}, s2, 0x10003
    s_add_u32 s{sMt}, s{sMt}, s{sT}
    s_lshr_b32 s{sC}, s2, 4
    s_add_u32 s{sKb}, s{sC}, s{sMt}
    s_mul_i32 s{sT}, s{sKb}, 57
    s_lshr_b32 s{sT}, s{sT}, 9
    s_mul_i32 s{sT}, s{sT}, 9
    s_sub_u32 s{sKb}, s{sKb}, s{sT}
    s_lshl_b32 s{sG32}, s{sMt}, 2
    s_add_u32 s{sG32}, s{sG32}, s{sW}
    s_mul_i32 s{sXo}, s{sG32}, {32*1152}
    s_mul_i32 s{sWo}, s{sW}, {16*1152}
    s_lshl_b32 s{sT}, s{sC}, 7
    s_add_u32 s{sWo}, s{sWo}, s{sT}
    s_lshl_b32 s{sXl}, s{sW}, 12
    s_add_u32 s{sXl}, s{sXl}, 8192
    s_lshl_b32 s{sWl}, s{sW}, 11
    s_and_b32 s{sW2}, s{sW}, 2
    s_and_b32 s{sW1}, s{sW}, 1
    v_lshrrev_b32 v1, 3, v0
    v_mul_u32_u24 v1, 1152, v1
    v_and_b32 v2, 7, v0
    v_lshrrev_b32 v3, 4, v0
    v_xor_b32 v{vXs}, v2, v3
    v_lshl_add_u32 v{vXs}, v{vXs}, 4, v1
    v_xor_b32 v{vXs+1}, 64, v{vXs}
    v_lshlrev_b32 v{vW2}, 1, v3
    v_xor_b32 v{vW2}, v2, v{vW2}
    v_lshl_add_u32 v{vW2}, v{vW2}, 4, v1
    v_and_b32 v3, 1, v3
    v_lshlrev_b32 v3, 1, v3
    v_xor_b32 v{vWs}, v2, v3
    v_lshl_add_u32 v{vWs}, v{vWs}, 4, v1
    v_xor_b32 v{vWs+1}, 64, v{vWs}
    s_mov_b32 s10, {MAT}
    s_mov_b32 s11, 0x20000
    s_mov_b32 s14, {576*1152}
    s_mov_b32 s15, 0x20000
    s_waitcnt lgkmcnt(0)
    s_mov_b32 s12, s60
    s_mov_b32 s13, s61
    ''')
    a.tr(0)
    def issue(t):
        sl = (t % 3) * 24576
        ops = [f's_lshl_b32 s{sT}, s{sKb}, 7\ns_add_u32 s{sT}, s{sT}, s{sXo}\ns_mul_i32 s{sT2}, s{sKb}, {64*1152}\ns_add_u32 s{sT2}, s{sT2}, s{sWo}']
        for i in range(4):
            ops.append(f's_add_u32 m0, s{sXl}, {sl + i*1024}' + (f'\ns_add_u32 s{sT}, s{sT}, {8*1152}' if i else '\ns_nop 0'))
            ops.append(('vmem', f'buffer_load_dwordx4 v{vXs + i%2}, s[8:11], s{sT} offen {opt.get("xnt", "")} lds', ('st', t)))
        for j in range(2):
            ops.append(f's_add_u32 m0, s{sWl}, {sl + j*1024}' + (f'\ns_add_u32 s{sT2}, s{sT2}, {8*1152}' if j else '\ns_nop 0'))
            ops.append(('vmem', f'buffer_load_dwordx4 v{vWs + j}, s[12:15], s{sT2} offen {opt.get("wnt", "")} lds', ('st', t)))
        ops.append(f's_add_u32 s{sKb}, s{sKb}, 1\ns_cmp_eq_u32 s{sKb}, 9\ns_cselect_b32 s{sKb}, 0, s{sKb}')
        return ops
    S = Sched(a)
    S.add(issue(0)); S.flush()
    a('s_barrier')
    S.add(issue(1)); S.flush()
    gen_Gearly(a, KRW)
    a(f'''
    v_lshlrev_b32 v{vL16}, 4, v0
    v_and_b32 v1, 15, v0
    v_lshrrev_b32 v2, 4, v0
    s_lshl_b32 s{sT}, s{sW1}, 2
    v_add_u32 v3, s{sT}, v2
    v_lshrrev_b32 v{vXr}, 1, v1
    v_xor_b32 v3, v3, v{vXr}
    v_lshlrev_b32 v3, 4, v3
    v_lshl_add_u32 v3, v1, 7, v3
    v_add_u32 v{vXr}, s{sXl}, v3
    v_xor_b32 v{vXr+1}, 64, v{vXr}
    s_lshl_b32 s{sT}, s{sG32}, 5
    v_add_u32 v{vRow}, s{sT}, v1
    v_lshrrev_b32 v3, 2, v1
    v_lshl_add_u32 v{vDg}, v3, 4, v1
    v_lshlrev_b32 v{vDg}, 2, v{vDg}
    v_lshl_add_u32 v{vTr}, v2, 3, v3
    v_lshlrev_b32 v{vTr}, 7, v{vTr}
    v_lshrrev_b32 v3, 1, v3
    v_and_b32 v{vTr+1}, 1, v2
    v_lshl_add_u32 v3, v{vTr+1}, 1, v3
    v_xor_b32 v3, s{sW2}, v3
    v_lshl_add_u32 v{vTr}, v3, 5, v{vTr}
    v_and_b32 v3, 3, v0
    v_lshl_add_u32 v{vTr}, v3, 3, v{vTr}
    s_lshl_b32 s{sT}, s{sW1}, 12
    v_add_u32 v{vTr}, s{sT}, v{vTr}
    s_lshl_b32 s{sT}, s{sW2}, 6
    s_add_u32 s{sT}, s{sT}, {CSL}
    v_lshl_add_u32 v{vCs}, v2, 4, s{sT}
    v_xor_b32 v{vCs+1}, 128, v{vCs}
    ''')
    for j in range(1, 4): a(f'v_xor_b32 v{vTr+j}, {32*j}, v{vTr}')
    for j in range(4): a(f'v_xor_b32 v{vTr+4+j}, 4096, v{vTr+j}')
    for i in range(4): a(f'v_mov_b32 v{ONE+i}, 0x3f803f80')
    a(f'v_mov_b32 v{KC}, {fhex(GELU_C0)}\nv_mov_b32 v{KC+1}, {fhex(GELU_C0)}\nv_mov_b32 v{KC+2}, {fhex(GELU_C1)}\nv_mov_b32 v{KC+3}, {fhex(GELU_C1)}')
    a(f'v_and_b32 v3, 48, v0\ns_movk_i32 s33, 0x800')
    for j in range(4):
        a(f'''s_xor_b32 s{sT}, s{sW2}, {j}
        s_lshl_b32 s{sT2}, s{sC}, 2
        s_add_u32 s{sT}, s{sT}, s{sT2}
        s_lshr_b32 s58, s{sT}, 1
        s_lshl_b32 s58, s58, 10
        s_add_u32 s58, s58, {WS_HF + (j & 1) * 8}
        s_mul_i32 s{sT}, s{sT}, 57
        s_lshr_b32 s{sT}, s{sT}, 9
        s_lshr_b32 s{sT2}, s{sT}, 1
        s_add_u32 s{sT2}, s{sT2}, 1
        s_bitcmp1_b32 s{sT}, 0
        s_cselect_b32 s{sT}, -1, 1
        s_mul_i32 s{sSh+j}, s{sT}, s{sT2}''')
        for rt in range(2):
            a(f'''s_add_u32 s{sT}, s{sSh+j}, {16*rt}
            v_add_u32 v1, s{sT}, v{vRow}
            v_cmp_gt_u32 s[{sMk+2*(4*rt+j)}:{sMk+2*(4*rt+j)+1}], s33, v1
            v_and_b32 v1, 0x7ff, v1
            v_lshrrev_b32 v2, 4, v1
            v_mul_u32_u24 v2, 18432, v2
            v_and_b32 v1, 15, v1
            v_add_u32 v1, v1, v3
            v_lshl_add_u32 v1, v1, 4, v2
            v_add_u32 v{vHa+4*rt+j}, s58, v1''')
    def reads(k):
        t, uu = k // 2, k % 2; sl = (t % 3) * 24576; ops = []
        for rt in range(2): ops.append(('lds', f'ds_read_b128 {vr(X + 8*uu + 4*rt, 4)}, v{vXr+uu} offset:{sl + rt*2048}', ('r', k)))
        for j in range(4):
            for h in range(2): ops.append(('lds', f'ds_read_b64_tr_b16 {vr(WF + 16*uu + 4*j + 2*h, 2)}, v{vTr+4*uu+j} offset:{sl + h*512}', ('r', k)))
        return ops
    def mf(d, A, B, first): return f'v_mfma_f32_16x16x32_bf16 {vr(d, 4)}, {vr(A, 4)}, {vr(B, 4)}, {"0" if first else vr(d, 4)}'
    def mfmas(k):
        uu = k % 2; st = []; mm = []
        for rt in range(2):
            x = X + 8*uu + 4*rt
            st += [mf(SUM+4*rt, ONE, x, k == 0), mf(GR+4*rt, x, x, k == 0)]
        if uu == 0: st += [mf(CSA+4*j, WF + 4*j, ONE, k == 0) for j in range(2)]
        for j in range(4):
            for rt in range(2): mm.append(mf(ACC + 16*rt + 4*j, WF + 16*uu + 4*j, X + 8*uu + 4*rt, k == 0))
        return st + mm
    def stats_ops():
        ops = [f'v_and_b32 v1, 3, v0', f'v_cmp_eq_u32 vcc, 1, v1', f'v_cmp_eq_u32 s[58:59], 2, v1', f'v_cmp_eq_u32 s[64:65], 3, v1']
        for rt in range(2):
            g = GR + 4*rt
            ops += [f'v_cndmask_b32 v{g}, v{g}, v{g+1}, vcc', f'v_cndmask_b32 v{g}, v{g}, v{g+2}, s[58:59]', f'v_cndmask_b32 v{g}, v{g}, v{g+3}, s[64:65]',
                    ('lds', f'ds_bpermute_b32 v{g+1}, v{vDg}, v{g}', 'gr')]
        ch = [[], []]
        for rt in range(2):
            m, var, m1, r1, t0, t1, al, be = [ST + 8*rt + i for i in range(8)]
            def dn(dst, v): return bf16r(dst, v) + [f'v_add_f32 v{dst}, {fhex(1e-5)}, v{dst}'] + bf16r(dst, dst) + [f'v_sqrt_f32 v{dst}, v{dst}'] + bf16r(dst, dst) + [f'v_rcp_f32 v{dst}, v{dst}']
            o = [f'v_mul_f32 v{m}, {fhex(1/576)}, v{SUM+4*rt}'] + bf16r(m1, m) + [('wait', 'gr'), f'v_mul_f32 v{var}, {fhex(1/576)}, v{GR+4*rt+1}',
                 f'v_fma_f32 v{var}, -v{m}, v{m}, v{var}', f'v_max_f32 v{var}, 0, v{var}'] + dn(r1, var) + [f'v_sub_f32 v{t0}, v{m}, v{m1}', f'v_mul_f32 v{t0}, v{t0}, v{r1}',
                 f'v_mul_f32 v{var}, v{var}, v{r1}', f'v_mul_f32 v{var}, v{var}, v{r1}'] + bf16r(t0, t0) + dn(t1, var) + [f'v_fma_f32 v{t0}, v{m1}, v{r1}, v{t0}',
                 f'v_mul_f32 v{al}, v{r1}, v{t1}', f'v_mul_f32 v{be}, v{t0}, v{t1}', f'v_sub_f32 v{be}, 0, v{be}']
            ch[rt] = o
        for x, y in zip(ch[0], ch[1]): ops += [x, y]
        return ops
    XBL = 8192
    def xbops():
        ops = [f's_mov_b32 s12, s62\ns_mov_b32 s13, s63\ns_mov_b32 s{sKb}, s{sC}\ns_lshl_b32 s{sT}, s{sC}, 7\ns_add_u32 s{sT}, s{sT}, s{sXo}']
        for i in range(4):
            ops.append(f's_add_u32 m0, s{sXl}, {XBL - 8192 + i*1024}' + (f'\ns_add_u32 s{sT}, s{sT}, {8*1152}' if i else '\ns_nop 0'))
            ops.append(('vmem', f'buffer_load_dwordx4 v{vXs + i%2}, s[8:11], s{sT} offen lds', 'xb'))
        return ops
    def w2ops(t):
        ops = [f's_mul_i32 s{sT2}, s{sKb}, {64*1152}\ns_add_u32 s{sT2}, s{sT2}, s{sWo}']
        for j in range(2):
            ops.append(f's_add_u32 m0, s{sWl}, {W2B + t*8192 + j*1024}' + (f'\ns_add_u32 s{sT2}, s{sT2}, {8*1152}' if j else '\ns_nop 0'))
            ops.append(('vmem', f'buffer_load_dwordx4 v{vW2}, s[12:15], s{sT2} offen lds', 'w2'))
        ops.append(f's_add_u32 s{sKb}, s{sKb}, 1\ns_cmp_eq_u32 s{sKb}, 9\ns_cselect_b32 s{sKb}, 0, s{sKb}')
        return ops
    a.tr(1)
    for t in range(10):
        if t < 9: a.wait(vm=('st', t), lg_all=True)
        else: a.wait(lg_all=True)
        a('s_barrier')
        if t in (0, 4): a.tr(2 + t // 4)
        if t < 9:
            S.add(reads(2*t))
            if t == 0: S.flush()
            if t + 2 < 9: S.add(issue(t + 2))
            if t == 7: S.add(xbops() + sum([w2ops(i) for i in range(4)], []))
            if t == 8: S.add(sum([w2ops(i) for i in range(4, 9)], []))
        else:
            for par in range(2):
                for j in range(4): S.add([('lds', f'ds_read_b128 {vr(CSR + 16*par + 4*j, 4)}, v{vCs + j//2} offset:{par*256 + (j&1)*64}', 'cs')])
        if t > 0:
            ms = mfmas(2*t - 1)
            for i, m in enumerate(ms):
                a(m)
                if t == 9 and i == 5: S.add(stats_ops())
                S.fill(2 if t == 9 else 3)
        if t < 9:
            if t < 7: S.flush()
            S.q = reads(2*t + 1) + S.q
            a.wait(lg=('r', 2*t))
            ms = mfmas(2*t)
            for i, m in enumerate(ms):
                a(m); S.fill(2 if t < 7 else 3)
            S.flush()
            if t == 8:
                a(f's_lshl_b32 s{sT}, s{sW1}, 8\nv_add_u32 v1, s{sT}, v{vCs}')
                for j in range(2): a.lds(f'ds_write_b128 v1, {vr(CSA+4*j, 4)} offset:{64*j}', 'csw')
    S.flush()
    a.tr(4)
    a('s_load_dword s4, s[100:101], 0')
    a.wait(lg='cs')
    def pk(op, d, s0, s1, s2=None, sel=''): return f'{op} {vr(d, 2)}, {vr(s0, 2)}, {vr(s1, 2)}' + (f', {vr(s2, 2)}' if s2 is not None else '') + sel
    for i in range(8): a(pk('v_pk_add_f32', CSR + 2*i, CSR + 2*i, CSR + 16 + 2*i))
    a(f'''v_lshlrev_b32 v1, 3, v{vRow}
    s_mov_b32 s{sT}, {WS_ST1}
    s_cmp_eq_u32 s{sC}, 0
    s_cselect_b32 s{sT}, s{sT}, {WS_END}''')
    for rt in range(2): a.vmem(f'buffer_store_dwordx2 {vr(ST+8*rt+2, 2)}, v1, s[16:19], s{sT} offen offset:{128*rt} {SC}', 'hs')
    for rt in range(2):
        al = ST + 8*rt + 6; A_ = ACC + 16*rt; T_ = TT + 16*rt
        for i in range(8): a(pk('v_pk_mul_f32', T_+2*i, CSR+2*i, al, sel=' op_sel:[0,1] op_sel_hi:[1,1]'))
        for i in range(8): a(pk('v_pk_fma_f32', A_+2*i, A_+2*i, al, T_+2*i, sel=' op_sel_hi:[1,0,1]'))
        for i in range(8): a(pk('v_pk_mul_f32', T_+2*i, A_+2*i, A_+2*i))
        for i in range(8): a(pk('v_pk_fma_f32', T_+2*i, T_+2*i, KC+2, KC))
        for i in range(8): a(pk('v_pk_mul_f32', T_+2*i, T_+2*i, A_+2*i))
        for i in range(16): a(f'v_exp_f32 v{T_+i}, v{T_+i}')
        for i in range(8): a(f'v_pk_add_f32 {vr(T_+2*i, 2)}, {vr(T_+2*i, 2)}, 1.0 op_sel_hi:[1,0]')
        for i in range(16): a(f'v_rcp_f32 v{T_+i}, v{T_+i}')
        for i in range(8): a(pk('v_pk_mul_f32', A_+2*i, A_+2*i, T_+2*i))
        P_ = PKD + 8*rt
        for i in range(8): a(f'v_cvt_pk_bf16_f32 v{P_+i}, v{A_+2*i}, v{A_+2*i+1}')
        for i in range(8):
            mk = sMk + 2*(4*rt + i//2)
            a(f'v_cndmask_b32 v{P_+i}, 0, v{P_+i}, s[{mk}:{mk+1}]')
        for p in range(2):
            l1 = a.newlabel('HS'); l2 = a.newlabel('HE')
            a(f's_cmp_eq_u32 s{sSh+2*p}, s{sSh+2*p+1}\ns_cbranch_scc0 {l1}')
            a(f'buffer_store_dwordx4 {vr(P_+4*p, 4)}, v{vHa+4*rt+2*p}, s[16:19], 0 offen {SC}\ns_branch {l2}\n{l1}:')
            a(f'buffer_store_dwordx2 {vr(P_+4*p, 2)}, v{vHa+4*rt+2*p}, s[16:19], 0 offen {SC}')
            a(f'buffer_store_dwordx2 {vr(P_+4*p+2, 2)}, v{vHa+4*rt+2*p+1}, s[16:19], 0 offen {SC}\n{l2}:')
            a.vm.append('hs')
    a.tr(5)
    a(f'''v_and_b32 v1, 15, v0
    v_lshrrev_b32 v2, 5, v0
    v_lshrrev_b32 v3, 1, v1
    v_xor_b32 v2, v2, v3
    v_lshlrev_b32 v2, 4, v2
    v_lshl_add_u32 v2, v1, 7, v2
    v_bfe_u32 v3, v0, 4, 1
    v_lshl_add_u32 v2, v3, 3, v2
    s_add_u32 s{sT}, s{sXl}, {XBL - 8192}
    v_add_u32 v2, s{sT}, v2
    v_lshrrev_b32 v1, 2, v0
    v_lshlrev_b32 v3, 7, v1
    v_bfe_u32 v1, v1, 1, 2
    v_lshl_add_u32 v3, v1, 5, v3
    v_and_b32 v1, 3, v0
    v_lshl_add_u32 v3, v1, 3, v3
    v_add_u32 v{vTr}, {W2B}, v3''')
    for j in range(1, 4): a(f'v_xor_b32 v{vTr+j}, {32*j}, v{vTr}')
    for j in range(4): a(f'v_add_u32 v{vTr+4+j}, 36864, v{vTr+j}')
    a.wait(vm='xb')
    for t in range(4):
        a(f'v_xor_b32 v1, {32*t}, v2')
        for rt in range(2): a.lds(f'ds_read_b64 {vr(XN + 8*rt + 2*t, 2)}, v1 offset:{2048*rt}', 'xn')
    a.wait(lg='xn')
    for rt in range(2):
        m1 = ST + 8*rt + 2; T_ = TT + 16*rt; N_ = XN + 8*rt
        for i in range(16): a(unp(T_+i, N_, i))
        for i in range(8): a(pk('v_pk_add_f32', T_+2*i, T_+2*i, m1, sel=' op_sel_hi:[1,0] neg_lo:[0,1] neg_hi:[0,1]'))
        for i in range(8): a(f'v_cvt_pk_bf16_f32 v{N_+i}, v{T_+2*i}, v{T_+2*i+1}')
        for i in range(16): a(unp(T_+i, N_, i))
        for i in range(8): a(pk('v_pk_mul_f32', T_+2*i, T_+2*i, m1, sel=' op_sel:[0,1] op_sel_hi:[1,1]'))
        for i in range(8): a(f'v_cvt_pk_bf16_f32 v{N_+i}, v{T_+2*i}, v{T_+2*i+1}')
    spin(a, 100, '0', 4, first_loaded=True, sleep=4, vec=True)
    a.wait(vm='hs')
    lh = a.newlabel('HSG')
    a(f'''s_barrier
    s_cmp_eq_u32 s{sW}, 3
    s_cbranch_scc1 {lh}
    s_add_u32 s{sT}, s{sMt}, s{sW}
    s_add_u32 s{sT}, s{sT}, 15
    s_and_b32 s{sT}, s{sT}, 15
    s_lshl_b32 s{sT}, s{sT}, 2
    s_add_u32 s{sT}, s{sT}, s{sW}
    s_mul_i32 s{sT}, s{sT}, {FLS}
    s_add_u32 s41, s{sT}, {FL_H}
    s_mov_b32 s5, 1
    s_atomic_add s5, s[28:29], s41
    {lh}:
    s_mul_i32 s40, s{sG32}, {FLS}
    s_add_u32 s40, s40, {FL_H}
    s_add_u32 s27, s2, 432
    s_lshr_b32 s42, s27, 6
    s_mul_i32 s42, s42, {FLS}
    s_add_u32 s42, s42, {FL_KV}
    s_cmp_eq_u32 s{sW}, 3
    s_cselect_b32 s40, s42, s40
    s_cselect_b32 s43, 32, 9''')
    a.tr(6)
    gen_Gconv_build(a, KRW, WF)
    a(f's_mul_i32 s{sXo}, s{sG32}, {2*18432}\ns_mov_b32 s{sKb}, s{sC}\ns_mov_b32 s12, s6\ns_mov_b32 s13, s7\ns_mov_b32 s14, {WBYTES}')
    spin(a, 28, 's40', 's43', sleep=0, wg=4)
    a.tr(7)
    def hld(k):
        ops = []
        if k % 2 == 0:
            ops.append(f's_lshl_b32 s{sT}, s{sKb}, 11\ns_add_u32 s{sT}, s{sT}, s{sXo}\ns_add_u32 s{sT2}, s{sT}, 18432\ns_add_u32 s{sKb}, s{sKb}, 1\ns_cmp_eq_u32 s{sKb}, 9\ns_cselect_b32 s{sKb}, 0, s{sKb}')
        for rt in range(2):
            ops.append(('vmem', f'buffer_load_dwordx4 {ar(8*k + 4*rt, 4)}, v{vL16}, s[16:19], s{sT if rt == 0 else sT2} offen offset:{(k%2)*1024} {SC}', ('h', k)))
        return ops
    assert WS_HF == 0
    LA = opt.get('hla', 5)
    for k in range(LA): S.add(hld(k))
    S.flush()
    def w2rd(k):
        ops = []
        for j in range(4):
            for h in range(2):
                o = k * 4096 + h * 2048; hi = o >= 36864
                ops.append(('lds', f'ds_read_b64_tr_b16 {vr(WF + 16*(k%2) + 4*j + 2*h, 2)}, v{vTr + 4*hi + j} offset:{o - 36864*hi}', ('r2', k)))
        return ops
    S.add(w2rd(0)); S.flush()
    for k in range(18):
        if k + 1 < 18: S.add(w2rd(k + 1))
        if k + LA < 18: S.add(hld(k + LA))
        if k + LA == 18:
            S.add([f's_lshl_b32 s54, s{sW}, 10\ns_add_u32 m0, s54, {RO}\ns_lshl_b32 s54, s27, 12\ns_add_u32 s54, s54, {WS_KVR}',
                   ('vmem', f'buffer_load_dwordx4 v252, s[16:19], s54 offen {SC} lds', 'cr')])
        a.wait(vm=('h', k), lg=('r2', k))
        for j in range(4):
            for rt in range(2):
                d = ACC + 16*rt + 4*j
                a(f'v_mfma_f32_16x16x32_bf16 {vr(d, 4)}, {vr(WF + 16*(k%2) + 4*j, 4)}, {ar(8*k + 4*rt, 4)}, {"0" if k == 0 else vr(d, 4)}')
                S.fill(2)
        S.flush()
    a.tr(8)
    a(f's_and_b32 s7, s2, 3\ns_lshl_b32 s7, s7, 1\ns_bfe_u32 s6, s2, 0x10003\ns_add_u32 s7, s7, s6\ns_mul_i32 s7, s7, {FLS}\ns_add_u32 s7, s7, {FL_W3}\ns_cmp_lg_u32 s{sW}, 0\ns_cbranch_scc1 G_np\ns_load_dword s4, s[28:29], s7 glc\nG_np:')
    a(f's_mov_b32 s6, 0x3f80\ns_mov_b32 s7, 0x3f800000\ns_lshl_b32 s{sT}, s{sC}, 11\ns_add_u32 s{sT}, s{sT}, s{sXo}\ns_add_u32 s{sT}, s{sT}, {WS_X1F}')
    for rt in range(2):
        A_ = ACC + 16*rt; P_ = PKD + 8*rt; N_ = XN + 8*rt
        for i in range(8): a(f'v_cvt_pk_bf16_f32 v{P_+i}, v{A_+2*i}, v{A_+2*i+1}')
        for i in range(16): a(unp(A_+i, P_, i))
        for i in range(16): a(f'v_dot2c_f32_bf16 v{A_+i}, s{6 + i%2}, v{N_+i//2}')
        for i in range(8): a(f'v_cvt_pk_bf16_f32 v{P_+i}, v{A_+2*i}, v{A_+2*i+1}')
        if rt: a(f's_add_u32 s{sT}, s{sT}, 18432')
        for p in range(2): a.vmem(f'buffer_store_dwordx4 {vr(P_+4*p, 4)}, v{vL16}, s[16:19], s{sT} offen offset:{1024*p} {SC}', 'xs')
    SS = TT
    for rt in range(2):
        a(f'v_mov_b32 v{SS+2*rt}, 0\nv_mov_b32 v{SS+2*rt+1}, 0')
    for i in range(8):
        for rt in range(2):
            a(f'v_dot2c_f32_bf16 v{SS+2*rt}, v{ONE}, v{PKD+8*rt+i}\nv_dot2c_f32_bf16 v{SS+2*rt+1}, v{PKD+8*rt+i}, v{PKD+8*rt+i}')
    a(f'''v_permlane16_swap_b32 v{SS}, v{SS+2}
    v_permlane16_swap_b32 v{SS+1}, v{SS+3}
    v_add_f32 v{SS}, v{SS}, v{SS+2}
    v_add_f32 v{SS+1}, v{SS+1}, v{SS+3}
    v_mov_b32 v{SS+2}, v{SS}
    v_mov_b32 v{SS+3}, v{SS+1}
    v_permlane32_swap_b32 v{SS}, v{SS+2}
    v_permlane32_swap_b32 v{SS+1}, v{SS+3}
    v_add_f32 v{SS}, v{SS}, v{SS+2}
    v_add_f32 v{SS+1}, v{SS+1}, v{SS+3}
    v_and_b32 v1, 31, v0
    v_lshlrev_b32 v1, 3, v1
    s_lshl_b32 s{sT}, s{sC}, 14
    s_lshl_b32 s{sT2}, s{sG32}, 8
    s_add_u32 s{sT}, s{sT}, s{sT2}
    s_add_u32 s{sT}, s{sT}, {WS_ST2}''')
    a.vmem(f'buffer_store_dwordx2 {vr(SS, 2)}, v1, s[16:19], s{sT} offen {SC}', 'xs')
    a(f's_lshr_b32 s{sT}, s{sG32}, 1\ns_mul_i32 s{sT}, s{sT}, {FLS}\ns_add_u32 s89, s{sT}, {FL_X}')
    return dict(sigX='s89')

CH = 37888; RO = 33280; CST = 4160

def conv_srd(a, sD):
    a(f'''s_lshl_b32 s24, s{sD}, 12
    s_add_u32 s8, s60, s24
    s_addc_u32 s9, s61, 0
    s_mov_b32 s10, 4096
    s_mov_b32 s11, 0x20000
    s_mov_b32 s12, s62
    s_mov_b32 s13, s63
    s_mov_b32 s14, 1152
    s_mov_b32 s15, 0x20000''')
def build_ops(D, E, vA, off):
    O = E + 6; O2 = E + 12
    ops = [f'v_mov_b32 v{E+i}, v{D+1+i}' for i in range(6)] + [f'v_alignbit_b32 v{O+i}, v{D+i+1}, v{D+i}, 16' for i in range(6)] + [f'v_alignbit_b32 v{O2+i}, v{D+i+2}, v{D+i+1}, 16' for i in range(6)]
    src = {1: O, 2: E, 3: O2, 4: D+2, 5: O+2, 6: E+2, 7: O2+2, 8: D+4}
    ops += [('lds', f'ds_write_b128 v{vA}, {vr(src[c], 4)} offset:{(c-1)*CST + 16 + off}', 'cw') for c in (4, 8, 2, 6, 1, 5, 3, 7)]
    return ops
def zero_fill(a, Z, sLb):
    a(f'''v_mov_b32 v{Z}, 0
    v_mov_b32 v{Z+1}, 0
    v_mov_b32 v{Z+2}, 0
    v_mov_b32 v{Z+3}, 0
    v_lshlrev_b32 v1, 4, v0
    v_add_u32 v1, {RO + 4096}, v1
    v_and_b32 v3, 7, v0
    v_mul_u32_u24 v3, {CST}, v3
    v_cmp_gt_u32 vcc, 32, v0
    s_nop 1
    v_cndmask_b32 v1, v3, v1, vcc
    v_add_u32 v1, {sLb}, v1''')
    a.lds(f'ds_write_b128 v1, {vr(Z, 4)}', 'z')

def gen_Gearly(a, RAW):
    a(f'''s_load_dwordx4 s[40:43], s[0:1], 32
    s_load_dwordx2 s[6:7], s[0:1], 80
    s_lshl_b32 s44, s{sW}, 10
    v_lshl_add_u32 v252, v0, 4, s44
    v_subrev_u32 v3, 16, v252
    s_mov_b32 s48, s24
    s_mov_b32 s49, s25
    s_mov_b32 s50, s26
    s_mov_b32 s51, s27
    s_lshl_b32 s52, s2, 1
    s_lshr_b32 s53, s{sW}, 1
    s_add_u32 s52, s52, s53''')
    rp_decode(a, 4, 52, 91, 89, 90)
    a(f'''s_and_b32 s24, s{sW}, 1
    s_lshl_b32 s25, s24, 10
    s_add_u32 s89, s89, s25
    s_mul_i32 s24, s24, {32*1152}
    s_add_u32 s91, s91, s24
    s_mov_b32 s24, s48
    s_mov_b32 s25, s49
    s_mov_b32 s26, s50
    s_mov_b32 s27, s51
    s_add_u32 s52, s2, 432
    s_lshl_b32 s53, s52, 12
    s_lshl_b32 s52, s52, 1
    s_mov_b32 s46, 4096
    s_mov_b32 s47, 0x20000
    s_mov_b32 s50, 1152
    s_mov_b32 s51, 0x20000
    s_waitcnt lgkmcnt(0)
    s_add_u32 s44, s40, s53
    s_addc_u32 s45, s41, 0
    s_mov_b32 s48, s42
    s_mov_b32 s49, s43''')
    a.vmem(f'buffer_load_dwordx4 {vr(RAW, 4)}, v3, s[44:47], 0 offen {NT}', 'ck')
    a.vmem(f'buffer_load_dwordx4 {vr(RAW+4, 4)}, v252, s[44:47], 0 offen {NT}', 'ck')
    a.vmem(f'buffer_load_ushort v253, off, s[48:51], s52', 'ck')
def gen_Gconv_build(a, RAW, E):
    S = Sched(a)
    zero_fill(a, E, 0)
    a.wait(vm='ck')
    S.add(build_ops(RAW, E + 4, 252, 0)); S.flush()
def gen_Gconv_r(a):
    a(f's_add_u32 s27, s2, 432\ns_lshr_b32 s54, s27, 6\ns_mul_i32 s54, s54, {FLS}\ns_add_u32 s54, s54, {FL_KV}')
    spin(a, 28, 's54', 32, sleep=4, wg=True)
    a(f's_lshl_b32 s54, s{sW}, 10\ns_add_u32 m0, s54, {RO}\ns_lshl_b32 s54, s27, 12\ns_add_u32 s54, s54, {WS_KVR}')
    a.vmem(f'buffer_load_dwordx4 v252, s[16:19], s54 offen {SC} lds', 'cr')
def gen_Gconv_main(a, hook=None, extra=[], mid=None, mid_at=4):
    ACC = 36; FB = 4; vF, vG, vT = 20, 21, 22; PS = 156
    a(f'''
    v_and_b32 v3, 7, v0
    v_mul_u32_u24 v3, {CST}, v3
    v_bfe_u32 v1, v0, 3, 1
    v_lshrrev_b32 v{vT}, 4, v0
    v_add_u32 v1, v1, v{vT}
    v_lshl_add_u32 v{vF}, v1, 4, v3
    s_lshl_b32 s54, s{sW}, 6
    v_add_u32 v{vF}, s54, v{vF}
    v_and_b32 v1, 15, v0
    v_lshlrev_b32 v1, 5, v1
    v_lshlrev_b32 v{vG}, 4, v{vT}
    v_sub_u32 v{vG}, v{vG}, v1
    s_add_u32 s54, s54, {RO + 4064 - 14*256}
    v_add_u32 v{vG}, s54, v{vG}''')
    def grd(y): a.lds(f'ds_read_b128 {ar(4*(y+1), 4)}, v{vG} offset:{(14-y)*256}', ('g', y))
    def frd(x): a.lds(f'ds_read_b128 {vr(FB + 4*(x%4), 4)}, v{vF} offset:{x*256}', ('f', x))
    frd(0)
    for y in range(14, -2, -2): grd(y)
    frd(1)
    for y in range(13, -2, -2): grd(y)
    frd(2)
    S = Sched(a)
    S.add(f'''v_lshrrev_b32 v1, 2, v0
    v_and_b32 v1, 8, v1
    v_xor_b32 v1, v1, v0
    s_lshl_b32 s54, s{sW}, 13
    s_add_u32 s54, s54, {CH}
    v_lshl_add_u32 v1, v1, 4, s54
    v_bfe_u32 v2, v0, 1, 4
    v_and_b32 v3, 1, v0
    v_lshlrev_b32 v{vT}, 3, v3
    v_xor_b32 v2, v2, v{vT}
    v_lshl_add_u32 v2, v3, 5, v2
    v_lshrrev_b32 v3, 5, v0
    v_lshl_add_u32 v2, v3, 6, v2
    s_lshl_b32 s54, s{sW}, 11
    s_add_u32 s54, s54, {CH}
    v_lshl_add_u32 v2, v2, 4, s54
    v_sub_u32 v3, {RO + 4080}, v252'''.split('\n'))
    S2 = Sched(a); S2.add(extra)
    U = 24
    S.add([('lds', f'ds_read_b128 {vr(U+8, 4)}, v3', 'u'), f'v_lshlrev_b32 v253, 16, v253', ('wait', 'u')] + [unp(U+r, U+8, 7 - r) for r in range(8)] + [f'v_mul_f32 v{U+r}, v{U+r}, v253' for r in range(8)])
    S.add([f'v_cvt_pk_bf16_f32 v{U+8+i}, v{U+2*i}, v{U+2*i+1}' for i in range(4)] + [unp(U+i, U+8, i) for i in range(8)])
    for x in range(16):
        if x == mid_at and mid: mid()
        if x + 3 < 16: frd(x + 3)
        if x >= 4 and x % 2 == 0:
            j = x // 2 - 2
            S.add([('lds', f'ds_write_b128 v1, {vr(ACC+4*j, 4)} offset:{1024*j}', 'aw')])
        for j in range(7, -1, -1):
            if x <= 2*j + 1:
                y = 2*j - x
                a.wait(lg=[('f', x), ('g', y)])
                a(f'v_mfma_f32_16x16x32_bf16 {vr(ACC+4*j, 4)}, {vr(FB + 4*(x%4), 4)}, {ar(4*(y+1), 4)}, {"0" if x == 0 else vr(ACC+4*j, 4)}')
                if x >= 2: S.fill(2)
                S2.fill(1)
    S.flush(); S2.flush()
    for j in (6, 7): a.lds(f'ds_write_b128 v1, {vr(ACC+4*j, 4)} offset:{1024*j}', 'aw')
    a.wait(lg_all=True); a('s_barrier')
    G = PS
    for e in range(4):
        for h in range(2): a.lds(f'ds_read_b128 {vr(G + 8*e + 4*h, 4)}, v2 offset:{8192*e + 256*h}', ('p', e))
    for e in range(1, 4):
        a.wait(lg=('p', e))
        for r in range(4): a(f'v_pk_add_f32 {vr(G+2*r, 2)}, {vr(G+2*r, 2)}, {vr(G+8*e+2*r, 2)}')
    for i in range(4): a(f'v_cvt_pk_bf16_f32 v{U+8+i}, v{G+2*i}, v{G+2*i+1}')
    for i in range(8): a(unp(G+i, U+8, i))
    for r in range(4): a(f'v_pk_add_f32 {vr(G+2*r, 2)}, {vr(G+2*r, 2)}, {vr(U+2*r, 2)}')
    for i in range(4): a(f'v_cvt_pk_bf16_f32 v{G+8+i}, v{G+2*i}, v{G+2*i+1}')
    if hook: hook()
    a(f's_lshl_b32 s54, s27, 12\ns_add_u32 s54, s54, {WS_ZT}')
    a.vmem(f'buffer_store_dwordx4 {vr(G+8, 4)}, v252, s[16:19], s54 offen {SC}', 'zs')
    a(f's_bfe_u32 s27, s27, 0x20004\ns_mul_i32 s27, s27, {FLS}\ns_add_u32 s27, s27, {FL_Z}\ns_mov_b32 s54, 4')

GRAW = 144
def rp_addr(a, vS3, vS4, vR, vL):
    a(f'''
    v_lshrrev_b32 v1, 3, v0
    v_and_b32 v2, 6, v1
    v_and_b32 v3, 7, v0
    v_xor_b32 v2, v2, v3
    v_lshlrev_b32 v2, 4, v2
    v_mul_u32_u24 v{vS3}, 9216, v1
    v_add_u32 v{vS3}, v{vS3}, v2
    v_mul_u32_u24 v{vS4}, 1152, v1
    v_add_u32 v{vS4}, v{vS4}, v2
    v_lshrrev_b32 v1, 2, v0
    v_lshlrev_b32 v3, 7, v1
    v_bfe_u32 v2, v1, 1, 2
    v_lshl_add_u32 v3, v2, 5, v3
    v_and_b32 v2, 3, v0
    v_lshl_add_u32 v3, v2, 3, v3
    s_mul_i32 s24, s{sW}, {CH}
    v_add_u32 v{vR}, s24, v3
    v_xor_b32 v{vR+1}, 32, v{vR}
    v_xor_b32 v{vR+2}, 64, v{vR}
    v_xor_b32 v{vR+3}, 96, v{vR}
    v_lshlrev_b32 v{vL}, 4, v0''')
def rp_decode(a, which, sU, sSrc, sDst, sFl, sCs=None):
    a(f'''s_mul_i32 s24, s{sU}, 3237
    s_lshr_b32 s24, s24, 18
    s_mul_i32 s25, s24, 81
    s_sub_u32 s25, s{sU}, s25
    s_mul_i32 s26, s25, 57
    s_lshr_b32 s26, s26, 9
    s_mul_i32 s27, s26, 9
    s_sub_u32 s25, s25, s27
    s_mul_i32 s{sFl}, s24, {FLS}
    s_add_u32 s{sFl}, s{sFl}, {FL_W3 if which == 3 else FL_W4}
    s_mul_i32 s27, s24, 9
    s_add_u32 s{sDst}, s27, s25''')
    if which == 3:
        a(f'''s_mul_i32 s{sCs}, s26, {4608*4}
        s_lshl_b32 s24, s{sDst}, 8
        s_add_u32 s{sCs}, s{sCs}, s24
        s_add_u32 s{sCs}, s{sCs}, {WS_CS3}
        s_lshl_b32 s{sSrc}, s{sDst}, 7
        s_mul_i32 s24, s26, {64*9216}
        s_add_u32 s{sSrc}, s{sSrc}, s24''')
    else:
        a(f'''s_add_u32 s{sSrc}, s27, s26
        s_mul_i32 s{sSrc}, s{sSrc}, {64*1152}
        s_lshl_b32 s24, s25, 7
        s_add_u32 s{sSrc}, s{sSrc}, s24''')
    a(f'''s_mul_i32 s{sDst}, s{sDst}, 73728
    s_lshl_b32 s24, s26, 11
    s_add_u32 s{sDst}, s{sDst}, s24
    s_add_u32 s{sDst}, s{sDst}, {WS_WP3 if which == 3 else WS_WP4}''')
def rp_issue(a, which, srd, vS, sSrc, lds_off, tag):
    pitch = 9216 if which == 3 else 1152
    a(f's_mul_i32 s24, s{sW}, {CH}\ns_add_u32 m0, s24, {lds_off}\ns_nop 0')
    for i in range(8):
        a.vmem(f'buffer_load_dwordx4 v{vS}, s[{srd}:{srd+3}], s{sSrc} offen {NT} lds', tag)
        if i < 7: a(f's_add_u32 m0, m0, 1024\ns_add_u32 s{sSrc}, s{sSrc}, {8*pitch}')
def rp_finish(a, which, D, vR, vL, sDst, lds_off, tag, stag, ONE=None, CA=None, sCs=None):
    a.wait(vm=tag)
    for uu in range(2):
        for t in range(4):
            for h in range(2):
                a.lds(f'ds_read_b64_tr_b16 {vr(D + 16*uu + 4*t + 2*h, 2)}, v{vR+t} offset:{lds_off + uu*4096 + h*2048}', ('rr', uu, t))
    for t in range(4):
        if t: a(f's_add_u32 s{sDst}, s{sDst}, 18432')
        for uu in range(2):
            a.wait(lg=('rr', uu, t))
            a.vmem(f'buffer_store_dwordx4 {vr(D + 16*uu + 4*t, 4)}, v{vL}, s[16:19], s{sDst} offen offset:{uu*1024} {SC}', stag)
            if which == 3:
                a(f'v_mfma_f32_16x16x32_bf16 {vr(CA+4*t, 4)}, {vr(ONE, 4)}, {vr(D + 16*uu + 4*t, 4)}, {"0" if uu == 0 else vr(CA+4*t, 4)}')
    if which == 3:
        a(f'''v_lshrrev_b32 v1, 4, v0
        v_cmp_eq_u32 vcc, 1, v1
        v_cmp_eq_u32 s[24:25], 2, v1
        v_cmp_eq_u32 s[26:27], 3, v1
        v_lshlrev_b32 v2, 2, v0
        v_cndmask_b32 v{CA}, v{CA}, v{CA+4}, vcc
        v_cndmask_b32 v{CA}, v{CA}, v{CA+8}, s[24:25]
        v_cndmask_b32 v{CA}, v{CA}, v{CA+12}, s[26:27]''')
        a.vmem(f'buffer_store_dword v{CA}, v2, s[16:19], s{sCs} offen {SC}', stag)

def gen_S(a, opt):
    sGw, sIx, sQ, sRm, sKv = 20, 21, 22, 30, 47
    sU = 31; sSrc = [32, 33]; sDst = [35, 36]; sFl = [38, 39]; sCs = [41, 42]; sKvF = 44; sLb = 45; sKo = 46
    vS3, vS4, vL = 250, 251, 252; vR = 244
    KRAW = 210
    ONE = 4
    a(f"""
    s_load_dwordx4 s[60:63], s[0:1], 32
    s_load_dwordx4 s[48:51], s[0:1], 8
    s_load_dwordx2 s[52:53], s[0:1], 24
    s_load_dwordx2 s[58:59], s[0:1], 64
    s_load_dwordx4 s[64:67], s[0:1], 72
    s_sub_u32 s24, s2, 144
    s_lshl_b32 s{sGw}, s24, 2
    s_add_u32 s{sGw}, s{sGw}, s{sW}
    s_mul_i32 s25, s24, 9363
    s_lshr_b32 s25, s25, 16
    s_mul_i32 s26, s25, 7
    s_sub_u32 s26, s24, s26
    s_min_u32 s27, s26, 4
    s_lshl_b32 s24, s26, 1
    s_add_u32 s{sIx}, s24, s27
    s_sub_u32 s24, s24, s27
    s_cmp_lt_u32 s26, 4
    s_cselect_b32 s26, 3, 2
    s_mul_i32 s27, s25, 18
    s_add_u32 s{sIx}, s{sIx}, s27
    s_add_u32 s{sIx}, s{sIx}, s{sW}
    s_mul_i32 s27, s25, 10
    s_add_u32 s24, s24, s27
    s_add_u32 s24, s24, s{sW}
    s_sub_u32 s24, s24, s26
    s_cmp_lt_u32 s{sW}, s26
    s_cselect_b32 s{sKv}, 1, 0
    s_cselect_b32 s{sIx}, s{sIx}, s24
    s_and_b32 s{sQ}, s{sIx}, 31
    s_lshr_b32 s{sRm}, s{sIx}, 5
    s_sub_u32 s34, 32, s{sQ}
    s_min_u32 s34, s34, s26
    s_sub_u32 s37, s26, s34
    s_mul_i32 s{sLb}, s{sW}, {CH}
    v_lshlrev_b32 v{vL}, 4, v0
    s_waitcnt lgkmcnt(0)
    s_mov_b32 s54, s66
    s_mov_b32 s55, s67""")
    if a.trace: a(f's_mov_b32 s67, s{sW}')
    a.tr(0)
    lz = a.newlabel('NZ'); lz2 = a.newlabel('NZ')
    a(f's_cmp_lg_u32 s2, 255\ns_cbranch_scc1 {lz}\ns_cmp_lt_u32 s{sW}, 3\ns_cbranch_scc1 {lz2}')
    for i in range(4): a(f'v_mov_b32 v{ONE+i}, 0')
    a(f's_mov_b32 s24, {WS_FL}\nv_mul_u32_u24 v1, {FLS}, v0')
    for i in range(4):
        a(f'buffer_store_dwordx4 {vr(ONE, 4)}, v1, s[16:19], s24 offen {SC}')
        a(f's_add_u32 s24, s24, {64*FLS}')
    a(f'{lz2}:\ns_barrier\n{lz}:')
    conv_srd(a, sGw)
    for i in range(4): a.vmem(f'buffer_load_dwordx4 {vr(KRAW+8*i+4, 4)}, v{vL}, s[8:11], 0 offen offset:{1024*i} {NT}', 'ck')
    a(f's_lshl_b32 s25, s{sGw}, 1')
    a.vmem(f'buffer_load_ushort v242, off, s[12:15], s25', 'ck')
    KR = 56; VR_ = 100; CF = 132; CU = 148; KC = 180; O = 24; P = 40; vK, vKm, vWr, vCf = 206, 207, 208, 209
    RW = 136; RD = 72; CA2 = 88
    ACC = 8; FB = 40; E = 8; UU = 112; TM = 128; vF, vG, vA, vU, vZ = 200, 201, 202, 203, 204
    def rawld(which, base, sS):
        pitch = 9216 if which == 3 else 1152
        for i in range(8):
            a(f'buffer_load_dwordx4 {vr(base+4*i, 4)}, v{vS3 if which == 3 else vS4}, s[12:15], s{sS} offen {NT}')
            if i < 7: a(f's_add_u32 s{sS}, s{sS}, {8*pitch}')
    lk0 = a.newlabel('NK0'); lk1 = a.newlabel('NK1')
    a(f's_cmp_eq_u32 s{sKv}, 0\ns_cbranch_scc1 {lk0}')
    a(f"""
    v_lshrrev_b32 v1, 3, v0
    v_and_b32 v2, 7, v0
    s_lshl_b32 s24, s{sQ}, 3
    v_add_u32 v3, s24, v1
    v_mul_u32_u24 v{vK}, {8*1152}, v3
    v_lshl_add_u32 v{vK}, v2, 4, v{vK}
    s_lshl_b32 s24, s{sRm}, 7
    v_add_u32 v{vK}, s24, v{vK}
    v_subrev_u32 v{vKm}, 3456, v{vK}
    v_lshlrev_b32 v{vCf}, 6, v2
    s_mul_i32 s{sKvF}, s{sRm}, {FLS}
    s_add_u32 s{sKvF}, s{sKvF}, {FL_KV}
    s_mov_b32 s8, s52
    s_mov_b32 s9, s53
    s_mov_b32 s10, {576*8}
    s_lshl_b32 s25, s{sRm}, 9""")
    for i in range(4): a(f'buffer_load_dwordx4 {vr(CF+4*i, 4)}, v{vCf}, s[8:11], s25 offen offset:{16*i}')
    a(f's_mov_b32 s8, s48\ns_mov_b32 s9, s49\ns_mov_b32 s10, {MAT}')
    for i in range(8):
        if i % 3 == 0: a(f's_mov_b32 s24, {1152*i}')
        a(f'buffer_load_dwordx4 {vr(KR+12+4*i, 4)}, v{vK}, s[8:11], s24 offen offset:{1152*(i%3)} {opt.get("knt", NT)}')
    for i in range(3): a(f'buffer_load_dwordx4 {vr(KR+4*i, 4)}, v{vKm}, s[8:11], 0 offen offset:{1152*i} {opt.get("knt", NT)}')
    a('s_mov_b32 s8, s50\ns_mov_b32 s9, s51')
    for i in range(8):
        if i % 3 == 0: a(f's_mov_b32 s24, {1152*i}')
        a(f'buffer_load_dwordx4 {vr(VR_+4*i, 4)}, v{vK}, s[8:11], s24 offen offset:{1152*(i%3)} {NT}')
    a(f"""v_sub_u32 v1, 7, v1
    v_xor_b32 v1, v1, v2
    v_lshlrev_b32 v1, 4, v1
    v_lshl_add_u32 v{vWr}, v2, 9, v1
    v_add_u32 v{vWr}, s{sLb}, v{vWr}""")
    rp_addr(a, vS3, vS4, vR, vL)
    a(f's_branch {lk1}\n{lk0}:')
    rp_addr(a, vS3, vS4, vR, vL)
    lz = a.newlabel('NZ')
    a(f's_cmp_lg_u32 s{sGw}, 447\ns_cbranch_scc1 {lz}\ns_waitcnt vmcnt(5)\ns_mov_b32 s5, 4\ns_atomic_add s5, s[100:101], 0\n{lz}:')
    a(f'{lk1}:')
    a(f'v_add_u32 v{vA}, s{sLb}, v{vL}')
    zero_fill(a, E, f's{sLb}')
    for i in range(4): a(f'v_mov_b32 v{ONE+i}, 0x3f803f80')
    lw = a.newlabel('W0'); lw2 = a.newlabel('W1')
    a(f's_cmp_eq_u32 s{sKv}, 0\ns_cbranch_scc1 {lw}\ns_waitcnt vmcnt(23)\ns_branch {lw2}\n{lw}:\ns_waitcnt vmcnt(0)')
    a.srd(8, 58, 59, 576*1152)
    a(f's_mul_i32 s24, s{sIx}, {33*128}\nv_min_u32 v1, 32, v0\nv_lshlrev_b32 v1, 7, v1\nbuffer_load_dword v253, v1, s[8:11], s24 offen')
    a(f'{lw2}:')
    a.vm = []
    S = Sched(a)
    for i in range(4): a.lds(f'ds_write_b128 v{vA}, {vr(KRAW+8*i+4, 4)} offset:{7*CST + 16 + 1024*i}', 'cw')
    for i in range(4): a.lds(f'ds_read_b128 {vr(KRAW+8*i, 4)}, v{vA} offset:{7*CST + 1024*i}', ('lo', i))
    for i in range(4):
        a.wait(lg=('lo', i))
        S.add([o for o in build_ops(KRAW + 8*i, E + 4 + 20*(i%2), vA, 1024*i) if isinstance(o, str) or f'offset:{7*CST + 16 + 1024*i}' not in o[1]]); S.flush()
    a.tr(1)
    def half(un, uu, cs):
        ops = [('lds', f'ds_write_b128 v{vA}, {vr(RW + 32*un + 16*uu + 4*i, 4)} offset:{RO + 1024*i}', 'hw') for i in range(4)]
        rd = RD + (32 if (uu and not cs == 'conv') else 0)
        for t in range(4):
            for h in range(2): ops.append(('lds', f'ds_read_b64_tr_b16 {vr(rd + 4*t + 2*h, 2)}, v{vR+t} offset:{RO + h*2048}', ('hr', un, uu, t)))
        if cs == 'conv': ops += ['s_nop 0'] * 6
        for t in range(4):
            ops += [f's_add_u32 s24, s{sDst[un]}, {t*18432}', ('wait', ('hr', un, uu, t)),
                    ('vmem', f'buffer_store_dwordx4 {vr(rd + 4*t, 4)}, v{vL}, s[16:19], s24 offen offset:{uu*1024} {SC}', 'ls'),
                    f'v_mfma_f32_16x16x32_bf16 {vr(CA2+4*t, 4)}, {vr(ONE, 4)}, {vr(rd + 4*t, 4)}, {"0" if uu == 0 else vr(CA2+4*t, 4)}']
        return ops
    def csfin(un):
        return [f'v_lshrrev_b32 v1, 4, v0', f'v_cmp_eq_u32 vcc, 1, v1', f'v_cmp_eq_u32 s[50:51], 2, v1', f'v_cmp_eq_u32 s[52:53], 3, v1', f'v_lshlrev_b32 v2, 2, v0',
             f'v_cndmask_b32 v3, v{CA2}, v{CA2+4}, vcc', f'v_cndmask_b32 v3, v3, v{CA2+8}, s[50:51]', f'v_cndmask_b32 v{248+un}, v3, v{CA2+12}, s[52:53]',
             ('vmem', f'buffer_store_dword v{248+un}, v2, s[16:19], s{sCs[un]} offen {SC}', 'ls')]
    lnk = a.newlabel('NOKV'); lj = a.newlabel('S1J')
    a(f's_load_dword s4, s[100:101], 0\ns_cmp_eq_u32 s{sKv}, 0\ns_cbranch_scc1 {lnk}')
    a(f"""v_add_u32 v1, {RO}, v{vA}
    v_lshrrev_b32 v2, 3, v0
    v_lshrrev_b32 v3, 2, v2
    v_lshlrev_b32 v{vKm}, 4, v3
    v_xor_b32 v1, v1, v{vKm}
    v_and_b32 v2, 3, v2
    v_lshl_add_u32 v2, v3, 3, v2
    v_lshlrev_b32 v2, 12, v2
    v_and_b32 v3, 7, v0
    v_lshl_add_u32 v2, v3, 4, v2
    s_lshl_b32 s26, s{sRm}, 18
    s_sub_u32 s25, 31, s{sQ}
    s_lshl_b32 s25, s25, 7
    s_add_u32 s26, s26, s25
    s_add_u32 s26, s26, {WS_KVR}
    s_waitcnt vmcnt(19)""")
    for ch in range(8):
        for j in range(4): a(unp(CU + 8*(ch//2) + 2*j + ch%2, CF + 2*ch, j))
    a('s_waitcnt vmcnt(0)'); a.tr(2)
    if opt.get('sbar', 1): a('s_barrier')
    def pk(op, d, s0, s1, s2=None): return f'{op} {vr(d, 2)}, {vr(s0, 2)}, {vr(s1, 2)}' + (f', {vr(s2, 2)}' if s2 is not None else '')
    KO = KRAW
    for cp in range(4):
        for i in range(11):
            for e in range(2): a(unp(KC + 2*i + e, KR + 4*i + cp, e))
        if cp == 2:
            for i in range(4):
                a.wait(lg=('kr', 0, i))
                a.vmem(f'buffer_store_dwordx4 {vr(KO+4*i, 4)}, v2, s[16:19], s24 offen {SC}', 'ks')
                if i < 3: a(f's_add_u32 s24, s24, {16*4096}')
        c = CU + 8*cp
        for t in range(8): a(pk('v_pk_mul_f32', O+2*t, KC+2*t, c+6))
        for j in (2, 1, 0):
            for t in range(8): a(pk('v_pk_fma_f32', O+2*t, KC+2*(t+3-j), c+2*j, O+2*t))
        for t in range(8):
            for e in range(2): a(unp(KC + 2*t + e, VR_ + 4*t + cp, e))
        for t in range(8): a(pk('v_pk_mul_f32', O+2*t, O+2*t, KC+2*t))
        for e in range(2):
            pp = P + 8*(cp%2) + 4*e
            for i in range(4): a(f'v_cvt_pk_bf16_f32 v{pp+i}, v{O+2*(7-2*i)+e}, v{O+2*(6-2*i)+e}')
            a.lds(f'ds_write_b128 v{vWr}, {vr(pp, 4)} offset:{RO + (2*(cp%2)+e)*128}', 'kw')
        if cp % 2 == 1:
            ps = cp // 2
            for i in range(4):
                a(f'v_xor_b32 v3, {32*i}, v1')
                a.lds(f'ds_read_b128 {vr(KO+16*ps+4*i, 4)}, v3 offset:{1024*i}', ('kr', ps, i))
            a(f's_add_u32 s24, s26, {ps*4*4096}')
    for i in range(4):
        a.wait(lg=('kr', 1, i))
        a.vmem(f'buffer_store_dwordx4 {vr(KO+16+4*i, 4)}, v2, s[16:19], s24 offen {SC}', 'ks')
        if i < 3: a(f's_add_u32 s24, s24, {16*4096}')
    a.tr(3)
    spin(a, 100, '0', 4, first_loaded=True, sleep=4, vec=True)
    lks = a.newlabel('KS')
    a.wait(vm='ks')
    a(f's_barrier\ns_cmp_lg_u32 s{sW}, 0\ns_cbranch_scc1 {lks}\ns_atomic_add s34, s[28:29], s{sKvF}\ns_cmp_eq_u32 s37, 0\ns_cbranch_scc1 {lks}\ns_add_u32 s40, s{sKvF}, {FLS}\ns_atomic_add s37, s[28:29], s40\n{lks}:')
    a(f's_add_u32 s{sU}, s{sIx}, 320')
    a.srd(12, 64, 65, WBYTES)
    a(f's_branch {lj}\n{lnk}:')
    a.vm = []; a.lg = []
    spin(a, 100, '0', 4, first_loaded=True, sleep=4, vec=True)
    a.srd(12, 64, 65, WBYTES)
    a(f's_mov_b32 s{sU}, s{sIx}')
    for i in range(2):
        rp_decode(a, 3, sU, sSrc[i], sDst[i], sFl[i], sCs[i])
        a(f's_add_u32 s{sU}, s{sU}, 160')
    if opt.get('sbar', 1): a('s_barrier')
    for i in range(2): rawld(3, RW + 32*i, sSrc[i])
    a('s_barrier')
    a('s_waitcnt vmcnt(8)')
    a.tr(2)
    S.add(half(0, 0, '') + half(0, 1, '') + csfin(0)); S.flush()
    a('s_waitcnt vmcnt(9)')
    S.add(half(1, 0, '') + half(1, 1, '') + csfin(1)); S.flush()
    a.tr(3)
    a(f's_mov_b32 s56, s{sFl[0]}\ns_mov_b32 s57, s{sFl[1]}\ns_add_u32 s{sU}, s{sIx}, 608')
    a(f'{lj}:')
    a.vm = []; a.lg = []
    a.tr(4)
    rp_decode(a, 3, sU, sSrc[0], sDst[0], sFl[0], sCs[0])
    a(f's_cmp_ge_u32 s{sU}, 648\ns_cselect_b32 s{sDst[0]}, {WS_END}, s{sDst[0]}\ns_cselect_b32 s{sCs[0]}, {WS_END}, s{sCs[0]}\ns_cselect_b32 s49, 0, 1\ns_cselect_b32 s{sSrc[0]}, {WBYTES}, s{sSrc[0]}')
    def sig_early():
        l = a.newlabel('SE')
        return f's_cmp_lg_u32 s{sKv}, 0\ns_cbranch_scc1 {l}\ns_mov_b32 s5, 1\ns_atomic_add s5, s[28:29], s56\ns_atomic_add s5, s[28:29], s57\n{l}:'
    def sig_late():
        l = a.newlabel('SL')
        return f's_cmp_eq_u32 s49, 0\ns_cbranch_scc1 {l}\ns_atomic_add s49, s[28:29], s{sFl[0]}\n{l}:'
    a(f"""
    v_and_b32 v3, 7, v0
    v_mul_u32_u24 v3, {CST}, v3
    v_bfe_u32 v1, v0, 3, 1
    v_lshrrev_b32 v{vZ}, 4, v0
    v_add_u32 v1, v1, v{vZ}
    v_lshl_add_u32 v{vF}, v1, 4, v3
    v_add_u32 v{vF}, s{sLb}, v{vF}
    v_and_b32 v1, 15, v0
    v_lshlrev_b32 v1, 5, v1
    v_lshlrev_b32 v{vG}, 4, v{vZ}
    v_sub_u32 v{vG}, v{vG}, v1
    s_add_u32 s24, s{sLb}, {RO + 480}
    v_add_u32 v{vG}, s24, v{vG}
    v_lshl_add_u32 v{vZ}, v{vZ}, 3, v1
    s_add_u32 s24, s{sLb}, {RO + 4088 - 7*512}
    v_sub_u32 v{vU}, s24, v{vZ}
    v_add_u32 v{vZ}, s{sLb}, v{vZ}
    v_lshlrev_b32 v242, 16, v242""")
    lnc = a.newlabel('NOCV')
    a(f's_mov_b32 s27, {FL_Z}\ns_mov_b32 s54, 0\ns_cmp_ge_u32 s{sGw}, 432\ns_cbranch_scc1 {lnc}')
    NF = 8
    a(f's_lshr_b32 s24, s{sGw}, 6\ns_mul_i32 s24, s24, {FLS}\ns_add_u32 s{sKvF}, s24, {FL_KV}')
    spin(a, 28, f's{sKvF}', 32, sleep=opt.get('kvsleep', 2), wg=True)
    a.tr(7)
    a(f's_lshl_b32 s24, s{sGw}, 12\ns_add_u32 m0, s{sLb}, {RO}\ns_add_u32 s24, s24, {WS_KVR}')
    for i in range(4): a.vmem(f'buffer_load_dwordx4 v{vL}, s[16:19], s24 offen offset:{1024*i} {SC} lds', 'cr')
    rawld(3, RW, sSrc[0]); a.vm += ['raw'] * 8
    def grd(d): return ('lds', f'ds_read_b128 {ar(4*(d+7), 4)}, v{vG} offset:{(56-d)*64}', ('g', d))
    def frd(e): return ('lds', f'ds_read_b128 {vr(FB + 4*(e%NF), 4)}, v{vF} offset:{e*64}', ('f', e))
    def epi(j):
        u = UU + 2*j; T_ = TM; A_ = ACC + 4*j
        ops = [('wait', ('u', j))] + [unp(T_+r, u, 3 - r) for r in range(4)] + [f'v_mul_f32 v{T_+r}, v{T_+r}, v242' for r in range(4)]
        ops += [f'v_cvt_pk_bf16_f32 v{u+i}, v{T_+2*i}, v{T_+2*i+1}' for i in range(2)]
        ops2 = [f'v_cvt_pk_bf16_f32 v{T_+4+i}, v{A_+2*i}, v{A_+2*i+1}' for i in range(2)]
        ops2 += [unp(T_+r, u, r) for r in range(4)] + [unp(A_+r, T_+4, r) for r in range(4)] + [f'v_add_f32 v{A_+r}, v{A_+r}, v{T_+r}' for r in range(4)]
        ops2 += [f'v_cvt_pk_bf16_f32 v{u+i}, v{A_+2*i}, v{A_+2*i+1}' for i in range(2)]
        return ops, ops2
    S.add([frd(0), frd(1), frd(2)]); S.flush()
    a.wait(vm='cr')
    a(sig_early())
    a.tr(5)
    S.add([grd(8*j) for j in range(7, -1, -1)]); S.flush()
    nf = 3
    for e in range(64):
        if e == 24: a.tr(6)
        pre = []
        if e + 1 < 8: pre += [grd(8*j - e - 1) for j in range(7, -1, -1)]
        la = min(NF - 1, 3 + e // 8)
        while nf <= min(e + la, 63): pre.append(frd(nf)); nf += 1
        if e == 7: pre += [('lds', f'ds_read_b64 {vr(UU+2*j, 2)}, v{vU} offset:{(7-j)*512}', ('u', j)) for j in range(8)]
        S.q = pre + S.q
        if e % 8 == 1 and 9 <= e <= 33:
            for j in (e // 4 - 2, e // 4 - 1): S.add(epi(j)[0])
        if e == 12: S.add([('waitvm', 'raw')] + half(0, 0, 'conv'))
        if e == 16: S.add(half(0, 1, 'conv') + csfin(0))
        if e == 30: S.add([('waitvm', 'ls'), sig_late()])
        if e % 8 == 2 and e >= 10: S.add(epi(e // 8 - 1)[1])
        for j in range(7, -1, -1):
            if e <= 8*j + 7:
                while any((not isinstance(o, str)) and o[0] == 'lds' and o[2] in (('f', e), ('g', 8*j - e)) for o in S.q): S.fill(1)
                a.wait(lg=[('f', e), ('g', 8*j - e)])
                a(f'v_mfma_f32_16x16x32_bf16 {vr(ACC+4*j, 4)}, {vr(FB + 4*(e%NF), 4)}, {ar(4*(8*j-e+7), 4)}, {"0" if e == 0 else vr(ACC+4*j, 4)}')
                S.fill(2)
    S.add(epi(7)[1]); S.flush()
    a.tr(8)
    for j in range(8): a.lds(f'ds_write_b64 v{vZ}, {vr(UU+2*j, 2)} offset:{512*j}', 'zw')
    for i in range(4): a.lds(f'ds_read_b128 {vr(FB+4*i, 4)}, v{vA} offset:{1024*i}', ('zr', i))
    a(f's_lshl_b32 s24, s{sGw}, 12\ns_add_u32 s24, s24, {WS_ZT}')
    for i in range(4):
        a.wait(lg=('zr', i))
        a.vmem(f'buffer_store_dwordx4 {vr(FB+4*i, 4)}, v{vL}, s[16:19], s24 offen offset:{1024*i} {SC}', 'zs')
    a(f's_bfe_u32 s24, s{sGw}, 0x20004\ns_mul_i32 s24, s24, {FLS}\ns_add_u32 s27, s24, {FL_Z}\ns_mov_b32 s54, 16')
    lc2 = a.newlabel('CVJ')
    a(f's_branch {lc2}\n{lnc}:')
    rawld(3, RW, sSrc[0])
    a('s_waitcnt vmcnt(0)')
    a(sig_early())
    a.vm = []; a.lg = []
    S.add(half(0, 0, '') + half(0, 1, '') + csfin(0)); S.flush()
    a(f's_waitcnt vmcnt(0)\n' + sig_late() + '\ns_waitcnt lgkmcnt(0)')
    a(f'{lc2}:')
    a.vm = []; a.lg = []
    a.tr(9)

def Grp4_ops(vS):
    ops = []
    for i in range(4):
        ops.append(('vmem', f'buffer_load_dwordx4 {ar(GRAW+4*i, 4)}, v{vS}, s[12:15], s91 offen {NT}', 'graw'))
        if i < 3: ops.append(f's_add_u32 s91, s91, {8*1152}')
    return ops
def gen_Grp4_finish(a):
    B = 147456
    a(f"""v_lshrrev_b32 v1, 2, v0
    v_lshlrev_b32 v3, 7, v1
    v_bfe_u32 v2, v1, 1, 2
    v_lshl_add_u32 v3, v2, 5, v3
    v_and_b32 v2, 3, v0
    v_lshl_add_u32 v3, v2, 3, v3
    s_lshl_b32 s91, s{sW}, 12
    s_add_u32 s91, s91, {B}
    v_add_u32 v3, s91, v3
    v_lshlrev_b32 v2, 4, v0
    v_add_u32 v1, s91, v2""")
    a.wait(vm='graw')
    for i in range(4): a.lds(f'ds_write_b128 v1, {ar(GRAW+4*i, 4)} offset:{1024*i}', 'gw')
    for t in range(4):
        a(f'v_xor_b32 v1, {32*t}, v3')
        for h in range(2): a.lds(f'ds_read_b64_tr_b16 {ar(GRAW + 4*t + 2*h, 2)}, v1 offset:{h*2048}', ('gr', t))
    for t in range(4):
        a.wait(lg=('gr', t))
        a.vmem(f'buffer_store_dwordx4 {ar(GRAW + 4*t, 4)}, v2, s[16:19], s89 offen {SC}', 'gs')
        if t < 3: a(f's_add_u32 s89, s89, 18432')
```

```python
from common import *
from front import spin as fspin

SPIN_MAX = 200000

def make_p3(a, depth=20, trc=None, sflag='sc1', WLN=16, a_at=5, LF='sc1', t1=100, rot1=False, rp4=True, rp_at=20, rp_gap=2, w0=124, wgap=1, rp_wait=22):
    trace = a.trace
    NB = depth + 2
    V = Regs(1, 256)
    AV = V.alloc('Av', 32, 4)
    ACC = [V.alloc('acc0', 16, 4), V.alloc('acc1', 16, 4)]
    W = V.alloc('w', 4 * NB, 4)
    CS = V.alloc('cs', 4, 4); R = V.alloc('r', 8, 4); T = V.alloc('t', 8, 4)
    AB = V.alloc('ab', 16, 4)
    PA = V.alloc('pa', 32, 4); X1R = V.alloc('x1r', 10, 2)
    ST1 = V.alloc('st1', 4, 4)
    vL16 = V.alloc('l16'); vCS = V.alloc('vcs'); vHw = V.alloc('hw')
    vB = [V.alloc('b0'), V.alloc('b1'), V.alloc('b2'), V.alloc('b3')]
    vWL = V.alloc('wl'); vFl = V.alloc('fl'); vTmp = V.alloc('tmp'); vTmp2 = V.alloc('tmp2')
    nv = V.n
    def opreg(u, rt):
        return ar(16*u + 4*rt, 4) if u < 16 else vr(AV + 16*(u-16) + 4*rt, 4)
    HB = 0; CSB = 73728; STG = CSB + 2304; XB = 90112; WLB = STG + 18432; LDS = 163840
    assert WLB + WLN * 4096 <= LDS
    sSl, sMt, sRot, sW, sG, sCq, sRow = 20, 21, 22, 23, 24, 25, 26
    sCh, sK = 30, 40
    sB1 = 88
    sPh = 50
    sFw, sFr, sPf, sSpin, sWl, sNeed = 55, 56, 57, 58, 59, 53
    sLg = 61
    sLo, sHi = 54, 27
    sSt, sTmp, sTmp2, sX = 60, 64, 65, 66
    NST = 324
    NLD = NST - WLN
    SB = [PA + 2*c for c in range(9)]
    def ld(n):
        for op in ldops(n): emit(op)
    def ldops(n):
        class L(list):
            def __call__(self, x): self.append(x)
            def vmem(self, x, t): self.append(('vmem', x, t))
        a = L()
        if n >= NLD: return a
        _ld(a, n)
        return a
    def _ld(a, n):
        ph, c, u = n // 162, (n % 162) // 18, n % 18
        r = W + 4 * (n % NB)
        if not rot1:
            if ph == 0:
                if u % 4 == 0: a(f's_add_u32 s{sTmp}, s{sB1}, {c*73728 + u*1024}')
            elif u % 4 == 0: a(f's_add_u32 s{sTmp}, s{sCh+c}, {WBYTES + u*1024}')
            a.vmem(f'buffer_load_dwordx4 {vr(r, 4)}, v{vL16}, s[16:19], s{sTmp} offen offset:{(u%4)*1024} {LF}', ('w', n))
        elif ph == 0:
            if u % 4 == 0 and u: a(f's_add_u32 s{sTmp}, s{sCh+c}, {u*1024}')
            so = f's{sCh+c}' if u < 4 else f's{sTmp}'
            a.vmem(f'buffer_load_dwordx4 {vr(r, 4)}, v{vL16}, s[16:19], {so} offen offset:{(u%4)*1024} {LF}', ('w', n))
        else:
            if u == 0: a(f's_add_u32 s{sCh+c}, s{sCh+c}, {WBYTES}')
            if u % 2 == 0: a(f's_add_u32 s{sTmp}, s{sCh+c}, s{sK+u//2}')
            a.vmem(f'buffer_load_dwordx4 {vr(r, 4)}, v{vL16}, s[16:19], s{sTmp} offen offset:{(u%2)*1024} {LF}', ('w', n))
    def physof(dst, add_reg, add_const):
        s = f's_add_u32 s{dst}, s{sRot}, {add_const}\n'
        if add_reg is not None: s += f's_add_u32 s{dst}, s{dst}, s{add_reg}\n'
        s += f's_cmp_ge_u32 s{dst}, 9\ns_cselect_b32 s{sTmp2}, 9, 0\ns_sub_u32 s{dst}, s{dst}, s{sTmp2}'
        return s
    def e1a():
        a(f'''
        s_load_dwordx2 s[8:9], s[0:1], 0
        s_load_dwordx2 s[12:13], s[0:1], 88
        s_and_b32 s{sSl}, s2, 3
        s_lshl_b32 s{sSl}, s{sSl}, 1
        s_bfe_u32 s{sTmp}, s2, 0x10003
        s_add_u32 s{sSl}, s{sSl}, s{sTmp}
        s_lshr_b32 s{sMt}, s2, 4
        s_bfe_u32 s{sTmp}, s2, 0x10002
        s_lshl_b32 s{sTmp}, s{sTmp}, 4
        s_add_u32 s{sMt}, s{sMt}, s{sTmp}
        s_mul_i32 s{sTmp}, s{sMt}, 57
        s_lshr_b32 s{sTmp}, s{sTmp}, 9
        s_mul_i32 s{sTmp}, s{sTmp}, 9
        s_sub_u32 s{sRot}, s{sMt}, s{sTmp}
        v_lshlrev_b32 v{vL16}, 4, v0
        s_mul_i32 s{sTmp}, s{sSl}, {9*73728}
        s_mul_i32 s{sTmp2}, s{sW}, 18432
        s_add_u32 s{sTmp}, s{sTmp}, s{sTmp2}
        s_add_u32 s{sTmp}, s{sTmp}, {WS_WP3}
        s_mov_b32 s10, {MAT}
        s_mov_b32 s11, 0x20000
        s_mov_b32 s14, {MAT}
        s_mov_b32 s15, 0x20000
        s_mov_b32 s{sTmp2}, s{sRot}''')
        e1a.base = True
        for j in range(9):
            a(f's_mul_i32 s{sCh+j}, s{sTmp2}, 73728\ns_add_u32 s{sCh+j}, s{sCh+j}, s{sTmp}\ns_lshl_b32 s{sK+j}, s{sTmp2}, 11')
            if j < 8: a(f's_add_u32 s{sTmp2}, s{sTmp2}, 1\ns_cmp_eq_u32 s{sTmp2}, 9\ns_cselect_b32 s{sTmp2}, 0, s{sTmp2}')
        a(physof(sPh, sW, 0)); a(physof(sPh+1, sW, 4)); a(physof(sPh+2, None, 8))
        a(f's_add_u32 s{sX}, s{sW}, 4')
        a(f'''v_mov_b32 v{vTmp2}, s{sPh if rot1 else sW}
        v_mov_b32 v1, s{sPh+1 if rot1 else sX}
        v_cmp_lt_u32 vcc, 15, v0
        s_lshl_b32 s{sTmp2}, s{sW}, 8
        v_mov_b32 v{vFl}, s{sTmp2}
        v_cndmask_b32 v{vTmp2}, v{vTmp2}, v1, vcc
        v_add_u32 v1, 1024, v{vFl}
        v_cndmask_b32 v{vFl}, v{vFl}, v1, vcc
        v_mov_b32 v1, {f's{sPh+2}' if rot1 else 8}
        v_cmp_lt_u32 vcc, 31, v0
        v_mov_b32 v2, 0x800
        v_and_b32 v3, 15, v0
        v_cndmask_b32 v{vTmp2}, v{vTmp2}, v1, vcc
        v_cndmask_b32 v{vFl}, v{vFl}, v2, vcc
        v_lshlrev_b32 v{vTmp2}, 8, v{vTmp2}
        v_lshl_add_u32 v{vTmp2}, v3, 4, v{vTmp2}
        v_lshl_add_u32 v{vFl}, v3, 4, v{vFl}
        v_add_u32 v{vFl}, {CSB}, v{vFl}''')
        a(f's_lshl_b32 s{sLg}, s{sW}, 11\ns_add_u32 s{sLg}, s{sLg}, {STG}\ns_add_u32 s{sLg+1}, s{sLg}, 8192\ns_mov_b32 s{sLg+2}, {STG + 16384}')
        a(f'''
        v_add_u32 v{vB[0]}, {XB}, v{vL16}
        v_add_u32 v{vB[1]}, {XB + 36864}, v{vL16}
        v_add_u32 v{vB[2]}, {HB}, v{vL16}
        v_add_u32 v{vB[3]}, {HB + 36864}, v{vL16}
        s_lshr_b32 s{sTmp2}, s{sW}, 1
        s_lshl_b32 s{sX}, s{sTmp2}, 12
        s_and_b32 s{sTmp2}, s{sW}, 1
        s_lshl_b32 s{sTmp2}, s{sTmp2}, 3
        s_add_u32 s{sX}, s{sX}, s{sTmp2}
        s_add_u32 s{sX}, s{sX}, {HB}
        v_add_u32 v{vHw}, s{sX}, v{vL16}
        s_lshl_b32 s{sX}, s{sW}, 6
        s_add_u32 s{sX}, s{sX}, {CSB}
        v_and_b32 v{vTmp}, 48, v0
        v_add_u32 v{vCS}, s{sX}, v{vTmp}
        s_mul_i32 s{sX}, s{sMt}, 73728
        s_add_u32 s{sPf}, s{sX}, {WS_PF}
        s_mul_i32 s{sSt}, s{sSl}, {MAT}
        s_add_u32 s{sSt}, s{sSt}, s{sPf}
        s_lshl_b32 s{sX}, s{sW}, 10
        s_add_u32 s{sSt}, s{sSt}, s{sX}
        s_lshl_b32 s{sX}, s{sSl}, 10
        s_add_u32 s{sPf}, s{sPf}, s{sX}
        s_lshr_b32 s{sG}, s{sSl}, 2
        s_and_b32 s{sCq}, s{sSl}, 3
        s_lshl_b32 s{sRow}, s{sMt}, 6
        s_lshl_b32 s{sX}, s{sG}, 5
        s_add_u32 s{sRow}, s{sRow}, s{sX}
        s_mul_i32 s{sWl}, s{sW}, {WLN*1024}
        s_add_u32 s{sWl}, s{sWl}, {WLB}
        v_add_u32 v{vWL}, s{sWl}, v{vL16}
        s_mul_i32 s{sX}, s{sMt}, {4*FLS}
        s_add_u32 s{sX}, s{sX}, {WS_FL}
        s_mul_i32 s{sFw}, s{sW}, {FLS}
        s_add_u32 s{sFw}, s{sFw}, s{sX}
        s_mul_i32 s{sFr}, s{sCq}, {FLS}
        s_add_u32 s{sFr}, s{sFr}, s{sX}
        s_cmp_eq_u32 s{sW}, 3
        s_cselect_b32 s{sNeed}, 8, 4
        s_add_u32 s{sNeed}, s{sNeed}, s{sFr}
        ''')
    def e1w(loaded=False):
        a(f's_mul_i32 s{sX}, s{sSl}, {FLS}\ns_add_u32 s{sX}, s{sX}, {FL_W3}')
        fspin(a, 28, f's{sX}', 81, sleep=8, wg=True, first_loaded=loaded)
    def e1b():
        ops = [f's_mul_i32 s{sB1}, s{sRot}, 73728\ns_sub_u32 s{sB1}, s{sCh}, s{sB1}', f's_mul_i32 s{sX}, s{sSl}, 2304\ns_add_u32 s{sX}, s{sX}, {WS_CS3}']
        for rb in range(9):
            d = PA + 4*rb if rb < 8 else ST1
            ops.append(('vmem', f'buffer_load_dwordx4 {vr(d, 4)}, v{vTmp2}, s[16:19], s{sX} offen {LF}', 'csp'))
            if rb < 8: ops.append(f's_add_u32 s{sX}, s{sX}, {4608*4}')
        for n in range(depth): ops += ldops(n)
        return ops
    def e1c():
        a.wait(vm='csp')
        for rb in range(8):
            for i in range(2): a(f'v_pk_add_f32 {vr(ST1+2*i, 2)}, {vr(ST1+2*i, 2)}, {vr(PA+4*rb+2*i, 2)}')
        a.lds(f'ds_write_b128 v{vFl}, {vr(ST1, 4)}', 'csw')
    R4 = [89, 90, 91, 6, 27, 54, 3]
    def rp4setup():
        ops = [f's_load_dwordx2 s[12:13], s[0:1], 80\ns_mov_b32 s14, {WBYTES}']
        for h in range(2):
            ops += [f's_lshl_b32 s{sX}, s2, 1\ns_lshr_b32 s{sSpin}, s{sW}, 1\ns_add_u32 s{sX}, s{sX}, s{sSpin}\ns_add_u32 s{sX}, s{sX}, {512*h}',
                    f's_mul_i32 s{sSpin}, s{sX}, 3237\ns_lshr_b32 s{sSpin}, s{sSpin}, 18\ns_mul_i32 s{R4[4+h]}, s{sSpin}, {FLS}\ns_add_u32 s{R4[4+h]}, s{R4[4+h]}, {FL_W4}',
                    f's_mul_i32 s{sTmp2}, s{sX}, 7282\ns_lshr_b32 s{sTmp2}, s{sTmp2}, 16\ns_mul_i32 s5, s{sTmp2}, 9\ns_sub_u32 s{sX}, s{sX}, s5',
                    f's_mul_i32 s{R4[h]}, s{sTmp2}, {64*1152}\ns_lshl_b32 s5, s{sX}, 7\ns_add_u32 s{R4[h]}, s{R4[h]}, s5',
                    f's_mul_i32 s{sSpin}, s{sSpin}, 9\ns_sub_u32 s{sTmp2}, s{sTmp2}, s{sSpin}\ns_add_u32 s{sX}, s{sX}, s{sSpin}\ns_mul_i32 s{R4[2+h]}, s{sX}, 73728',
                    f's_lshl_b32 s{sTmp2}, s{sTmp2}, 11\ns_add_u32 s{R4[2+h]}, s{R4[2+h]}, s{sTmp2}\ns_add_u32 s{R4[2+h]}, s{R4[2+h]}, {WS_WP4}',
                    f's_and_b32 s5, s{sW}, 1\ns_lshl_b32 s{sX}, s5, 10\ns_add_u32 s{R4[2+h]}, s{R4[2+h]}, s{sX}\ns_mul_i32 s5, s5, {32*1152}\ns_add_u32 s{R4[h]}, s{R4[h]}, s5']
        ops += [f's_cmp_ge_u32 s2, 68\ns_cselect_b32 s{R4[3]}, {WS_END}, s{R4[3]}\ns_cselect_b32 s{R4[5]}, s{R4[4]}, s{R4[5]}\ns_cselect_b32 s{R4[6]}, 0, 1']
        a1, a2, a3 = PA+26, PA+27, PA+28
        ops += [f'v_lshrrev_b32 v{a1}, 3, v0', f'v_and_b32 v{a2}, 6, v{a1}', f'v_and_b32 v{a3}, 7, v0', f'v_xor_b32 v{a2}, v{a2}, v{a3}', f'v_lshlrev_b32 v{a2}, 4, v{a2}',
                f'v_mul_u32_u24 v{PA+30}, 1152, v{a1}', f'v_add_u32 v{PA+30}, v{PA+30}, v{a2}',
                f'v_lshrrev_b32 v{a1}, 2, v0', f'v_lshlrev_b32 v{a3}, 7, v{a1}', f'v_bfe_u32 v{a2}, v{a1}, 1, 2', f'v_lshl_add_u32 v{a3}, v{a2}, 5, v{a3}',
                f'v_and_b32 v{a2}, 3, v0', f'v_lshl_add_u32 v{a3}, v{a2}, 3, v{a3}', f'v_add_u32 v{PA+31}, s{sWl}, v{a3}']
        return ops
    def xd(i):
        ops = []
        if i % 4 == 0 and i: ops.append(f's_add_u32 m0, m0, 4096\ns_add_u32 s{sX}, s{sX}, 4096')
        ops.append(('vmem', f'buffer_load_dwordx4 v{vL16}, s[16:19], s{sX} offen offset:{(i%4)*1024} {LF} lds', ('x1', i // 6)))
        return ops
    def e2():
        a(f'''s_mul_i32 s7, s{sMt}, {FLS}
        s_add_u32 s7, s7, {FL_X}
        s_mul_i32 s{sTmp2}, s{sW}, 18432
        s_mul_i32 s{sX}, s{sMt}, 73728
        s_add_u32 s{sX}, s{sX}, s{sTmp2}
        s_add_u32 m0, s{sTmp2}, {XB}
        s_add_u32 s{sX}, s{sX}, {WS_X1F}
        s_lshl_b32 s{sTmp2}, s{sMt}, 6
        v_add_u32 v{vTmp}, s{sTmp2}, v0
        v_lshlrev_b32 v{vTmp}, 3, v{vTmp}''')
        fspin(a, 28, 's7', 9, sleep=0, wg=True)
        for i in range(12):
            if i == 6: a('s_barrier')
            for op in xd(i): emit(op)
    def oprd(ph, u):
        ops = []
        for rt in range(4):
            if ph == 0: off = (rt & 1) * 18432 + u * 1024; b = vB[rt >> 1]
            else:
                o = u * 4096 + rt * 1024; b = vB[2 + (o >= 36864)]; off = o - (36864 if o >= 36864 else 0)
            ops.append(('lds', f'ds_read_b128 {opreg(u, rt)}, v{b} offset:{off}', ('op', ph, u)))
        return ops
    def stats_code():
        s0 = SB[0]
        ops = [('waitvm', 'stat'), f'v_and_b32 v{T+3}, 15, v0', f'v_lshlrev_b32 v{T+3}, 2, v{T+3}']
        for c in range(1, 9):
            ops.append(f'v_add_f32 v{s0}, v{s0}, v{SB[c]}')
            ops.append(f'v_add_f32 v{s0+1}, v{s0+1}, v{SB[c]+1}')
        ops += [f'v_mul_f32 v{s0}, {fhex(1/576)}, v{s0}',
                f'v_mul_f32 v{s0+1}, {fhex(1/576)}, v{s0+1}',
                f'v_fma_f32 v{s0+1}, -v{s0}, v{s0}, v{s0+1}',
                f'v_max_f32 v{s0+1}, 0, v{s0+1}',
                f'v_cvt_pk_bf16_f32 v{s0+2}, v{s0}, v{s0+1}',
                f'v_and_b32 v{s0+1}, 0xffff0000, v{s0+2}',
                f'v_lshlrev_b32 v{s0}, 16, v{s0+2}',
                f'v_add_f32 v{s0+1}, {fhex(1e-5)}, v{s0+1}',
                f'v_cvt_pk_bf16_f32 v{s0+1}, v{s0+1}, v{s0+1}',
                f'v_lshlrev_b32 v{s0+1}, 16, v{s0+1}',
                f'v_sqrt_f32 v{s0+1}, v{s0+1}',
                f'v_cvt_pk_bf16_f32 v{s0+1}, v{s0+1}, v{s0+1}',
                f'v_lshlrev_b32 v{s0+1}, 16, v{s0+1}',
                f'v_rcp_f32 v{s0+4}, v{s0+1}',
                f'v_sub_f32 v{s0+5}, 0, v{s0}',
                f'v_mul_f32 v{s0+6}, {fhex(GELU_C0)}, v{s0+4}',
                f'v_mul_f32 v{s0+7}, v{s0+4}, v{s0+4}',
                f'v_mul_f32 v{s0+7}, v{s0+7}, v{s0+6}',
                f'v_mul_f32 v{s0+7}, {fhex(0.044715)}, v{s0+7}']
        for rt in range(4):
            for i in range(4):
                ops.append(('lds', f'ds_bpermute_b32 v{AB+4*rt+i}, v{T+3}, v{s0+4+i} offset:{64*rt}', 'ab'))
        return ops
    def gelu4(acc, x, cj):
        k = acc + 4 * x; r = R + 4 * (x & 1); al = AB + 4*x; t = T + 2 * x
        st = [lambda i: f'v_fmac_f32 v{k+i}, v{CS+i}, v{al+1}',
              lambda i: f'v_mul_f32 v{r+i}, v{k+i}, v{k+i}',
              lambda i: f'v_fma_f32 v{r+i}, v{r+i}, v{al+3}, v{al+2}',
              lambda i: f'v_mul_f32 v{r+i}, v{r+i}, v{k+i}',
              lambda i: f'v_exp_f32 v{r+i}, v{r+i}',
              lambda i: f'v_add_f32 v{r+i}, 1.0, v{r+i}',
              lambda i: f'v_rcp_f32 v{r+i}, v{r+i}',
              lambda i: f'v_mul_f32 v{k+i}, v{k+i}, v{r+i}']
        ops = [f(i) for f in st for i in range(4)]
        ops.append(f'v_cvt_pk_bf16_f32 v{t}, v{k}, v{k+1}')
        ops.append(f'v_cvt_pk_bf16_f32 v{t+1}, v{k+2}, v{k+3}')
        o = cj * 8192 + x * 1024
        if o > 65535 - 8:
            ops.append(f'v_add_u32 v{r}, {o}, v{vHw}')
            ops.append(('lds', f'ds_write_b64 v{r}, {vr(t, 2)}', 'hw'))
        else:
            ops.append(('lds', f'ds_write_b64 v{vHw}, {vr(t, 2)} offset:{o}', 'hw'))
        return ops
    def out16(acc, cj):
        ops = [f's_lshl_b32 s{sTmp2}, s{sK+cj}, 2', f's_add_u32 s{sTmp2}, s{sTmp2}, s{sSt}']
        for g in range(2):
            b = acc + 8 * g
            for i in range(8): ops.append(f'v_mul_f32 v{b+i}, v{b+i}, v{AB + 4*(2*g + i//4)}')
            for i in range(4): ops.append(f'v_cvt_pk_bf16_f32 v{T+4*g+i}, v{b+2*i}, v{b+2*i+1}')
            if g == 1: ops.append(f's_add_u32 s{sTmp2}, s{sTmp2}, 4096')
            ops.append(('vmem', f'buffer_store_dwordx4 {vr(T+4*g, 4)}, v{vL16}, s[16:19], s{sTmp2} offen {sflag}', ('store', cj)))
        return ops
    def signal(cj, r):
        return [('waitvm', ('store', cj)), f's_mov_b32 s5, 1\ns_add_u32 s6, s{sFw}, {4*r}\ns_atomic_add s5, s[28:29], s6']
    def poll(areg):
        return [f's_load_dword s4, s[28:29], s{areg} glc']
    def spin(areg):
        l = a.newlabel('K3_sp'); l2 = a.newlabel('K3_ok')
        return [f's_mov_b32 s{sSpin}, 0\n{l}:\ns_cmp_ge_u32 s4, 8\ns_cbranch_scc1 {l2}\ns_add_u32 s{sSpin}, s{sSpin}, 1\ns_cmp_gt_u32 s{sSpin}, {SPIN_MAX}\ns_cbranch_scc1 {l2}\n'
                f's_load_dword s4, s[28:29], s{areg} glc\ns_waitcnt lgkmcnt(0)\ns_branch {l}\n{l2}:']
    RN = [8, 8, 2]
    def ploads(rd, buf):
        n = RN[rd] // 2
        ops = [f's_lshl_b32 s{sTmp2}, s{sPh+rd}, 13', f's_add_u32 s{sTmp2}, s{sTmp2}, s{sPf}']
        if n == 1: ops += [f's_lshl_b32 s{sX}, s{sW}, 2', f's_add_u32 s{sTmp2}, s{sTmp2}, s{sX}']
        mn = {4: 'buffer_load_dwordx4', 1: 'buffer_load_dword'}[n]
        for s in range(8):
            ops.append(('vmem', f'{mn} {vr(buf + n*s, n)}, v{vL16}, s[16:19], s{sTmp2} offen sc1', ('p', rd, s)))
            if s < 7: ops.append(f's_add_u32 s{sTmp2}, s{sTmp2}, {MAT}')
        return ops
    def stage(rd):
        x = [f's_lshl_b32 s{sX}, s{sPh+rd}, 7', f's_mov_b32 m0, s{sLg+rd}', f's_add_u32 s{sX}, s{sX}, s{sXo}',
             ('vmem', f'buffer_load_dwordx4 v{vTmp}, s[8:11], s{sX} offen lds', 'stg')]
        z = [f's_lshl_b32 s{sX}, s{sPh+rd}, 18', f's_add_u32 m0, s{sLg+rd}, 1024', f's_add_u32 s{sX}, s{sX}, s{sZo}',
             ('vmem', f'buffer_load_dwordx4 v{vTmp2}, s[16:19], s{sX} offen {LF} lds', 'stg')]
        return [x, z]
    sXo, sZo = 39, 49
    def x1reads():
        ops = [f's_mul_i32 s{sSpin}, s{sG}, 36864', f's_lshr_b32 s{sX}, s{sCq}, 1', f's_lshl_b32 s{sX}, s{sX}, 10', f's_add_u32 s{sSpin}, s{sSpin}, s{sX}',
               f's_and_b32 s{sX}, s{sCq}, 1', f's_lshl_b32 s{sX}, s{sX}, 3', f's_add_u32 s{sSpin}, s{sSpin}, s{sX}']
        for rd in range(3):
            ops += [f's_lshl_b32 s{sX}, s{sPh+rd}, 11', f's_add_u32 s{sX}, s{sX}, s{sSpin}']
            if rd == 2:
                ops += [f's_lshr_b32 s{sTmp2}, s{sW}, 1', f's_mul_i32 s{sTmp2}, s{sTmp2}, 18432', f's_add_u32 s{sX}, s{sX}, s{sTmp2}',
                        f's_and_b32 s{sTmp2}, s{sW}, 1', f's_lshl_b32 s{sTmp2}, s{sTmp2}, 2', f's_add_u32 s{sX}, s{sX}, s{sTmp2}']
            ops.append(f'v_add_u32 v{vTmp}, s{sX}, v{vB[0]}')
            ops.append(('lds', f'ds_read_b64 {vr(X1R + 4*rd, 2)}, v{vTmp}' if rd < 2 else f'ds_read_b32 v{X1R + 8}, v{vTmp}', 'x1r'))
            if rd < 2: ops.append(('lds', f'ds_read_b64 {vr(X1R + 4*rd + 2, 2)}, v{vTmp} offset:18432', 'x1r'))
        ops += [f's_mul_i32 s{sXo}, s{sRow}, 1152', f's_lshl_b32 s{sX}, s{sCq}, 5', f's_add_u32 s{sXo}, s{sXo}, s{sX}',
                f's_lshl_b32 s{sZo}, s{sCq}, 16', f's_lshl_b32 s{sX}, s{sRow}, 1', f's_add_u32 s{sZo}, s{sZo}, s{sX}', f's_add_u32 s{sZo}, s{sZo}, {WS_ZT}',
                f'v_lshrrev_b32 v{vTmp}, 1, v0', f'v_mul_u32_u24 v{vTmp}, 1152, v{vTmp}', f'v_and_b32 v{vTmp2}, 1, v0',
                f'v_lshl_add_u32 v{vTmp}, v{vTmp2}, 4, v{vTmp}', f'v_lshrrev_b32 v{vTmp2}, 2, v0', f'v_lshlrev_b32 v{vTmp2}, 12, v{vTmp2}',
                f'v_and_b32 v{vFl}, 3, v0', f'v_lshl_add_u32 v{vTmp2}, v{vFl}, 4, v{vTmp2}', f'v_and_b32 v{vFl}, 15, v0', f'v_lshlrev_b32 v{vFl}, 3, v{vFl}']
        return ops
    def unp(d, s, i): return f'v_lshlrev_b32 v{d}, 16, v{s+i//2}' if i % 2 == 0 else f'v_and_b32 v{d}, 0xffff0000, v{s+i//2}'
    def cvt(d, r, n): return [f'v_cvt_pk_bf16_f32 v{d+i}, v{r+2*i}, v{r+2*i+1}' for i in range(n//2)]
    def rnd(r, n, tmp): return cvt(tmp, r, n) + [unp(r+i, tmp, i) for i in range(n)]
    XP = [R, R + 4, CS]; SP = [[AB+1, AB+2, AB+3, AB+5], [AB+6, AB+7, AB+9, AB+10], [CS+2, CS+3]]; VO = [AB+11, AB+13, AB+14]
    def pre_ops(rd):
        n = RN[rd]; ops = []
        xr = XP[rd]; zr = PA; S = PA + 4; U = PA + 12; TM = PA + 20; vO = VO[rd]; a1, a2 = PA + 24, PA + 25
        if n == 8: ops += [f's_mov_b32 s{sX}, 0']
        else: ops += [f's_lshr_b32 s{sX}, s{sW}, 1']
        ops += [f'v_and_b32 v{a1}, 15, v0', f'v_lshrrev_b32 v{a2}, 4, v0', f'v_lshlrev_b32 v{a2}, 3, v{a2}',
                f'v_mul_u32_u24 v{vO}, 1152, v{a1}', f'v_add_u32 v{vO}, v{vO}, v{a2}', f'v_lshl_add_u32 v{a1}, v{a1}, 5, v{a2}',
                f's_lshl_b32 s{sSpin}, s{sX}, 9', f's_add_u32 s{sSpin}, s{sSpin}, s{sLg+rd}', f'v_add_u32 v{a1}, s{sSpin}, v{a1}']
        ops.append(('lds', f'ds_read_b64 {vr(xr, 2)}, v{a1}', ('x', rd)))
        if n == 8: ops.append(('lds', f'ds_read_b64 {vr(xr+2, 2)}, v{a1} offset:512', ('x', rd)))
        ops += [f'v_lshrrev_b32 v{a1}, 2, v0', f'v_and_b32 v{a2}, 3, v0', f'v_lshlrev_b32 v{a2}, 3, v{a2}', f'v_lshl_add_u32 v{a1}, v{a1}, 6, v{a2}',
                f's_lshl_b32 s{sSpin}, s{sX}, 5', f's_add_u32 s{sSpin}, s{sSpin}, s{sLg+rd}', f'v_add_u32 v{a1}, s{sSpin}, v{a1}']
        ops.append(('lds', f'ds_read_b64_tr_b16 {vr(zr, 2)}, v{a1} offset:1024', ('z', rd)))
        if n == 8: ops.append(('lds', f'ds_read_b64_tr_b16 {vr(zr+2, 2)}, v{a1} offset:{1024+32}', ('z', rd)))
        ops += [f's_mul_i32 s{sSpin}, s{sX}, {16*1152}', f's_add_u32 s{sSpin}, s{sSpin}, s{sXo}', f'v_add_u32 v{vO}, s{sSpin}, v{vO}',
                f's_lshl_b32 s{sSpin}, s{sPh+rd}, 7', f'v_add_u32 v{vO}, s{sSpin}, v{vO}']
        if n < 8:
            ops += [f's_cmp_eq_u32 s{sX}, 1\ns_cselect_b64 vcc, -1, 0', f'v_cndmask_b32 v{ST1}, v{ST1}, v{ST1+2}, vcc', f'v_cndmask_b32 v{ST1+1}, v{ST1+1}, v{ST1+3}, vcc']
        st = lambda i: ST1 + 2*(i//4)
        ops.append(('wait', ('x', rd)))
        if n == 2:
            ops += [('wait', ('z', rd)), f's_bitcmp1_b32 s{sW}, 0\ns_cselect_b64 vcc, -1, 0\ns_cselect_b32 s{sSpin}, 4, 0', f'v_cndmask_b32 v{xr}, v{xr}, v{xr+1}, vcc',
                    f'v_cndmask_b32 v{zr}, v{zr}, v{zr+1}, vcc', f'v_add_u32 v{vO}, s{sSpin}, v{vO}']
        ops += [unp(S+i, xr, i) for i in range(n)]
        ops += [f'v_sub_f32 v{S+i}, v{S+i}, v{st(i)}' for i in range(n)] + rnd(S, n, TM)
        ops += [f'v_mul_f32 v{S+i}, v{S+i}, v{st(i)+1}' for i in range(n)] + rnd(S, n, TM)
        ops.append(('wait', ('z', rd)))
        ops += [unp(U+i, zr, i) for i in range(n)] + [f'v_mul_f32 v{S+i}, v{S+i}, v{U+i}' for i in range(n)]
        ops += [f'v_cvt_pk_bf16_f32 v{SP[rd][i]}, v{S+2*i}, v{S+2*i+1}' for i in range(n//2)]
        return ops
    def cost(op):
        if not isinstance(op, str): return 0 if op[0] in ('wait', 'waitvm') else 1
        if op.startswith('v_exp') or op.startswith('v_rcp') or op.startswith('v_sqrt'): return 2
        return 1
    def emit(op):
        if isinstance(op, str): a(op)
        elif op[0] == 'wait': a.wait(lg=op[1])
        elif op[0] == 'waitvm': a.wait(vm=op[1])
        elif op[0] == 'lds': a.lds(op[1], op[2])
        elif op[0] == 'vmem': a.vmem(op[1], op[2])
        elif op[0] == 'fspin': fspin(a, 28, 's7', op[1], first_loaded=True, sleep=8, wg=True)
        elif op[0] == 'bar':
            a.wait(lg_all=True); a('s_barrier')
        elif op[0] == 'barvm':
            a.wait(vm=op[1]); a('s_barrier')
    F = [[[] for m in range(4)] for n in range(NST)]
    def spread(ops, g0, g1):
        wts = [(0.55 if g % 4 == 3 else 1.0) for g in range(g0, g1)]
        tw = sum(wts); tot = sum(cost(o) for o in ops)
        cum = 0; gi = 0; acc_w = wts[0]
        for o in ops:
            while gi < len(wts) - 1 and (cum + cost(o) * 0.5) / max(tot, 1) > acc_w / tw:
                gi += 1; acc_w += wts[gi]
            g = g0 + gi
            F[g // 4][g % 4].append(o)
            cum += cost(o)
    def run_main():
        nld = depth
        a.wait(vm=('x1', 0), lg_all=True); a('s_barrier')
        a.tr(2) if trc is None else None
        for u in range(3):
            for op in oprd(0, u): emit(op)
        for i in range(12, 18): F[(i-12)//3][(i-12)%3] += xd(i)
        for c in range(9):
            F[2 + c//3][c%3] += [f's_mov_b32 s{sTmp2}, {WS_ST2 + c * 16384}', ('vmem', f'buffer_load_dwordx2 {vr(SB[c], 2)}, v{vTmp}, s[16:19], s{sTmp2} offen {LF}', 'stat')]
        for u in range(3, 18):
            n = u - 3
            if u % 6 == 0: F[n][0].insert(0, ('barvm', ('x1', u // 6)))
            for m, o in enumerate(oprd(0, u)): F[n][m].append(o)
        if rp4: spread(rp4setup(), 4*5, 4*9)
        spread(x1reads(), 4*9+1, 4*12)
        spread(stats_code(), 4*12, 4*17)
        F[17][0] += [('bar',), ('lds', f'ds_read_b128 {vr(CS, 4)}, v{vCS} offset:0', ('cs', 0))]
        for gc in range(17):
            n0 = 18 * (gc + 1)
            acc = ACC[gc % 2]
            if gc < 9:
                gs = [gelu4(acc, x, gc) for x in range(4)]
                E = [('wait', [('cs', gc), 'ab'])] + sum([g[:4] for g in gs], [])
                if gc < 8: E.append(('lds', f'ds_read_b128 {vr(CS, 4)}, v{vCS} offset:{(gc+1)*256}', ('cs', gc + 1)))
                for x in range(4): E += gs[x][4:]
                if gc == 8:
                    F[n0][0] += [('bar',)] + oprd(1, 14) + oprd(1, 15)
                    spread(E, 4*n0 + 2, 4*(n0 + 14))
                    F[n0+13][3] += [('bar',)] + oprd(1, 16) + oprd(1, 17)
                else:
                    spread(E, 4*n0 + 2, 4*(n0 + 18))
            else:
                spread(out16(acc, gc - 9), 4*n0 + 2, 4*(n0 + 5))
        F[144][0].insert(0, ('bar',))
        for u in range(14):
            for m, o in enumerate(oprd(1, u)): F[144 + u + 1][m].append(o)
        P2 = 162
        slow = []
        for i in range(WLN):
            u = 18 - WLN + i
            slow.append(([f's_add_u32 s{sX}, s{sCh+8}, s{sK+u//2}', f's_add_u32 m0, s{sWl}, {1024*i}', f's_add_u32 s{sX}, s{sX}, {WBYTES + (u%2)*1024}'] if rot1 else
                         [f's_add_u32 m0, s{sWl}, {1024*i}', f's_add_u32 s{sX}, s{sCh+8}, {WBYTES + u*1024}']) + [
                         ('vmem', f'buffer_load_dwordx4 v{vL16}, s[16:19], s{sX} offen {LF} lds', 'wl')])
        sx = [stage(r)[0] for r in range(3)] + [[f's_lshl_b32 s{sX}, s{sRow}, 3', f's_add_u32 s{sX}, s{sX}, {WS_ST1}',
               ('vmem', f'buffer_load_dwordx2 {vr(ST1, 2)}, v{vFl}, s[16:19], s{sX} offen {LF}', 'stg'),
               ('vmem', f'buffer_load_dwordx2 {vr(ST1+2, 2)}, v{vFl}, s[16:19], s{sX} offen offset:128 {LF}', 'stg')]]
        zs_ = [stage(r)[1] for r in range(3)]
        if not rp4:
            slow = sx + slow + zs_
            pos = [22 + (i * 118) // len(slow) for i in range(len(slow))]
            for i, x in enumerate(slow): F[pos[i]][3] += x
            chk = ((pos[4], FL_W4, sSl, 162), (pos[-3], FL_Z, sCq, 576))
        else:
            n = rp_at
            for h in range(2):
                for i in range(4):
                    F[n][3] += [f's_add_u32 m0, s{sWl}, {h*4096 + i*1024}', f's_add_u32 s{sX}, s{R4[h]}, {i*8*1152}',
                                ('vmem', f'buffer_load_dwordx4 v{PA+30}, s[12:15], s{sX} offen nt lds', ('r4', h))]
                    n += rp_gap
            F[n][3] += [f's_load_dwordx2 s[12:13], s[0:1], 88\ns_mov_b32 s14, {MAT}']
            n += rp_wait
            for h in range(2):
                F[n][3] += [('waitvm', ('r4', h))]
                for t in range(4):
                    F[n + t//2][3] += [f'v_xor_b32 v{PA+29}, {32*t}, v{PA+31}'] + [('lds', f'ds_read_b64_tr_b16 {vr(PA + 4*t + 2*hh, 2)}, v{PA+29} offset:{h*4096 + hh*2048}', ('r4r', h, t)) for hh in range(2)]
                for t in range(4):
                    F[n + 3 + t][3] += [f's_add_u32 s{sX}, s{R4[2+h]}, {t*18432}', ('wait', ('r4r', h, t)),
                                        ('vmem', f'buffer_store_dwordx4 {vr(PA + 4*t, 4)}, v{vL16}, s[16:19], s{sX} offen sc1', 'r4s')]
                n += 8
            n += 10
            F[n][3] += [('waitvm', 'r4s'), f's_barrier\ns_bitcmp1_b32 s{sW}, 0\ns_cbranch_scc1 P3_n4\ns_mov_b32 s5, 2\ns_atomic_add s5, s[28:29], s{R4[4]}\ns_cmp_ge_u32 s2, 68\ns_cbranch_scc1 P3_n4\ns_atomic_add s5, s[28:29], s{R4[5]}\nP3_n4:']
            p0 = n + 2
            for i, x in enumerate(sx + zs_): F[p0 + 3*i][3] += x
            assert p0 + 3*7 <= w0 - 2, (p0,)
            for i, x in enumerate(slow): F[w0 + wgap*i][3] += x
            chk = ((w0, FL_W4, sSl, 162), (p0 + 12, FL_Z, sCq, 576))
        F[1][3] += [f's_cmp_lg_u32 s{sW}, 0\ns_cbranch_scc1 P3_nz\ns_atomic_add s{sLo}, s[28:29], s{sHi}\nP3_nz:']
        for (p_, base, idx, tgt) in chk:
            F[p_-9][2] += [f's_mul_i32 s7, s{idx}, {FLS}\ns_add_u32 s7, s7, {base}\ns_cmp_lg_u32 s{sW}, 0\ns_cbranch_scc1 P3_c{tgt}\ns_load_dword s4, s[28:29], s7 glc\nP3_c{tgt}:']
            F[p_][2] += [('fspin', tgt)]
        def wreg(n):
            return W + 4 * (n % NB) if n < NLD + 4 else W + 4 * ((NLD - 2 + (n - NLD + 2) % 6) % NB)
        for n in range(NLD, NST):
            F[n-4][1].append(('lds', f'ds_read_b128 {vr(wreg(n), 4)}, v{vWL} offset:{(n-NLD)*1024}', ('wl', n)))
        busy = sorted({(wreg(n) - W) // 4 for n in range(NLD - 2, NST)})
        free = [i for i in range(NB) if i not in busy]
        runs = [i for i in range(NB - 7) if all((i + k) in free for k in range(8))]
        PB = W + 4 * runs[0]
        PD = AV
        for rd in range(3): spread(pre_ops(rd), 4*(P2 + 18*(2+rd) + 6), 4*(P2 + 18*(2+rd) + 18))
        F[P2+18*5+2][1] += signal(3, 0)
        F[P2+18*6+10][1] += poll(sFr)
        F[P2+18*7+a_at][0] += ['s_waitcnt lgkmcnt(0)'] + spin(sFr)
        spread(ploads(0, PA), 4*(P2+18*7+a_at)+1, 4*(P2+18*7+a_at+3))
        F[P2+18*7+14][1] += signal(6, 1)
        F[NST-1][0] += poll(sNeed)
        for c in range(18):
            if trc is None:
                if c in (1, 9, 10, 17): a.tr({1: 3, 9: 4, 10: 5, 17: 6}[c])
            elif trc <= c < trc + 10: Gen.tr(a, c - trc)
            for u in range(18):
                n = 18 * c + u
                cnt = 0
                while n >= 5 and nld < min(n + depth + 1, NLD) and cnt < 2:
                    ld(nld); nld += 1; cnt += 1
                if n >= NLD: a.wait(lg=('wl', n))
                elif n >= 18:
                    if n % 2 == 0: a.wait(vm=('w', n + 1))
                else: a.wait(vm=('w', n))
                if c in (0, 9): a.wait(lg=('op', c // 9, u))
                r = wreg(n); acc = ACC[c % 2]
                for rt in range(4):
                    cin = '0' if u == 0 else vr(acc + 4*rt, 4)
                    a(f'v_mfma_f32_16x16x32_bf16 {vr(acc + 4*rt, 4)}, {vr(r, 4)}, {opreg(u, rt)}, {cin}')
                    for op in F[n][rt]: emit(op)
        a.tr(7)
        def pk(op, d, s0, s1, n): return [f'{op} {vr(d+2*i, 2)}, {vr(s0+2*i, 2)}, {vr(s1+2*i, 2)}' for i in range(n//2)]
        def accb(d, s, n): return [f'v_dot2c_f32_bf16 v{d+i}, s{sLo if i % 2 == 0 else sHi}, v{s+i//2}' for i in range(n)]
        def fin_ops(rd, buf):
            n = RN[rd]; h = n // 2; B = ACC[0]; U = ACC[0] + 8; x1r = X1R + 4 * rd; TM = AV + 16; O = AV + 20 + 4 * rd; vO = VO[rd]
            ops = [('waitvm', ('p', rd, 0))] + [unp(B+i, buf, i) for i in range(n)]
            for s in range(1, 8):
                ops += [('waitvm', ('p', rd, s))] + accb(B, buf + h*s, n)
            ops += rnd(B, n, TM) + accb(B, x1r, n) + rnd(B, n, TM)
            ops += [f'v_mul_f32 v{U+i}, {fhex(-1.4426950408889634)}, v{B+i}' for i in range(n)]
            ops += [f'v_exp_f32 v{U+i}, v{U+i}' for i in range(n)] + [f'v_add_f32 v{U+i}, 1.0, v{U+i}' for i in range(n)] + [f'v_rcp_f32 v{U+i}, v{U+i}' for i in range(n)]
            ops += pk('v_pk_mul_f32', B, B, U, n) + [unp(U+i, SP[rd][i//2], i % 2) for i in range(n)] + rnd(B, n, TM) + pk('v_pk_mul_f32', B, B, U, n) + rnd(B, n, TM) + accb(B, XP[rd], n)
            ops += cvt(O, B, n)
            ops.append(('vmem', f'buffer_store_dwordx2 {vr(O, 2)}, v{vO}, s[12:15], 0 offen' if n > 2 else f'buffer_store_dword v{O}, v{vO}, s[12:15], 0 offen', 'o'))
            if n == 8: ops += [f's_movk_i32 s{sTmp}, {16*1152}', ('vmem', f'buffer_store_dwordx2 {vr(O+2, 2)}, v{vO}, s[12:15], s{sTmp} offen', 'o')]
            return ops
        fa = fin_ops(0, PA)
        def run(seq):
            for op in seq: emit(op)
        run(out16(ACC[1], 8) + [f's_mov_b32 s{sLo}, 0x3f80', f's_mov_b32 s{sHi}, 0x3f800000'] + signal(7, 2) + [f's_add_u32 s7, s{sFr}, 12'])
        half = t1
        run(fa[:half] + signal(8, 3) + ['s_waitcnt lgkmcnt(1)' if False else 's_waitcnt lgkmcnt(0)'] + spin(sNeed) + ploads(1, PB) + fa[half:-3])
        a.tr(8)
        run(poll(7) + fa[-3:])
        a('s_waitcnt lgkmcnt(0)\ns_cmp_ge_u32 s4, 8\ns_cbranch_scc0 K3_q2')
        vm0 = list(a.vm)
        fb = fin_ops(1, PB)
        run(ploads(2, PD) + fb[:-3])
        a('s_branch K3_join2\nK3_q2:')
        a.vm = vm0
        run(poll(7) + fb[:-3] + ['s_waitcnt lgkmcnt(0)'] + spin(7) + ploads(2, PD))
        a('K3_join2:')
        a.vm = [('p', 2, s) for s in range(8)]
        a.tr(9)
        run(fb[-3:] + fin_ops(2, PD))
    return dict(e1a=e1a, e1w=e1w, e1b=e1b, e1c=e1c, e2=e2, emit=emit, main=run_main, W=W, nv=nv, regs=V.names)
```

```python
import sys, hz
from common import *
import front, p3
from front import sW, sig
NAME = 'recurrent_scan__ssm_conv_h3__mixer_s_mlp__prompt_kernel'

def gen(stamps=False, trace=False, opt={}, p3kw={}, trp='front', dbg=False):
    a = Gen(); a.trace = trace
    on = [True]
    a.tr = lambda i: Gen.tr(a, i) if (on[0] or i >= 10) else None
    a('KSTART:\ns_cmp_ge_u32 s2, 256\ns_cbranch_scc1 K_end')
    if stamps: stamp_start(a)
    def dbgpt(i, inv=False):
        if not dbg: return
        l = a.newlabel('DB')
        a(f's_cmp_lg_u32 s{sW}, 0\ns_cbranch_scc1 {l}\ns_memrealtime s[96:97]\ns_waitcnt lgkmcnt(0)' if not inv else f's_cmp_lg_u32 s{sW}, 0\ns_cbranch_scc1 {l}\ns_not_b32 s96, s98')
        a(f's_atomic_umax s96, s[100:101], {4*i}\ns_waitcnt lgkmcnt(0)\n{l}:')
    if dbg: a('s_memrealtime s[98:99]')
    trace_init(a); trace_wave(a)
    a(f'''s_load_dwordx2 s[28:29], s[0:1], 104
    s_load_dwordx2 s[16:17], s[0:1], 104
    s_load_dwordx2 s[100:101], s[0:1], 96
    s_getpc_b64 s[6:7]
    s_lshr_b32 s3, s2, 3
    v_lshrrev_b32 v1, 4, v0
    v_lshl_add_u32 v1, s3, 4, v1
    v_lshlrev_b32 v1, 7, v1
    v_min_u32 v1, KEND - KSTART - 256, v1
    global_load_dword v255, v1, s[6:7]
    v_lshrrev_b32 v1, 6, v0
    v_and_b32 v0, 63, v0
    v_readfirstlane_b32 s{sW}, v1
    s_mov_b32 s18, {WS_END}
    s_mov_b32 s19, 0x20000
    s_cmp_ge_u32 s2, 144
    s_cbranch_scc1 K_side''')
    P = p3.make_p3(a, **p3kw)
    on[0] = trp == 'front'
    r = front.gen_G(a, opt)
    P['e1a']()
    a.wait(vm='cr')
    P['e1w'](True)
    def mid():
        a.wait(vm='xs')
        a(f's_barrier\ns_bitcmp1_b32 s{sW}, 0\ns_cbranch_scc1 K_nx')
        sig(a, 's89')
        a('K_nx:')
        a.tr(9)
        if dbg: a('s_memrealtime s[94:95]')
    front.gen_Gconv_main(a, None, P['e1b'](), mid, opt.get('mid_at', 2))
    on[0] = trp == 'p3'
    P['e1c']()
    a('s_branch K_e2\nK_side:')
    a.vm = []; a.lg = []
    on[0] = trp == 'front'
    front.gen_S(a, opt)
    on[0] = trp == 'p3'
    if dbg: a('s_memrealtime s[94:95]')
    P['e1a']()
    P['e1w']()
    for op in P['e1b'](): P['emit'](op)
    P['e1c']()
    a('K_e2:')
    a.tr(0)
    P['e2']()
    a.tr(1)
    a('K_p3:')
    if dbg: a('s_memrealtime s[92:93]')
    a.lg = ['any']
    on[0] = trp == 'p3' and p3kw.get('trc') is None
    P['main']()
    if dbg:
        a('s_waitcnt vmcnt(0) lgkmcnt(0)')
        dbgpt(2); dbgpt(1, True)
        l = a.newlabel('DB')
        a(f's_cmp_lg_u32 s{sW}, 0\ns_cbranch_scc1 {l}\ns_atomic_umax s98, s[100:101], 12\ns_atomic_umax s92, s[100:101], 24\ns_cmp_ge_u32 s2, 144\ns_cselect_b32 s3, 20, 16\ns_atomic_umax s94, s[100:101], s3\n{l}:')
    if stamps:
        a.tr(10); a('s_waitcnt vmcnt(0) lgkmcnt(0)'); a.tr(11)
        trace_dump(a, 28, 0, P['W'] + 8)
        stamp_end(a, 28, 0, vtmp=P['W'])
    a('K_end:\ns_endpgm\n.fill 64, 4, 0xbf800000\nKEND:')
    return hz.fix(a.text())

def build(single=False, **kw):
    body = gen(**kw)
    t = build_file([(NAME, 256, 256, 163840)], [(NAME, body, 512, 102, 256)])
    if single: t = t.replace(f'; @launch kernel={NAME} grid', '; @launch grid')
    return t
if __name__ == '__main__':
    HEADER = open('recurrent_scan__ssm_conv_h3__mixer_s_mlp__prompt.s.ref').read().split('; Override launch')[0]
    kw = eval(sys.argv[2]) if len(sys.argv) > 2 else {}
    open(sys.argv[1], 'w').write(HEADER + build(single=True, **kw))
```

```python
from asmlib import *
import struct
MAT = 2048 * 576 * 2
WS_HF   = 0
WS_X1F  = 1 * MAT
WS_KVR  = 2 * MAT
WS_ZT   = 3 * MAT
WS_PF   = 4 * MAT
WS_ST1  = 12 * MAT
WS_ST2  = WS_ST1 + 16384
WS_CS3  = WS_ST2 + 9 * 16384
import os
FLS = int(os.environ.get('FLS', 4352))
WS_FL   = WS_CS3 + 9 * 4608 * 4
FL_H, FL_X, FL_W3, FL_W4, FL_KV, FL_Z = [WS_FL + FLS * i for i in (128, 192, 224, 232, 240, 249)]
WS_TS   = 13 * MAT
WBYTES  = 576 * 4608 * 2
WS_WP3  = 14 * MAT
WS_WP4  = WS_WP3 + WBYTES
WS_XP   = WS_WP4 + WBYTES
WS_END  = WS_XP + MAT

def f2u(x):
    return struct.unpack('<I', struct.pack('<f', x))[0]
def fhex(x):
    return '0x%08x' % f2u(x)

class Gen(Asm):
    def __init__(self):
        super().__init__()
        self.vm = []
        self.lg = []
    def vmem(self, s, tag=None):
        self(s); self.vm.append(tag)
    def lds(self, s, tag=None):
        self(s); self.lg.append(tag)
    def _n(self, q, tags):
        if not isinstance(tags, (list, tuple, set)) or (isinstance(tags, tuple)): tags = [tags]
        last = -1
        for i, t in enumerate(q):
            if t in tags: last = i
        if last < 0: return None
        return len(q) - 1 - last
    def wait(self, vm=None, lg=None, vm_all=False, lg_all=False):
        parts = []
        if vm_all: nv = 0 if self.vm else None
        else: nv = self._n(self.vm, vm) if vm is not None else None
        if lg_all: nl = 0 if self.lg else None
        else: nl = self._n(self.lg, lg) if lg is not None else None
        if nv is not None:
            nv = min(nv, 63)
            parts.append(f'vmcnt({nv})'); self.vm = self.vm[len(self.vm) - nv:] if nv else []
        if nl is not None:
            nl = min(nl, 15)
            parts.append(f'lgkmcnt({nl})'); self.lg = self.lg[len(self.lg) - nl:] if nl else []
        if parts: self('s_waitcnt ' + ' '.join(parts))
    trace = False
    def tr(self, i):
        if self.trace: self(f's_mem{"real" if self.trace == 2 else ""}time s[{68+2*i}:{69+2*i}]')
    def srd(self, d, lo, hi, size):
        self(f's_mov_b32 s{d}, s{lo}\ns_mov_b32 s{d+1}, s{hi}\ns_mov_b32 s{d+2}, {size}\ns_mov_b32 s{d+3}, 0x20000')

GELU_C0 = -2.0 * 1.4426950408889634 * 0.7978845608028654
GELU_C1 = GELU_C0 * 0.044715

def stamp_start(a, s=92):
    a(f's_memrealtime s[{s}:{s+1}]\ns_memtime s[{s+4}:{s+5}]')
def stamp_end(a, ws_lo, kidx, s=92, vtmp=0):
    a(f'''s_memrealtime s[{s+2}:{s+3}]
    s_memtime s[{s+6}:{s+7}]
    s_waitcnt lgkmcnt(0)
    s_lshl_b32 s{s+1}, s2, 4
    s_add_u32 s{s+1}, s{s+1}, {WS_TS + kidx * 16384}
    s_sub_u32 s{s+6}, s{s+6}, s{s+4}
    s_getreg_b32 s{s+7}, hwreg(HW_REG_XCC_ID)
    v_mov_b32 v{vtmp}, s{s}
    v_mov_b32 v{vtmp+1}, s{s+2}
    v_mov_b32 v{vtmp+2}, s{s+6}
    v_mov_b32 v{vtmp+3}, s{s+7}
    v_mov_b32 v{vtmp+4}, s{s+1}
    global_store_dwordx4 v{vtmp+4}, v[{vtmp}:{vtmp+3}], s[{ws_lo}:{ws_lo+1}]''')

def trace_init(a):
    if a.trace:
        for i in range(12): a(f's_mov_b32 s{68+2*i}, 0')
def trace_dump(a, ws_lo, kidx, vtmp, s=92):
    if not a.trace: return
    a('s_waitcnt lgkmcnt(0)')
    for i in range(12):
        if a.trace != 2: a(f's_sub_u32 s{68+2*i}, s{68+2*i}, s{s+4}')
        a(f'v_mov_b32 v{vtmp+i}, s{68+2*i}')
    a(f's_lshl_b32 s68, s2, 4\ns_add_u32 s68, s68, s67\ns_lshl_b32 s68, s68, 6\ns_add_u32 s68, s68, {WS_TS + 65536 + kidx * 524288}\nv_mov_b32 v{vtmp+12}, s68')
    for i in range(3): a(f'global_store_dwordx4 v{vtmp+12}, v[{vtmp+4*i}:{vtmp+4*i+3}], s[{ws_lo}:{ws_lo+1}] offset:{16*i}')
def trace_wave(a):
    if a.trace: a('v_lshrrev_b32 v1, 6, v0\ns_nop 0\nv_readfirstlane_b32 s67, v1')

def touch_code(a, label, nbytes, sp, vaddr, vdst, uniq):
    a(f's_getpc_b64 s[{sp}:{sp+1}]\n{uniq}:\ns_add_u32 s{sp}, s{sp}, {label}-{uniq}\ns_addc_u32 s{sp+1}, s{sp+1}, 0\nv_lshlrev_b32 v{vaddr}, 7, v0')
    n = (nbytes + 8191) // 8192
    for i in range(n):
        if i == n - 1:
            a(f'v_min_u32 v{vaddr}, {nbytes - 4}, v{vaddr}')
        a(f'global_load_dword v{vdst}, v{vaddr}, s[{sp}:{sp+1}]')
        if i < n - 1: a(f'v_add_u32 v{vaddr}, 8192, v{vaddr}')

MAPB = [1]
def slice_code(dst, tmp):
    b = MAPB[0]
    return f's_and_b32 s{dst}, s2, {(8 >> b) - 1}\ns_lshl_b32 s{dst}, s{dst}, {b}\ns_bfe_u32 s{tmp}, s2, {(b << 16) | 3}\ns_add_u32 s{dst}, s{dst}, s{tmp}'
def mt_code(dst, tmp):
    b = MAPB[0]
    return f's_lshr_b32 s{dst}, s2, {3 + b}\ns_bfe_u32 s{tmp}, s2, {(b << 16) | (3 - b)}\ns_lshl_b32 s{tmp}, s{tmp}, {5 - b}\ns_add_u32 s{dst}, s{dst}, s{tmp}'
```

```python
from common import *
SPIN_MAX = 200000
sW = 23
SC = 'sc1'
NT = 'nt'

def bf16r(d, s): return [f'v_cvt_pk_bf16_f32 v{d}, v{s}, v{s}', f'v_lshlrev_b32 v{d}, 16, v{d}']
def unp(d, s, i): return f'v_lshlrev_b32 v{d}, 16, v{s+i//2}' if i % 2 == 0 else f'v_and_b32 v{d}, 0xffff0000, v{s+i//2}'

def spin(a, base, areg, target, first_loaded=False, sleep=2, wg=False, vec=False):
    l = a.newlabel('SP'); l2 = a.newlabel('OK')
    if wg: a(f's_cmp_ge_u32 s{sW}, {int(wg)}\ns_cbranch_scc1 {l2}')
    if not first_loaded: a(f's_load_dword s4, s[{base}:{base+1}], {areg} glc')
    a(f'''s_mov_b32 s3, 0
    {l}:
    s_waitcnt lgkmcnt(0)
    s_cmp_ge_u32 s4, {target}
    s_cbranch_scc1 {l2}
    s_add_u32 s3, s3, 1
    s_cmp_gt_u32 s3, {SPIN_MAX}
    s_cbranch_scc1 {l2}''')
    if sleep: a(f's_sleep {sleep}')
    if vec: a(f'v_mov_b32 v254, {areg}\nglobal_load_dword v255, v254, s[{base}:{base+1}] sc1\ns_waitcnt vmcnt(0)\nv_readfirstlane_b32 s4, v255\ns_nop 0')
    else: a(f's_load_dword s4, s[{base}:{base+1}], {areg} glc')
    a(f's_branch {l}\n{l2}:')
    if wg: a('s_waitcnt lgkmcnt(0)\ns_barrier')
    a.lg = []
def check_go(a): spin(a, 100, '0', 4, sleep=32)
def sig(a, areg, val=1): a(f's_mov_b32 s5, {val}\ns_atomic_add s5, s[28:29], {areg}')

class Sched:
    def __init__(self, a): self.a = a; self.q = []
    def add(self, ops): self.q += ops
    def emit(self, op):
        a = self.a
        if isinstance(op, str): a(op)
        elif op[0] == 'wait': a.wait(lg=op[1])
        elif op[0] == 'waitvm': a.wait(vm=op[1])
        elif op[0] == 'lds': a.lds(op[1], op[2])
        elif op[0] == 'vmem': a.vmem(op[1], op[2])
    def fill(self, units):
        while self.q and units > 0:
            op = self.q.pop(0); self.emit(op)
            if isinstance(op, str): units -= 2 if op[:5] in ('v_exp', 'v_rcp', 'v_sqr') else 1
            elif op[0] in ('lds',): units -= 1
            elif op[0] == 'vmem': units -= 2
    def flush(self): self.fill(1 << 30)

CSL = 147456
def zaddr(o, d): return f's_lshr_b32 s{o}, s{d}, 4\ns_lshl_b32 s{o}, s{o}, 16\ns_and_b32 s5, s{d}, 15\ns_lshl_b32 s5, s5, 6\ns_add_u32 s{o}, s{o}, s5\ns_add_u32 s{o}, s{o}, {WS_ZT}\nv_lshrrev_b32 v1, 2, v0\nv_and_b32 v3, 3, v0\nv_lshlrev_b32 v3, 4, v3\nv_lshl_add_u32 v1, v1, 10, v3'
def gch(d, t): return f's_lshr_b32 s{d}, s2, 2\ns_lshl_b32 s{d}, s{d}, 4\ns_and_b32 s{t}, s2, 3\ns_add_u32 s{d}, s{d}, s{t}\ns_add_u32 s{d}, s{d}, 12'
W2B = 73728

def gen_G(a, opt):
    V = Regs(4, 256)
    X = V.alloc('x', 16, 4); WF = V.alloc('wf', 32, 4); ACC = V.alloc('acc', 32, 4)
    SUM = V.alloc('sum', 8, 4); GR = V.alloc('gr', 8, 4); CSA = V.alloc('csa', 8, 4); ONE = V.alloc('one', 4, 4)
    CSR = V.alloc('csr', 32, 4); TT = V.alloc('tt', 32, 4); PKD = SUM; XN = CSR
    ST = V.alloc('st', 16, 4)
    KC = V.alloc('kc', 4, 2); KRW = V.alloc('krw', 8, 4)
    vXs = V.alloc('xs', 2); vWs = V.alloc('ws', 2); vXr = V.alloc('xr', 2); vTr = V.alloc('tr', 8); vHa = V.alloc('ha', 8)
    vCs = V.alloc('cs', 2); vL16 = V.alloc('l16'); vDg = V.alloc('dg'); vRow = V.alloc('row'); vW2 = V.alloc('w2')
    assert TT + 32 <= 200
    sMt, sC, sKb, sT, sT2, sXo, sWo, sG32, sW2, sW1 = 20, 21, 22, 24, 25, 26, 27, 30, 31, 32
    sSh = 34
    sMk = 40
    sXl, sWl = 56, 57
    a(f'''
    s_load_dwordx2 s[8:9], s[0:1], 0
    s_load_dwordx4 s[60:63], s[0:1], 56
    s_and_b32 s{sMt}, s2, 7
    s_lshl_b32 s{sMt}, s{sMt}, 1
    s_bfe_u32 s{sT}, s2, 0x10003
    s_add_u32 s{sMt}, s{sMt}, s{sT}
    s_lshr_b32 s{sC}, s2, 4
    s_mul_i32 s{sT}, s{sT}, {opt.get('rotb', 1)}
    s_and_b32 s{sKb}, s2, 7
    s_mul_i32 s{sKb}, s{sKb}, {opt.get('rotx', 2)}
    s_add_u32 s{sKb}, s{sKb}, s{sT}
    s_add_u32 s{sKb}, s{sKb}, s{sC}
    s_mul_i32 s{sT}, s{sKb}, 57
    s_lshr_b32 s{sT}, s{sT}, 9
    s_mul_i32 s{sT}, s{sT}, 9
    s_sub_u32 s{sKb}, s{sKb}, s{sT}
    s_lshl_b32 s{sG32}, s{sMt}, 2
    s_add_u32 s{sG32}, s{sG32}, s{sW}
    s_mul_i32 s{sXo}, s{sG32}, {32*1152}
    s_mul_i32 s{sWo}, s{sW}, {16*1152}
    s_lshl_b32 s{sT}, s{sC}, 7
    s_add_u32 s{sWo}, s{sWo}, s{sT}
    s_lshl_b32 s{sXl}, s{sW}, 12
    s_add_u32 s{sXl}, s{sXl}, 8192
    s_lshl_b32 s{sWl}, s{sW}, 11
    s_and_b32 s{sW2}, s{sW}, 2
    s_and_b32 s{sW1}, s{sW}, 1
    v_lshrrev_b32 v1, 3, v0
    v_mul_u32_u24 v1, 1152, v1
    v_and_b32 v2, 7, v0
    v_lshrrev_b32 v3, 4, v0
    v_xor_b32 v{vXs}, v2, v3
    v_lshl_add_u32 v{vXs}, v{vXs}, 4, v1
    v_xor_b32 v{vXs+1}, 64, v{vXs}
    v_lshlrev_b32 v{vW2}, 1, v3
    v_xor_b32 v{vW2}, v2, v{vW2}
    v_lshl_add_u32 v{vW2}, v{vW2}, 4, v1
    v_and_b32 v3, 1, v3
    v_lshlrev_b32 v3, 1, v3
    v_xor_b32 v{vWs}, v2, v3
    v_lshl_add_u32 v{vWs}, v{vWs}, 4, v1
    v_xor_b32 v{vWs+1}, 64, v{vWs}
    s_mov_b32 s10, {MAT}
    s_mov_b32 s11, 0x20000
    s_mov_b32 s14, {576*1152}
    s_mov_b32 s15, 0x20000
    s_waitcnt lgkmcnt(0)
    s_mov_b32 s12, s60
    s_mov_b32 s13, s61
    ''')
    a.tr(0)
    def issue(t):
        sl = (t % 3) * 24576
        ops = [f's_lshl_b32 s{sT}, s{sKb}, 7\ns_add_u32 s{sT}, s{sT}, s{sXo}\ns_mul_i32 s{sT2}, s{sKb}, {64*1152}\ns_add_u32 s{sT2}, s{sT2}, s{sWo}']
        for i in range(4):
            ops.append(f's_add_u32 m0, s{sXl}, {sl + i*1024}' + (f'\ns_add_u32 s{sT}, s{sT}, {8*1152}' if i else '\ns_nop 0'))
            ops.append(('vmem', f'buffer_load_dwordx4 v{vXs + i%2}, s[8:11], s{sT} offen {opt.get("xnt", "")} lds', ('st', t)))
        for j in range(2):
            ops.append(f's_add_u32 m0, s{sWl}, {sl + j*1024}' + (f'\ns_add_u32 s{sT2}, s{sT2}, {8*1152}' if j else '\ns_nop 0'))
            ops.append(('vmem', f'buffer_load_dwordx4 v{vWs + j}, s[12:15], s{sT2} offen {opt.get("wnt", "")} lds', ('st', t)))
        ops.append(f's_add_u32 s{sKb}, s{sKb}, 1\ns_cmp_eq_u32 s{sKb}, 9\ns_cselect_b32 s{sKb}, 0, s{sKb}')
        return ops
    S = Sched(a)
    S.add(issue(0)); S.flush()
    a('s_barrier')
    S.add(issue(1)); S.flush()
    gen_Gearly(a, KRW)
    a(f'''
    v_lshlrev_b32 v{vL16}, 4, v0
    v_and_b32 v1, 15, v0
    v_lshrrev_b32 v2, 4, v0
    s_lshl_b32 s{sT}, s{sW1}, 2
    v_add_u32 v3, s{sT}, v2
    v_lshrrev_b32 v{vXr}, 1, v1
    v_xor_b32 v3, v3, v{vXr}
    v_lshlrev_b32 v3, 4, v3
    v_lshl_add_u32 v3, v1, 7, v3
    v_add_u32 v{vXr}, s{sXl}, v3
    v_xor_b32 v{vXr+1}, 64, v{vXr}
    s_lshl_b32 s{sT}, s{sG32}, 5
    v_add_u32 v{vRow}, s{sT}, v1
    v_lshrrev_b32 v3, 2, v1
    v_lshl_add_u32 v{vDg}, v3, 4, v1
    v_lshlrev_b32 v{vDg}, 2, v{vDg}
    v_lshl_add_u32 v{vTr}, v2, 3, v3
    v_lshlrev_b32 v{vTr}, 7, v{vTr}
    v_lshrrev_b32 v3, 1, v3
    v_and_b32 v{vTr+1}, 1, v2
    v_lshl_add_u32 v3, v{vTr+1}, 1, v3
    v_xor_b32 v3, s{sW2}, v3
    v_lshl_add_u32 v{vTr}, v3, 5, v{vTr}
    v_and_b32 v3, 3, v0
    v_lshl_add_u32 v{vTr}, v3, 3, v{vTr}
    s_lshl_b32 s{sT}, s{sW1}, 12
    v_add_u32 v{vTr}, s{sT}, v{vTr}
    s_lshl_b32 s{sT}, s{sW2}, 6
    s_add_u32 s{sT}, s{sT}, {CSL}
    v_lshl_add_u32 v{vCs}, v2, 4, s{sT}
    v_xor_b32 v{vCs+1}, 128, v{vCs}
    ''')
    for j in range(1, 4): a(f'v_xor_b32 v{vTr+j}, {32*j}, v{vTr}')
    for j in range(4): a(f'v_xor_b32 v{vTr+4+j}, 4096, v{vTr+j}')
    for i in range(4): a(f'v_mov_b32 v{ONE+i}, 0x3f803f80')
    a(f'v_mov_b32 v{KC}, {fhex(GELU_C0)}\nv_mov_b32 v{KC+1}, {fhex(GELU_C0)}\nv_mov_b32 v{KC+2}, {fhex(GELU_C1)}\nv_mov_b32 v{KC+3}, {fhex(GELU_C1)}')
    a(f'v_and_b32 v3, 48, v0\ns_movk_i32 s33, 0x800')
    for j in range(4):
        a(f'''s_xor_b32 s{sT}, s{sW2}, {j}
        s_lshl_b32 s{sT2}, s{sC}, 2
        s_add_u32 s{sT}, s{sT}, s{sT2}
        s_lshr_b32 s58, s{sT}, 1
        s_lshl_b32 s58, s58, 10
        s_add_u32 s58, s58, {WS_HF + (j & 1) * 8}
        s_mul_i32 s{sT}, s{sT}, 57
        s_lshr_b32 s{sT}, s{sT}, 9
        s_lshr_b32 s{sT2}, s{sT}, 1
        s_add_u32 s{sT2}, s{sT2}, 1
        s_bitcmp1_b32 s{sT}, 0
        s_cselect_b32 s{sT}, -1, 1
        s_mul_i32 s{sSh+j}, s{sT}, s{sT2}''')
        for rt in range(2):
            a(f'''s_add_u32 s{sT}, s{sSh+j}, {16*rt}
            v_add_u32 v1, s{sT}, v{vRow}
            v_cmp_gt_u32 s[{sMk+2*(4*rt+j)}:{sMk+2*(4*rt+j)+1}], s33, v1
            v_and_b32 v1, 0x7ff, v1
            v_lshrrev_b32 v2, 4, v1
            v_mul_u32_u24 v2, 18432, v2
            v_and_b32 v1, 15, v1
            v_add_u32 v1, v1, v3
            v_lshl_add_u32 v1, v1, 4, v2
            v_add_u32 v{vHa+4*rt+j}, s58, v1''')
    def reads(k):
        t, uu = k // 2, k % 2; sl = (t % 3) * 24576; ops = []
        for rt in range(2): ops.append(('lds', f'ds_read_b128 {vr(X + 8*uu + 4*rt, 4)}, v{vXr+uu} offset:{sl + rt*2048}', ('r', k)))
        for j in range(4):
            for h in range(2): ops.append(('lds', f'ds_read_b64_tr_b16 {vr(WF + 16*uu + 4*j + 2*h, 2)}, v{vTr+4*uu+j} offset:{sl + h*512}', ('r', k)))
        return ops
    def mf(d, A, B, first): return f'v_mfma_f32_16x16x32_bf16 {vr(d, 4)}, {vr(A, 4)}, {vr(B, 4)}, {"0" if first else vr(d, 4)}'
    def mfmas(k):
        uu = k % 2; st = []; mm = []
        for rt in range(2):
            x = X + 8*uu + 4*rt
            st += [mf(SUM+4*rt, ONE, x, k == 0), mf(GR+4*rt, x, x, k == 0)]
        if uu == 0: st += [mf(CSA+4*j, WF + 4*j, ONE, k == 0) for j in range(2)]
        for j in range(4):
            for rt in range(2): mm.append(mf(ACC + 16*rt + 4*j, WF + 16*uu + 4*j, X + 8*uu + 4*rt, k == 0))
        if opt.get('nostat'): st = st[:0] if k else st
        return st + mm
    def stats_ops():
        ops = [f'v_and_b32 v1, 3, v0', f'v_cmp_eq_u32 vcc, 1, v1', f'v_cmp_eq_u32 s[58:59], 2, v1', f'v_cmp_eq_u32 s[64:65], 3, v1']
        for rt in range(2):
            g = GR + 4*rt
            ops += [f'v_cndmask_b32 v{g}, v{g}, v{g+1}, vcc', f'v_cndmask_b32 v{g}, v{g}, v{g+2}, s[58:59]', f'v_cndmask_b32 v{g}, v{g}, v{g+3}, s[64:65]',
                    ('lds', f'ds_bpermute_b32 v{g+1}, v{vDg}, v{g}', 'gr')]
        ch = [[], []]
        for rt in range(2):
            m, var, m1, r1, t0, t1, al, be = [ST + 8*rt + i for i in range(8)]
            def dn(dst, v): return bf16r(dst, v) + [f'v_add_f32 v{dst}, {fhex(1e-5)}, v{dst}'] + bf16r(dst, dst) + [f'v_sqrt_f32 v{dst}, v{dst}'] + bf16r(dst, dst) + [f'v_rcp_f32 v{dst}, v{dst}']
            o = [f'v_mul_f32 v{m}, {fhex(1/576)}, v{SUM+4*rt}'] + bf16r(m1, m) + [('wait', 'gr'), f'v_mul_f32 v{var}, {fhex(1/576)}, v{GR+4*rt+1}',
                 f'v_fma_f32 v{var}, -v{m}, v{m}, v{var}', f'v_max_f32 v{var}, 0, v{var}'] + dn(r1, var) + [f'v_sub_f32 v{t0}, v{m}, v{m1}', f'v_mul_f32 v{t0}, v{t0}, v{r1}',
                 f'v_mul_f32 v{var}, v{var}, v{r1}', f'v_mul_f32 v{var}, v{var}, v{r1}'] + bf16r(t0, t0) + dn(t1, var) + [f'v_fma_f32 v{t0}, v{m1}, v{r1}, v{t0}',
                 f'v_mul_f32 v{al}, v{r1}, v{t1}', f'v_mul_f32 v{be}, v{t0}, v{t1}', f'v_sub_f32 v{be}, 0, v{be}']
            ch[rt] = o
        for x, y in zip(ch[0], ch[1]): ops += [x, y]
        return ops
    XBL = 40960
    def xbops():
        ops = [f's_lshl_b32 s{sT}, s{sC}, 7\ns_add_u32 s{sT}, s{sT}, s{sXo}']
        for i in range(4):
            ops.append(f's_add_u32 m0, s{sXl}, {XBL - 8192 + i*1024}' + (f'\ns_add_u32 s{sT}, s{sT}, {8*1152}' if i else '\ns_nop 0'))
            ops.append(('vmem', f'buffer_load_dwordx4 v{vXs + i%2}, s[8:11], s{sT} offen lds', 'xb'))
        return ops
    def w2ops(t):
        ops = [f's_mul_i32 s{sT2}, s{sKb}, {64*1152}\ns_add_u32 s{sT2}, s{sT2}, s{sWo}']
        for j in range(2):
            ops.append(f's_add_u32 m0, s{sWl}, {W2B + t*8192 + j*1024}' + (f'\ns_add_u32 s{sT2}, s{sT2}, {8*1152}' if j else '\ns_nop 0'))
            ops.append(('vmem', f'buffer_load_dwordx4 v{vW2}, s[12:15], s{sT2} offen lds', 'w2'))
        ops.append(f's_add_u32 s{sKb}, s{sKb}, 1\ns_cmp_eq_u32 s{sKb}, 9\ns_cselect_b32 s{sKb}, 0, s{sKb}')
        return ops
    a.tr(1)
    for t in range(10):
        if t < 9: a.wait(vm=('st', t), lg_all=True)
        else: a.wait(lg_all=True)
        a('s_barrier')
        if t in (0, 4): a.tr(2 + t // 4)
        if t == 8: a('s_load_dword s4, s[100:101], 0')
        if t < 9:
            S.add(reads(2*t))
            if t == 0: S.flush()
            if t + 2 < 9: S.add(issue(t + 2))
            nw = opt.get('w2n', (2, 5))
            if t == 7: S.add([f's_mov_b32 s12, s62\ns_mov_b32 s13, s63\ns_mov_b32 s{sKb}, s{sC}'] + sum([w2ops(i) for i in range(nw[0])], []))
            if t == 8: S.add(sum([w2ops(i) for i in range(nw[0], nw[1])], []))
        else:
            for par in range(2):
                for j in range(4): S.add([('lds', f'ds_read_b128 {vr(CSR + 16*par + 4*j, 4)}, v{vCs + j//2} offset:{par*256 + (j&1)*64}', 'cs')])
        if t > 0:
            ms = mfmas(2*t - 1)
            for i, m in enumerate(ms):
                a(m)
                if t == 9 and i == 5: S.add(stats_ops())
                S.fill(2 if t == 9 else 3)
        if t < 9:
            if t < 7: S.flush()
            S.q = reads(2*t + 1) + S.q
            a.wait(lg=('r', 2*t))
            ms = mfmas(2*t)
            for i, m in enumerate(ms):
                a(m); S.fill(2 if t < 7 else 3)
            S.flush()
            if t == 8:
                a(f's_lshl_b32 s{sT}, s{sW1}, 8\nv_add_u32 v1, s{sT}, v{vCs}')
                for j in range(2): a.lds(f'ds_write_b128 v1, {vr(CSA+4*j, 4)} offset:{64*j}', 'csw')
    S.flush()
    a.tr(4)
    spin(a, 100, '0', 4, first_loaded=True, sleep=4, vec=True)
    a(gch(66, 58) + f'\ns_lshr_b32 s59, s66, 6\ns_mul_i32 s59, s59, {FLS}\ns_add_u32 s59, s59, {FL_KV}\ns_mov_b32 s58, 0\ns_cmp_lg_u32 s{sW}, 3\ns_cbranch_scc1 G_k1\ns_load_dword s4, s[28:29], s59 glc\nG_k1:')
    RDMA = f's_mov_b32 m0, {RO}\ns_lshl_b32 s64, s66, 12\ns_add_u32 s64, s64, {WS_KVR}\n' + '\n'.join(f'buffer_load_dwordx4 v{vL16}, s[16:19], s64 offen offset:{1024*i} {SC} lds' for i in range(4))
    a.wait(lg='cs')
    def pk(op, d, s0, s1, s2=None, sel=''): return f'{op} {vr(d, 2)}, {vr(s0, 2)}, {vr(s1, 2)}' + (f', {vr(s2, 2)}' if s2 is not None else '') + sel
    for i in range(8): a(pk('v_pk_add_f32', CSR + 2*i, CSR + 2*i, CSR + 16 + 2*i))
    a(f'''v_lshlrev_b32 v1, 3, v{vRow}
    s_mov_b32 s{sT}, {WS_ST1}
    s_cmp_eq_u32 s{sC}, 0
    s_cselect_b32 s{sT}, s{sT}, {WS_END}''')
    for rt in range(2): a.vmem(f'buffer_store_dwordx2 {vr(ST+8*rt+2, 2)}, v1, s[16:19], s{sT} offen offset:{128*rt} {SC}', 'hs')
    S.add(sum([w2ops(i) for i in range(opt.get('w2n', (2, 5))[1], 9)], []) + xbops())
    a_ = a
    cnt = [0]
    class AW:
        def __call__(self, x):
            a_(x); cnt[0] += 1
            if cnt[0] % 2 == 0: S.fill(1)
        def __getattr__(self, n): return getattr(a_, n)
    a = AW()
    for rt in range(2):
        if rt == 1: a = a_
        al = ST + 8*rt + 6; A_ = ACC + 16*rt; T_ = TT + 16*rt
        for i in range(8): a(pk('v_pk_mul_f32', T_+2*i, CSR+2*i, al, sel=' op_sel:[0,1] op_sel_hi:[1,1]'))
        for i in range(8): a(pk('v_pk_fma_f32', A_+2*i, A_+2*i, al, T_+2*i, sel=' op_sel_hi:[1,0,1]'))
        for i in range(8): a(pk('v_pk_mul_f32', T_+2*i, A_+2*i, A_+2*i))
        for i in range(8): a(pk('v_pk_fma_f32', T_+2*i, T_+2*i, KC+2, KC))
        for i in range(8): a(pk('v_pk_mul_f32', T_+2*i, T_+2*i, A_+2*i))
        for i in range(16): a(f'v_exp_f32 v{T_+i}, v{T_+i}')
        for i in range(8): a(f'v_pk_add_f32 {vr(T_+2*i, 2)}, {vr(T_+2*i, 2)}, 1.0 op_sel_hi:[1,0]')
        for i in range(16): a(f'v_rcp_f32 v{T_+i}, v{T_+i}')
        for i in range(8): a(pk('v_pk_mul_f32', A_+2*i, A_+2*i, T_+2*i))
        P_ = PKD + 8*rt
        a = a_; S.flush()
        if rt == 0: a(f's_cmp_lg_u32 s{sW}, 3\ns_cbranch_scc1 G_k2\ns_waitcnt lgkmcnt(0)\ns_cmp_lt_u32 s4, 32\ns_cbranch_scc1 G_k2\n{RDMA}\ns_mov_b32 s58, 1\nG_k2:')
        for i in range(8): a(f'v_cvt_pk_bf16_f32 v{P_+i}, v{A_+2*i}, v{A_+2*i+1}')
        for i in range(8):
            mk = sMk + 2*(4*rt + i//2)
            a(f'v_cndmask_b32 v{P_+i}, 0, v{P_+i}, s[{mk}:{mk+1}]')
        for p in range(2):
            l1 = a.newlabel('HS'); l2 = a.newlabel('HE')
            a(f's_cmp_eq_u32 s{sSh+2*p}, s{sSh+2*p+1}\ns_cbranch_scc0 {l1}')
            a(f'buffer_store_dwordx4 {vr(P_+4*p, 4)}, v{vHa+4*rt+2*p}, s[16:19], 0 offen {SC}\ns_branch {l2}\n{l1}:')
            a(f'buffer_store_dwordx2 {vr(P_+4*p, 2)}, v{vHa+4*rt+2*p}, s[16:19], 0 offen {SC}')
            a(f'buffer_store_dwordx2 {vr(P_+4*p+2, 2)}, v{vHa+4*rt+2*p+1}, s[16:19], 0 offen {SC}\n{l2}:')
            a.vm.append('hs')
    a.tr(5)
    a(f'''v_and_b32 v1, 15, v0
    v_lshrrev_b32 v2, 5, v0
    v_lshrrev_b32 v3, 1, v1
    v_xor_b32 v2, v2, v3
    v_lshlrev_b32 v2, 4, v2
    v_lshl_add_u32 v2, v1, 7, v2
    v_bfe_u32 v3, v0, 4, 1
    v_lshl_add_u32 v2, v3, 3, v2
    s_add_u32 s{sT}, s{sXl}, {XBL - 8192}
    v_add_u32 v2, s{sT}, v2
    v_lshrrev_b32 v1, 2, v0
    v_lshlrev_b32 v3, 7, v1
    v_bfe_u32 v1, v1, 1, 2
    v_lshl_add_u32 v3, v1, 5, v3
    v_and_b32 v1, 3, v0
    v_lshl_add_u32 v3, v1, 3, v3
    v_add_u32 v{vTr}, {W2B}, v3''')
    for j in range(1, 4): a(f'v_xor_b32 v{vTr+j}, {32*j}, v{vTr}')
    for j in range(4): a(f'v_add_u32 v{vTr+4+j}, 36864, v{vTr+j}')
    a.wait(vm='xb')
    for t in range(4):
        a(f'v_xor_b32 v1, {32*t}, v2')
        for rt in range(2): a.lds(f'ds_read_b64 {vr(XN + 8*rt + 2*t, 2)}, v1 offset:{2048*rt}', 'xn')
        for rt in range(2): a.lds(f'ds_read_b64 {vr(XN + 16 + 4*t + 2*rt, 2)}, v1 offset:{2048*rt}', 'xn2')
    a.wait(lg='xn')
    for rt in range(2):
        m1 = ST + 8*rt + 2; T_ = TT + 16*rt; N_ = XN + 8*rt
        for i in range(16): a(unp(T_+i, N_, i))
        for i in range(8): a(pk('v_pk_add_f32', T_+2*i, T_+2*i, m1, sel=' op_sel_hi:[1,0] neg_lo:[0,1] neg_hi:[0,1]'))
        for i in range(8): a(f'v_cvt_pk_bf16_f32 v{N_+i}, v{T_+2*i}, v{T_+2*i+1}')
        for i in range(16): a(unp(T_+i, N_, i))
        for i in range(8): a(pk('v_pk_mul_f32', T_+2*i, T_+2*i, m1, sel=' op_sel:[0,1] op_sel_hi:[1,1]'))
        for i in range(8): a(f'v_cvt_pk_bf16_f32 v{N_+i}, v{T_+2*i}, v{T_+2*i+1}')
    gen_Gconv_build(a, KRW, WF)
    a.wait(vm='hs', lg_all=True)
    a(f'''s_barrier
    s_cmp_eq_u32 s{sW}, 3
    s_cbranch_scc1 G_h3
    s_add_u32 s{sT}, s{sMt}, s{sW}
    s_add_u32 s{sT}, s{sT}, 15
    s_and_b32 s{sT}, s{sT}, 15
    s_lshl_b32 s{sT}, s{sT}, 2
    s_add_u32 s{sT}, s{sT}, s{sW}
    s_mul_i32 s{sT}, s{sT}, {FLS}
    s_add_u32 s41, s{sT}, {FL_H}
    s_mov_b32 s5, 1
    s_atomic_add s5, s[28:29], s41
    s_branch G_h4
    G_h3:
    s_cmp_eq_u32 s58, 1
    s_cbranch_scc1 G_h4''')
    spin(a, 28, 's59', 32, sleep=2)
    a(RDMA)
    a(f'''G_h4:
    s_mul_i32 s40, s{sG32}, {FLS}
    s_add_u32 s40, s40, {FL_H}
    s_mov_b32 s27, s66''')
    a.tr(6)
    a(f's_mul_i32 s{sXo}, s{sG32}, {2*18432}\ns_mov_b32 s{sKb}, s{sC}\ns_mov_b32 s12, s6\ns_mov_b32 s13, s7\ns_mov_b32 s14, {WBYTES}')
    a('s_waitcnt vmcnt(0)\ns_barrier')
    a(f's_lshr_b32 s{sT}, s{sG32}, 1\ns_mul_i32 s{sT}, s{sT}, 73728\ns_lshl_b32 s{sT2}, s{sC}, 13\ns_add_u32 s{sT}, s{sT}, s{sT2}\ns_lshl_b32 s{sT2}, s{sW1}, 12\ns_add_u32 s{sT}, s{sT}, s{sT2}\ns_add_u32 s{sT}, s{sT}, {WS_XP}')
    for t in range(4): a.vmem(f'buffer_store_dwordx4 {vr(XN + 16 + 4*t, 4)}, v{vL16}, s[16:19], s{sT} offen offset:{1024*t} {SC}', 'xp')
    def hld(k):
        ops = []
        if k % 2 == 0:
            ops.append(f's_lshl_b32 s{sT}, s{sKb}, 11\ns_add_u32 s{sT}, s{sT}, s{sXo}\ns_add_u32 s{sT2}, s{sT}, 18432\ns_add_u32 s{sKb}, s{sKb}, 1\ns_cmp_eq_u32 s{sKb}, 9\ns_cselect_b32 s{sKb}, 0, s{sKb}')
        for rt in range(2):
            ops.append(('vmem', f'buffer_load_dwordx4 {ar(8*k + 4*rt, 4)}, v{vL16}, s[16:19], s{sT if rt == 0 else sT2} offen offset:{(k%2)*1024} {SC}', ('h', k)))
        return ops
    assert WS_HF == 0
    LA = opt.get('hla', 5)
    def hpre(): a(f's_cmp_eq_u32 s{sW}, 3\ns_cbranch_scc1 G_h5\ns_load_dword s4, s[28:29], s40 glc\nG_h5:')
    def hbar():
        spin(a, 28, 's40', 9, first_loaded=True, sleep=0, wg=3)
        a.tr(7)
        for k in range(LA): S.add(hld(k))
        S.flush()
    gen_Gconv_main(a, mid=hpre, mid_at=opt.get('hpre', 9), bar=hbar, PS=TT)
    def w2rd(k):
        ops = []
        for j in range(4):
            for h in range(2):
                o = k * 4096 + h * 2048; hi = o >= 36864
                ops.append(('lds', f'ds_read_b64_tr_b16 {vr(WF + 16*(k%2) + 4*j + 2*h, 2)}, v{vTr + 4*hi + j} offset:{o - 36864*hi}', ('r2', k)))
        return ops
    S.add(w2rd(0)); S.flush()
    for k in range(18):
        if k + 1 < 18: S.add(w2rd(k + 1))
        if k + LA < 18: S.add(hld(k + LA))
        a.wait(vm=('h', k), lg=('r2', k))
        for j in range(4):
            for rt in range(2):
                d = ACC + 16*rt + 4*j
                a(f'v_mfma_f32_16x16x32_bf16 {vr(d, 4)}, {vr(WF + 16*(k%2) + 4*j, 4)}, {ar(8*k + 4*rt, 4)}, {"0" if k == 0 else vr(d, 4)}')
                S.fill(2)
        S.flush()
    a.tr(8)
    a(f's_mov_b32 s6, 0x3f80\ns_mov_b32 s7, 0x3f800000\ns_lshl_b32 s{sT}, s{sC}, 11\ns_add_u32 s{sT}, s{sT}, s{sXo}\ns_add_u32 s{sT}, s{sT}, {WS_X1F}')
    for rt in range(2):
        A_ = ACC + 16*rt; P_ = PKD + 8*rt; N_ = XN + 8*rt
        for i in range(8): a(f'v_cvt_pk_bf16_f32 v{P_+i}, v{A_+2*i}, v{A_+2*i+1}')
        for i in range(16): a(unp(A_+i, P_, i))
        for i in range(16): a(f'v_dot2c_f32_bf16 v{A_+i}, s{6 + i%2}, v{N_+i//2}')
        for i in range(8): a(f'v_cvt_pk_bf16_f32 v{P_+i}, v{A_+2*i}, v{A_+2*i+1}')
        if rt: a(f's_add_u32 s{sT}, s{sT}, 18432')
        for p in range(2): a.vmem(f'buffer_store_dwordx4 {vr(P_+4*p, 4)}, v{vL16}, s[16:19], s{sT} offen offset:{1024*p} {SC}', 'xs')
    SS = TT
    for rt in range(2):
        a(f'v_mov_b32 v{SS+2*rt}, 0\nv_mov_b32 v{SS+2*rt+1}, 0')
    for i in range(8):
        for rt in range(2):
            a(f'v_dot2c_f32_bf16 v{SS+2*rt}, v{ONE}, v{PKD+8*rt+i}\nv_dot2c_f32_bf16 v{SS+2*rt+1}, v{PKD+8*rt+i}, v{PKD+8*rt+i}')
    a(f'''v_permlane16_swap_b32 v{SS}, v{SS+2}
    v_permlane16_swap_b32 v{SS+1}, v{SS+3}
    v_add_f32 v{SS}, v{SS}, v{SS+2}
    v_add_f32 v{SS+1}, v{SS+1}, v{SS+3}
    v_mov_b32 v{SS+2}, v{SS}
    v_mov_b32 v{SS+3}, v{SS+1}
    v_permlane32_swap_b32 v{SS}, v{SS+2}
    v_permlane32_swap_b32 v{SS+1}, v{SS+3}
    v_add_f32 v{SS}, v{SS}, v{SS+2}
    v_add_f32 v{SS+1}, v{SS+1}, v{SS+3}
    v_and_b32 v1, 31, v0
    v_lshlrev_b32 v1, 3, v1
    s_lshl_b32 s{sT}, s{sC}, 14
    s_lshl_b32 s{sT2}, s{sG32}, 8
    s_add_u32 s{sT}, s{sT}, s{sT2}
    s_add_u32 s{sT}, s{sT}, {WS_ST2}''')
    a.vmem(f'buffer_store_dwordx2 {vr(SS, 2)}, v1, s[16:19], s{sT} offen {SC}', 'xs')
    a(f's_lshr_b32 s{sT}, s{sG32}, 1\ns_mul_i32 s{sT}, s{sT}, {FLS}\ns_add_u32 s89, s{sT}, {FL_X}')
    return dict(sigX='s89')

CH = 37888; RO = 33280; CST = 4160

def conv_srd(a, sD):
    a(f'''s_lshl_b32 s24, s{sD}, 12
    s_add_u32 s8, s60, s24
    s_addc_u32 s9, s61, 0
    s_mov_b32 s10, 4096
    s_mov_b32 s11, 0x20000
    s_mov_b32 s12, s62
    s_mov_b32 s13, s63
    s_mov_b32 s14, 1152
    s_mov_b32 s15, 0x20000''')
def build_ops(D, E, vA, off):
    O = E + 6; O2 = E + 12
    ops = [f'v_mov_b32 v{E+i}, v{D+1+i}' for i in range(6)] + [f'v_alignbit_b32 v{O+i}, v{D+i+1}, v{D+i}, 16' for i in range(6)] + [f'v_alignbit_b32 v{O2+i}, v{D+i+2}, v{D+i+1}, 16' for i in range(6)]
    src = {1: O, 2: E, 3: O2, 4: D+2, 5: O+2, 6: E+2, 7: O2+2, 8: D+4}
    ops += [('lds', f'ds_write_b128 v{vA}, {vr(src[c], 4)} offset:{(c-1)*CST + 16 + off}', 'cw') for c in (4, 8, 2, 6, 1, 5, 3, 7)]
    return ops
def zero_fill(a, Z, sLb):
    a(f'''v_mov_b32 v{Z}, 0
    v_mov_b32 v{Z+1}, 0
    v_mov_b32 v{Z+2}, 0
    v_mov_b32 v{Z+3}, 0
    v_lshlrev_b32 v1, 4, v0
    v_add_u32 v1, {RO + 4096}, v1
    v_and_b32 v3, 7, v0
    v_mul_u32_u24 v3, {CST}, v3
    v_cmp_gt_u32 vcc, 32, v0
    s_nop 1
    v_cndmask_b32 v1, v3, v1, vcc
    v_add_u32 v1, {sLb}, v1''')
    a.lds(f'ds_write_b128 v1, {vr(Z, 4)}', 'z')

def gen_Gearly(a, RAW):
    a(f'''s_load_dwordx4 s[40:43], s[0:1], 32
    s_load_dwordx2 s[6:7], s[0:1], 80
    s_lshl_b32 s44, s{sW}, 10
    v_lshl_add_u32 v252, v0, 4, s44
    v_subrev_u32 v3, 16, v252
    s_mov_b32 s48, s24
    s_mov_b32 s49, s25
    s_mov_b32 s50, s26
    s_mov_b32 s51, s27
    s_lshl_b32 s52, s2, 1
    s_lshr_b32 s53, s{sW}, 1
    s_add_u32 s52, s52, s53''')
    rp_decode(a, 4, 52, 88, 91, 90)
    a(f'''s_and_b32 s24, s{sW}, 1
    s_lshl_b32 s25, s24, 10
    s_add_u32 s91, s91, s25
    s_mul_i32 s24, s24, {32*1152}
    s_add_u32 s88, s88, s24
    s_mov_b32 s24, s48
    s_mov_b32 s25, s49
    s_mov_b32 s26, s50
    s_mov_b32 s27, s51
    {gch(52, 53)}
    s_lshl_b32 s53, s52, 12
    s_lshl_b32 s52, s52, 1
    s_mov_b32 s46, 4096
    s_mov_b32 s47, 0x20000
    s_mov_b32 s50, 1152
    s_mov_b32 s51, 0x20000
    s_waitcnt lgkmcnt(0)
    s_add_u32 s44, s40, s53
    s_addc_u32 s45, s41, 0
    s_mov_b32 s48, s42
    s_mov_b32 s49, s43''')
    a.vmem(f'buffer_load_dwordx4 {vr(RAW, 4)}, v3, s[44:47], 0 offen {NT}', 'ck')
    a.vmem(f'buffer_load_dwordx4 {vr(RAW+4, 4)}, v252, s[44:47], 0 offen {NT}', 'ck')
    a.vmem(f'buffer_load_ushort v253, off, s[48:51], s52', 'ck')
def gen_Gconv_build(a, RAW, E):
    S = Sched(a)
    zero_fill(a, E, 0)
    a.wait(vm='ck')
    S.add(build_ops(RAW, E + 4, 252, 0)); S.flush()
def gen_Gconv_r(a):
    a(f's_add_u32 s27, s2, 432\ns_lshr_b32 s54, s27, 6\ns_mul_i32 s54, s54, {FLS}\ns_add_u32 s54, s54, {FL_KV}')
    spin(a, 28, 's54', 32, sleep=4, wg=True)
    a(f's_lshl_b32 s54, s{sW}, 10\ns_add_u32 m0, s54, {RO}\ns_lshl_b32 s54, s27, 12\ns_add_u32 s54, s54, {WS_KVR}')
    a.vmem(f'buffer_load_dwordx4 v252, s[16:19], s54 offen {SC} lds', 'cr')
def gen_Gconv_main(a, hook=None, extra=[], mid=None, mid_at=4, bar=None, PS=156):
    ACC = 36; FB = 4; vF, vG, vT = 20, 21, 22; GA = 144
    a(f'''
    v_and_b32 v3, 7, v0
    v_mul_u32_u24 v3, {CST}, v3
    v_bfe_u32 v1, v0, 3, 1
    v_lshrrev_b32 v{vT}, 4, v0
    v_add_u32 v1, v1, v{vT}
    v_lshl_add_u32 v{vF}, v1, 4, v3
    s_lshl_b32 s54, s{sW}, 6
    v_add_u32 v{vF}, s54, v{vF}
    v_and_b32 v1, 15, v0
    v_lshlrev_b32 v1, 5, v1
    v_lshlrev_b32 v{vG}, 4, v{vT}
    v_sub_u32 v{vG}, v{vG}, v1
    s_add_u32 s54, s54, {RO + 4064 - 14*256}
    v_add_u32 v{vG}, s54, v{vG}''')
    def grd(y): a.lds(f'ds_read_b128 {ar(GA + 4*(y+1), 4)}, v{vG} offset:{(14-y)*256}', ('g', y))
    def frd(x): a.lds(f'ds_read_b128 {vr(FB + 4*(x%4), 4)}, v{vF} offset:{x*256}', ('f', x))
    frd(0)
    for y in range(14, -2, -2): grd(y)
    frd(1)
    for y in range(13, -2, -2): grd(y)
    frd(2)
    S = Sched(a)
    S.add(f'''v_lshrrev_b32 v1, 2, v0
    v_and_b32 v1, 8, v1
    v_xor_b32 v1, v1, v0
    s_lshl_b32 s54, s{sW}, 13
    s_add_u32 s54, s54, {CH}
    v_lshl_add_u32 v1, v1, 4, s54
    v_bfe_u32 v2, v0, 1, 4
    v_and_b32 v3, 1, v0
    v_lshlrev_b32 v{vT}, 3, v3
    v_xor_b32 v2, v2, v{vT}
    v_lshl_add_u32 v2, v3, 5, v2
    v_lshrrev_b32 v3, 5, v0
    v_lshl_add_u32 v2, v3, 6, v2
    s_lshl_b32 s54, s{sW}, 11
    s_add_u32 s54, s54, {CH}
    v_lshl_add_u32 v2, v2, 4, s54
    v_sub_u32 v3, {RO + 4080}, v252'''.split('\n'))
    S2 = Sched(a); S2.add(extra)
    U = 24
    S.add([('lds', f'ds_read_b128 {vr(U+8, 4)}, v3', 'u'), f'v_lshlrev_b32 v253, 16, v253', ('wait', 'u')] + [unp(U+r, U+8, 7 - r) for r in range(8)] + [f'v_mul_f32 v{U+r}, v{U+r}, v253' for r in range(8)])
    S.add([f'v_cvt_pk_bf16_f32 v{U+8+i}, v{U+2*i}, v{U+2*i+1}' for i in range(4)] + [unp(U+i, U+8, i) for i in range(8)])
    for x in range(16):
        if x == mid_at and mid: mid()
        if x + 3 < 16: frd(x + 3)
        if x >= 4 and x % 2 == 0:
            j = x // 2 - 2
            S.add([('lds', f'ds_write_b128 v1, {vr(ACC+4*j, 4)} offset:{1024*j}', 'aw')])
        for j in range(7, -1, -1):
            if x <= 2*j + 1:
                y = 2*j - x
                a.wait(lg=[('f', x), ('g', y)])
                a(f'v_mfma_f32_16x16x32_bf16 {vr(ACC+4*j, 4)}, {vr(FB + 4*(x%4), 4)}, {ar(GA + 4*(y+1), 4)}, {"0" if x == 0 else vr(ACC+4*j, 4)}')
                if x >= 2: S.fill(2)
                S2.fill(1)
    S.flush(); S2.flush()
    for j in (6, 7): a.lds(f'ds_write_b128 v1, {vr(ACC+4*j, 4)} offset:{1024*j}', 'aw')
    bar()
    G = PS
    for e in range(4):
        for h in range(2): a.lds(f'ds_read_b128 {vr(G + 8*e + 4*h, 4)}, v2 offset:{8192*e + 256*h}', ('p', e))
    for e in range(1, 4):
        a.wait(lg=('p', e))
        for r in range(4): a(f'v_pk_add_f32 {vr(G+2*r, 2)}, {vr(G+2*r, 2)}, {vr(G+8*e+2*r, 2)}')
    for i in range(4): a(f'v_cvt_pk_bf16_f32 v{U+8+i}, v{G+2*i}, v{G+2*i+1}')
    for i in range(8): a(unp(G+i, U+8, i))
    for r in range(4): a(f'v_pk_add_f32 {vr(G+2*r, 2)}, {vr(G+2*r, 2)}, {vr(U+2*r, 2)}')
    for i in range(4): a(f'v_cvt_pk_bf16_f32 v{G+8+i}, v{G+2*i}, v{G+2*i+1}')
    if hook: hook()
    a(zaddr(54, 27) + f'\ns_lshl_b32 s5, s{sW}, 14\ns_add_u32 s54, s54, s5')
    a.vmem(f'buffer_store_dwordx4 {vr(G+8, 4)}, v1, s[16:19], s54 offen {SC}', 'zs')
    a(f's_bfe_u32 s27, s27, 0x20004\ns_mul_i32 s27, s27, {FLS}\ns_add_u32 s27, s27, {FL_Z}\ns_mov_b32 s54, 4')

GRAW = 208
def rp_addr(a, vS3, vS4, vR, vL):
    a(f'''
    v_lshrrev_b32 v1, 3, v0
    v_and_b32 v2, 6, v1
    v_and_b32 v3, 7, v0
    v_xor_b32 v2, v2, v3
    v_lshlrev_b32 v2, 4, v2
    v_mul_u32_u24 v{vS3}, 9216, v1
    v_add_u32 v{vS3}, v{vS3}, v2
    v_mul_u32_u24 v{vS4}, 1152, v1
    v_add_u32 v{vS4}, v{vS4}, v2
    v_lshrrev_b32 v1, 2, v0
    v_lshlrev_b32 v3, 7, v1
    v_bfe_u32 v2, v1, 1, 2
    v_lshl_add_u32 v3, v2, 5, v3
    v_and_b32 v2, 3, v0
    v_lshl_add_u32 v3, v2, 3, v3
    s_mul_i32 s24, s{sW}, {CH}
    v_add_u32 v{vR}, s24, v3
    v_xor_b32 v{vR+1}, 32, v{vR}
    v_xor_b32 v{vR+2}, 64, v{vR}
    v_xor_b32 v{vR+3}, 96, v{vR}
    v_lshlrev_b32 v{vL}, 4, v0''')
def rp_decode(a, which, sU, sSrc, sDst, sFl, sCs=None):
    a(f'''s_mul_i32 s24, s{sU}, 3237
    s_lshr_b32 s24, s24, 18
    s_mul_i32 s25, s24, 81
    s_sub_u32 s25, s{sU}, s25
    s_mul_i32 s26, s25, 57
    s_lshr_b32 s26, s26, 9
    s_mul_i32 s27, s26, 9
    s_sub_u32 s25, s25, s27
    s_mul_i32 s{sFl}, s24, {FLS}
    s_add_u32 s{sFl}, s{sFl}, {FL_W3 if which == 3 else FL_W4}
    s_mul_i32 s27, s24, 9
    s_add_u32 s{sDst}, s27, s25''')
    if which == 3:
        a(f'''s_mul_i32 s{sCs}, s26, {4608*4}
        s_lshl_b32 s24, s{sDst}, 8
        s_add_u32 s{sCs}, s{sCs}, s24
        s_add_u32 s{sCs}, s{sCs}, {WS_CS3}
        s_lshl_b32 s{sSrc}, s{sDst}, 7
        s_mul_i32 s24, s26, {64*9216}
        s_add_u32 s{sSrc}, s{sSrc}, s24''')
    else:
        a(f'''s_add_u32 s{sSrc}, s27, s26
        s_mul_i32 s{sSrc}, s{sSrc}, {64*1152}
        s_lshl_b32 s24, s25, 7
        s_add_u32 s{sSrc}, s{sSrc}, s24''')
    a(f'''s_mul_i32 s{sDst}, s{sDst}, 73728
    s_lshl_b32 s24, s26, 11
    s_add_u32 s{sDst}, s{sDst}, s24
    s_add_u32 s{sDst}, s{sDst}, {WS_WP3 if which == 3 else WS_WP4}''')
def rp_issue(a, which, srd, vS, sSrc, lds_off, tag):
    pitch = 9216 if which == 3 else 1152
    a(f's_mul_i32 s24, s{sW}, {CH}\ns_add_u32 m0, s24, {lds_off}\ns_nop 0')
    for i in range(8):
        a.vmem(f'buffer_load_dwordx4 v{vS}, s[{srd}:{srd+3}], s{sSrc} offen {NT} lds', tag)
        if i < 7: a(f's_add_u32 m0, m0, 1024\ns_add_u32 s{sSrc}, s{sSrc}, {8*pitch}')
def rp_finish(a, which, D, vR, vL, sDst, lds_off, tag, stag, ONE=None, CA=None, sCs=None):
    a.wait(vm=tag)
    for uu in range(2):
        for t in range(4):
            for h in range(2):
                a.lds(f'ds_read_b64_tr_b16 {vr(D + 16*uu + 4*t + 2*h, 2)}, v{vR+t} offset:{lds_off + uu*4096 + h*2048}', ('rr', uu, t))
    for t in range(4):
        if t: a(f's_add_u32 s{sDst}, s{sDst}, 18432')
        for uu in range(2):
            a.wait(lg=('rr', uu, t))
            a.vmem(f'buffer_store_dwordx4 {vr(D + 16*uu + 4*t, 4)}, v{vL}, s[16:19], s{sDst} offen offset:{uu*1024} {SC}', stag)
            if which == 3:
                a(f'v_mfma_f32_16x16x32_bf16 {vr(CA+4*t, 4)}, {vr(ONE, 4)}, {vr(D + 16*uu + 4*t, 4)}, {"0" if uu == 0 else vr(CA+4*t, 4)}')
    if which == 3:
        a(f'''v_lshrrev_b32 v1, 4, v0
        v_cmp_eq_u32 vcc, 1, v1
        v_cmp_eq_u32 s[24:25], 2, v1
        v_cmp_eq_u32 s[26:27], 3, v1
        v_lshlrev_b32 v2, 2, v0
        v_cndmask_b32 v{CA}, v{CA}, v{CA+4}, vcc
        v_cndmask_b32 v{CA}, v{CA}, v{CA+8}, s[24:25]
        v_cndmask_b32 v{CA}, v{CA}, v{CA+12}, s[26:27]''')
        a.vmem(f'buffer_store_dword v{CA}, v2, s[16:19], s{sCs} offen {SC}', stag)

def gen_S(a, opt):
    sGw, sIx, sQ, sRm, sKv = 20, 21, 22, 30, 47
    sU = 31; sSrc = [32, 33, 88]; sDst = [35, 36, 89]; sFl = [38, 39, 90]; sCs = [41, 42, 91]; sKvF = 44; sLb = 45; sKo = 46
    vS3, vS4, vL = 250, 251, 252; vR = 244
    KRAW = 210
    ONE = 4
    a(f"""
    s_load_dwordx4 s[60:63], s[0:1], 32
    s_load_dwordx4 s[48:51], s[0:1], 8
    s_load_dwordx2 s[52:53], s[0:1], 24
    s_load_dwordx2 s[58:59], s[0:1], 64
    s_load_dwordx4 s[64:67], s[0:1], 72
    s_sub_u32 s24, s2, 144
    s_lshl_b32 s{sGw}, s24, 2
    s_add_u32 s{sGw}, s{sGw}, s{sW}
    s_mul_i32 s25, s24, 9363
    s_lshr_b32 s25, s25, 16
    s_mul_i32 s26, s25, 7
    s_sub_u32 s26, s24, s26
    s_min_u32 s27, s26, 4
    s_lshl_b32 s24, s26, 1
    s_add_u32 s{sIx}, s24, s27
    s_sub_u32 s24, s24, s27
    s_cmp_lt_u32 s26, 4
    s_cselect_b32 s26, 3, 2
    s_mul_i32 s27, s25, 18
    s_add_u32 s{sIx}, s{sIx}, s27
    s_add_u32 s{sIx}, s{sIx}, s{sW}
    s_mul_i32 s27, s25, 10
    s_add_u32 s24, s24, s27
    s_add_u32 s24, s24, s{sW}
    s_sub_u32 s24, s24, s26
    s_cmp_lt_u32 s{sW}, s26
    s_cselect_b32 s{sKv}, 1, 0
    s_cselect_b32 s{sIx}, s{sIx}, s24
    s_and_b32 s{sQ}, s{sIx}, 31
    s_lshr_b32 s{sRm}, s{sIx}, 5
    s_sub_u32 s34, 32, s{sQ}
    s_min_u32 s34, s34, s26
    s_sub_u32 s37, s26, s34
    s_mul_i32 s{sLb}, s{sW}, {CH}
    s_mul_i32 s24, s{sGw}, 5462
    s_lshr_b32 s24, s24, 16
    s_lshl_b32 s24, s24, 2
    s_add_u32 s43, s{sGw}, s24
    s_min_u32 s43, s43, 575
    v_lshlrev_b32 v{vL}, 4, v0
    s_waitcnt lgkmcnt(0)
    s_mov_b32 s54, s66
    s_mov_b32 s55, s67""")
    if a.trace: a(f's_mov_b32 s67, s{sW}')
    a.tr(0)
    lz = a.newlabel('NZ'); lz2 = a.newlabel('NZ')
    a(f's_cmp_lg_u32 s2, 255\ns_cbranch_scc1 {lz}\ns_cmp_lt_u32 s{sW}, 3\ns_cbranch_scc1 {lz2}')
    for i in range(4): a(f'v_mov_b32 v{ONE+i}, 0')
    a(f's_mov_b32 s24, {WS_FL}\nv_mul_u32_u24 v1, {FLS}, v0')
    for i in range(4):
        a(f'buffer_store_dwordx4 {vr(ONE, 4)}, v1, s[16:19], s24 offen {SC}')
        a(f's_add_u32 s24, s24, {64*FLS}')
    a(f'{lz2}:\ns_barrier\n{lz}:')
    conv_srd(a, 43)
    for i in range(4): a.vmem(f'buffer_load_dwordx4 {vr(KRAW+8*i+4, 4)}, v{vL}, s[8:11], 0 offen offset:{1024*i} {NT}', 'ck')
    a(f's_lshl_b32 s25, s43, 1')
    a.vmem(f'buffer_load_ushort v242, off, s[12:15], s25', 'ck')
    KR = 56; VR_ = 100; CF = 132; CU = 148; KC = 180; O = 24; P = 40; vK, vKm, vWr, vCf = 206, 207, 208, 209
    RW = 136; RD = 72; CA2 = 88
    ACC = 8; FB = 40; E = 8; UU = 112; TM = 128; vF, vG, vA, vU, vZ = 200, 201, 202, 203, 204
    def rawld(which, base, sS):
        pitch = 9216 if which == 3 else 1152
        for i in range(8):
            a(f'buffer_load_dwordx4 {vr(base+4*i, 4)}, v{vS3 if which == 3 else vS4}, s[12:15], s{sS} offen {NT}')
            if i < 7: a(f's_add_u32 s{sS}, s{sS}, {8*pitch}')
    lk0 = a.newlabel('NK0'); lk1 = a.newlabel('NK1')
    a(f's_cmp_eq_u32 s{sKv}, 0\ns_cbranch_scc1 {lk0}')
    a(f"""
    v_lshrrev_b32 v1, 3, v0
    v_and_b32 v2, 7, v0
    s_lshl_b32 s24, s{sQ}, 3
    v_add_u32 v3, s24, v1
    v_mul_u32_u24 v{vK}, {8*1152}, v3
    v_lshl_add_u32 v{vK}, v2, 4, v{vK}
    s_lshl_b32 s24, s{sRm}, 7
    v_add_u32 v{vK}, s24, v{vK}
    v_subrev_u32 v{vKm}, 3456, v{vK}
    v_lshlrev_b32 v{vCf}, 6, v2
    s_mul_i32 s{sKvF}, s{sRm}, {FLS}
    s_add_u32 s{sKvF}, s{sKvF}, {FL_KV}
    s_mov_b32 s8, s52
    s_mov_b32 s9, s53
    s_mov_b32 s10, {576*8}
    s_lshl_b32 s25, s{sRm}, 9""")
    for i in range(4): a(f'buffer_load_dwordx4 {vr(CF+4*i, 4)}, v{vCf}, s[8:11], s25 offen offset:{16*i}')
    a(f's_mov_b32 s8, s48\ns_mov_b32 s9, s49\ns_mov_b32 s10, {MAT}')
    for i in range(8):
        if i % 3 == 0: a(f's_mov_b32 s24, {1152*i}')
        a(f'buffer_load_dwordx4 {vr(KR+12+4*i, 4)}, v{vK}, s[8:11], s24 offen offset:{1152*(i%3)} {opt.get("knt", NT)}')
    for i in range(3): a(f'buffer_load_dwordx4 {vr(KR+4*i, 4)}, v{vKm}, s[8:11], 0 offen offset:{1152*i} {opt.get("knt", NT)}')
    a('s_mov_b32 s8, s50\ns_mov_b32 s9, s51')
    for i in range(8):
        if i % 3 == 0: a(f's_mov_b32 s24, {1152*i}')
        a(f'buffer_load_dwordx4 {vr(VR_+4*i, 4)}, v{vK}, s[8:11], s24 offen offset:{1152*(i%3)} {NT}')
    a(f"""v_sub_u32 v1, 7, v1
    v_xor_b32 v1, v1, v2
    v_lshlrev_b32 v1, 4, v1
    v_lshl_add_u32 v{vWr}, v2, 9, v1
    v_add_u32 v{vWr}, s{sLb}, v{vWr}""")
    rp_addr(a, vS3, vS4, vR, vL)
    a(f's_branch {lk1}\n{lk0}:')
    rp_addr(a, vS3, vS4, vR, vL)
    lz = a.newlabel('NZ')
    a(f's_cmp_lg_u32 s{sGw}, 447\ns_cbranch_scc1 {lz}\ns_waitcnt vmcnt(5)\ns_mov_b32 s5, 4\ns_atomic_add s5, s[100:101], 0\n{lz}:')
    a(f'{lk1}:')
    a(f'v_add_u32 v{vA}, s{sLb}, v{vL}')
    zero_fill(a, E, f's{sLb}')
    for i in range(4): a(f'v_mov_b32 v{ONE+i}, 0x3f803f80')
    lw = a.newlabel('W0'); lw2 = a.newlabel('W1')
    a(f's_cmp_eq_u32 s{sKv}, 0\ns_cbranch_scc1 {lw}\ns_waitcnt vmcnt(23)\ns_branch {lw2}\n{lw}:\ns_waitcnt vmcnt(0)')
    a.srd(8, 58, 59, 576*1152)
    a(f's_mul_i32 s24, s{sIx}, {33*128}\nv_min_u32 v1, 32, v0\nv_lshlrev_b32 v1, 7, v1\nbuffer_load_dword v253, v1, s[8:11], s24 offen')
    a(f'{lw2}:')
    a.vm = []
    S = Sched(a)
    for i in range(4): a.lds(f'ds_write_b128 v{vA}, {vr(KRAW+8*i+4, 4)} offset:{7*CST + 16 + 1024*i}', 'cw')
    for i in range(4): a.lds(f'ds_read_b128 {vr(KRAW+8*i, 4)}, v{vA} offset:{7*CST + 1024*i}', ('lo', i))
    for i in range(4):
        a.wait(lg=('lo', i))
        S.add([o for o in build_ops(KRAW + 8*i, E + 4 + 20*(i%2), vA, 1024*i) if isinstance(o, str) or f'offset:{7*CST + 16 + 1024*i}' not in o[1]]); S.flush()
    a.tr(1)
    CPRE = opt.get('cpre', 0)
    creg = (lambda o, n: ar(o, n)) if CPRE else (lambda o, n: vr(KRAW + o, n))
    def half(un, uu, cs):
        ops = [('lds', f'ds_write_b128 v{vA}, {vr(RW + 32*un + 16*uu + 4*i, 4) if un < 2 else creg(16*uu + 4*i, 4)} offset:{RO + 1024*i}', 'hw') for i in range(4)]
        rd = RD + (32 if (uu and not cs == 'conv') else 0)
        for t in range(4):
            for h in range(2): ops.append(('lds', f'ds_read_b64_tr_b16 {vr(rd + 4*t + 2*h, 2)}, v{vR+t} offset:{RO + h*2048}', ('hr', un, uu, t)))
        if cs == 'conv': ops += ['s_nop 0'] * 6
        for t in range(4):
            ops += [f's_add_u32 s24, s{sDst[un]}, {t*18432}', ('wait', ('hr', un, uu, t)),
                    ('vmem', f'buffer_store_dwordx4 {vr(rd + 4*t, 4)}, v{vL}, s[16:19], s24 offen offset:{uu*1024} {SC}', 'ls'),
                    f'v_mfma_f32_16x16x32_bf16 {vr(CA2+4*t, 4)}, {vr(ONE, 4)}, {vr(rd + 4*t, 4)}, {"0" if uu == 0 else vr(CA2+4*t, 4)}']
        return ops
    def csfin(un):
        return [f'v_lshrrev_b32 v1, 4, v0', f'v_cmp_eq_u32 vcc, 1, v1', f'v_cmp_eq_u32 s[50:51], 2, v1', f'v_cmp_eq_u32 s[52:53], 3, v1', f'v_lshlrev_b32 v2, 2, v0',
             f'v_cndmask_b32 v3, v{CA2}, v{CA2+4}, vcc', f'v_cndmask_b32 v3, v3, v{CA2+8}, s[50:51]', f'v_cndmask_b32 v{248+un%2}, v3, v{CA2+12}, s[52:53]',
             ('vmem', f'buffer_store_dword v{248+un%2}, v2, s[16:19], s{sCs[un]} offen {SC}', 'ls')]
    a(f's_cmp_eq_u32 s{sKv}, 0\ns_movk_i32 s24, 320\ns_cselect_b32 s24, 608, s24\ns_add_u32 s{sU}, s{sIx}, s24')
    rp_decode(a, 3, sU, sSrc[2], sDst[2], sFl[2], sCs[2])
    a(f's_cmp_ge_u32 s{sU}, 648\ns_cselect_b32 s49, 0, 1\ns_cselect_b32 s{sSrc[2]}, {WBYTES}, s{sSrc[2]}\ns_cselect_b32 s{sDst[2]}, {WS_END}, s{sDst[2]}\ns_cselect_b32 s{sCs[2]}, {WS_END}, s{sCs[2]}')
    a.srd(12, 64, 65, WBYTES)
    def rawC():
        for i in range(8):
            a(f'buffer_load_dwordx4 {creg(4*i, 4)}, v{vS3}, s[12:15], s{sSrc[2]} offen {NT}')
            if i < 7: a(f's_add_u32 s{sSrc[2]}, s{sSrc[2]}, {8*9216}')
    lnk = a.newlabel('NOKV'); lj = a.newlabel('S1J')
    a(f's_load_dword s4, s[100:101], 0\ns_cmp_eq_u32 s{sKv}, 0\ns_cbranch_scc1 {lnk}')
    a(f"""v_add_u32 v1, {RO}, v{vA}
    v_lshrrev_b32 v2, 3, v0
    v_lshrrev_b32 v3, 2, v2
    v_lshlrev_b32 v{vKm}, 4, v3
    v_xor_b32 v1, v1, v{vKm}
    v_and_b32 v2, 3, v2
    v_lshl_add_u32 v2, v3, 3, v2
    v_lshlrev_b32 v2, 12, v2
    v_and_b32 v3, 7, v0
    v_lshl_add_u32 v2, v3, 4, v2
    s_lshl_b32 s26, s{sRm}, 18
    s_sub_u32 s25, 31, s{sQ}
    s_lshl_b32 s25, s25, 7
    s_add_u32 s26, s26, s25
    s_add_u32 s26, s26, {WS_KVR}
    s_waitcnt vmcnt(19)""")
    for ch in range(8):
        for j in range(4): a(unp(CU + 8*(ch//2) + 2*j + ch%2, CF + 2*ch, j))
    a('s_waitcnt vmcnt(0)'); a.tr(2)
    if CPRE: rawC()
    def pk(op, d, s0, s1, s2=None): return f'{op} {vr(d, 2)}, {vr(s0, 2)}, {vr(s1, 2)}' + (f', {vr(s2, 2)}' if s2 is not None else '')
    KO = KRAW
    for cp in range(4):
        for i in range(11):
            for e in range(2): a(unp(KC + 2*i + e, KR + 4*i + cp, e))
        if cp == 2:
            for i in range(4):
                a.wait(lg=('kr', 0, i))
                a.vmem(f'buffer_store_dwordx4 {vr(KO+4*i, 4)}, v2, s[16:19], s24 offen {SC}', 'ks')
                if i < 3: a(f's_add_u32 s24, s24, {16*4096}')
        c = CU + 8*cp
        for t in range(8): a(pk('v_pk_mul_f32', O+2*t, KC+2*t, c+6))
        for j in (2, 1, 0):
            for t in range(8): a(pk('v_pk_fma_f32', O+2*t, KC+2*(t+3-j), c+2*j, O+2*t))
        for t in range(8):
            for e in range(2): a(unp(KC + 2*t + e, VR_ + 4*t + cp, e))
        for t in range(8): a(pk('v_pk_mul_f32', O+2*t, O+2*t, KC+2*t))
        for e in range(2):
            pp = P + 8*(cp%2) + 4*e
            for i in range(4): a(f'v_cvt_pk_bf16_f32 v{pp+i}, v{O+2*(7-2*i)+e}, v{O+2*(6-2*i)+e}')
            a.lds(f'ds_write_b128 v{vWr}, {vr(pp, 4)} offset:{RO + (2*(cp%2)+e)*128}', 'kw')
        if cp % 2 == 1:
            ps = cp // 2
            for i in range(4):
                a(f'v_xor_b32 v3, {32*i}, v1')
                a.lds(f'ds_read_b128 {vr(KO+16*ps+4*i, 4)}, v3 offset:{1024*i}', ('kr', ps, i))
            a(f's_add_u32 s24, s26, {ps*4*4096}')
    for i in range(4):
        a.wait(lg=('kr', 1, i))
        a.vmem(f'buffer_store_dwordx4 {vr(KO+16+4*i, 4)}, v2, s[16:19], s24 offen {SC}', 'ks')
        if i < 3: a(f's_add_u32 s24, s24, {16*4096}')
    a.tr(3)
    spin(a, 100, '0', 4, first_loaded=True, sleep=4, vec=True)
    lks = a.newlabel('KS')
    a.wait(vm='ks')
    a(f's_barrier\ns_cmp_lg_u32 s{sW}, 0\ns_cbranch_scc1 {lks}\ns_atomic_add s34, s[28:29], s{sKvF}\ns_cmp_eq_u32 s37, 0\ns_cbranch_scc1 {lks}\ns_add_u32 s40, s{sKvF}, {FLS}\ns_atomic_add s37, s[28:29], s40\n{lks}:')
    a(f's_branch {lj}\n{lnk}:')
    a.vm = []; a.lg = []
    spin(a, 100, '0', 4, first_loaded=True, sleep=4, vec=True)
    a(f's_mov_b32 s{sU}, s{sIx}')
    for i in range(2):
        rp_decode(a, 3, sU, sSrc[i], sDst[i], sFl[i], sCs[i])
        a(f's_add_u32 s{sU}, s{sU}, 160')
    for i in range(2): rawld(3, RW + 32*i, sSrc[i])
    if CPRE: rawC()
    nb = opt.get('nb', 0)
    if nb == 0: a('s_barrier')
    a(f's_waitcnt vmcnt({16 if CPRE else 8})')
    a.tr(2)
    S.add(half(0, 0, '') + half(0, 1, '') + csfin(0)); S.flush()
    if nb == 1: a('s_barrier')
    a('s_waitcnt vmcnt(9)')
    S.add(half(1, 0, '') + half(1, 1, '') + csfin(1)); S.flush()
    if nb == 2: a('s_barrier')
    a.tr(3)
    a(f'{lj}:')
    a.vm = []; a.lg = []
    if CPRE:
        lC = a.newlabel('NC')
        a(f's_cmp_eq_u32 s49, 0\ns_cbranch_scc1 {lC}')
        S.add(half(2, 0, '') + half(2, 1, '') + csfin(2)); S.flush()
        a(f'{lC}:')
    a.vm = []; a.lg = []
    a.tr(4)
    R4B = [RW + 32, RW + 48, RW]
    R4D = [61, 62, 63]
    def s4load(i):
        X, Y, Z, Q, SR = 24, 25, 26, 48, 60
        ops = [f's_mov_b32 s12, s58\ns_mov_b32 s13, s59'] if i == 0 else []
        ops += [f's_mul_i32 s{Q}, s{sGw}, 3\ns_add_u32 s{Q}, s{Q}, {i}\ns_lshr_b32 s{X}, s{Q}, 1\ns_and_b32 s{Q}, s{Q}, 1',
                f's_lshl_b32 s{R4D[i]}, s{Q}, 10\ns_mul_i32 s{SR}, s{Q}, {32*1152}\ns_mul_i32 s{Y}, s{X}, 3237\ns_lshr_b32 s{Y}, s{Y}, 18',
                f's_mul_i32 s{Z}, s{X}, 7282\ns_lshr_b32 s{Z}, s{Z}, 16\ns_mul_i32 s{Q}, s{Z}, 9\ns_sub_u32 s{X}, s{X}, s{Q}',
                f's_mul_i32 s{Q}, s{Z}, {64*1152}\ns_add_u32 s{SR}, s{SR}, s{Q}\ns_lshl_b32 s{Q}, s{X}, 7\ns_add_u32 s{SR}, s{SR}, s{Q}',
                f's_mul_i32 s{Y}, s{Y}, 9\ns_sub_u32 s{Z}, s{Z}, s{Y}\ns_add_u32 s{X}, s{X}, s{Y}\ns_mul_i32 s{X}, s{X}, 73728',
                f's_lshl_b32 s{Z}, s{Z}, 11\ns_add_u32 s{R4D[i]}, s{R4D[i]}, s{Z}\ns_add_u32 s{R4D[i]}, s{R4D[i]}, s{X}\ns_add_u32 s{R4D[i]}, s{R4D[i]}, {WS_WP4}']
        for k in range(4):
            ops.append(('vmem', f'buffer_load_dwordx4 {vr(R4B[i] + 4*k, 4)}, v{vS4}, s[12:15], s{SR} offen {NT}', ('r4', i)))
            if k < 3: ops.append(f's_add_u32 s{SR}, s{SR}, {8*1152}')
        return ops
    def s4half(i):
        ops = [('waitvm', ('r4', i))] + [('lds', f'ds_write_b128 v{vA}, {vr(R4B[i] + 4*k, 4)} offset:{RO + 1024*k}', 'hw') for k in range(4)]
        for t in range(4):
            for h in range(2): ops.append(('lds', f'ds_read_b64_tr_b16 {vr(R4B[i] + 4*t + 2*h, 2)}, v{vR+t} offset:{RO + h*2048}', ('h4', i, t)))
        ops2 = []
        for t in range(4):
            ops2 += [('wait', ('h4', i, t)), ('vmem', f'buffer_store_dwordx4 {vr(R4B[i] + 4*t, 4)}, v{vL}, s[16:19], s{R4D[i]} offen {SC}', 'l4')]
            if t < 3: ops2.append(f's_add_u32 s{R4D[i]}, s{R4D[i]}, 18432')
        return ops, ops2
    a('s_mov_b32 s58, s54\ns_mov_b32 s59, s55')
    def sig_early():
        l = a.newlabel('SE')
        return f's_cmp_lg_u32 s{sKv}, 0\ns_cbranch_scc1 {l}\ns_mov_b32 s5, 1\ns_atomic_add s5, s[28:29], s{sFl[0]}\ns_atomic_add s5, s[28:29], s{sFl[1]}\n{l}:\n' + (sig_late() if CPRE else '')
    def sig_late():
        l = a.newlabel('SL')
        return f's_cmp_eq_u32 s49, 0\ns_cbranch_scc1 {l}\ns_atomic_add s49, s[28:29], s{sFl[2]}\n{l}:'
    a(f"""
    v_and_b32 v3, 7, v0
    v_mul_u32_u24 v3, {CST}, v3
    v_bfe_u32 v1, v0, 3, 1
    v_lshrrev_b32 v{vZ}, 4, v0
    v_add_u32 v1, v1, v{vZ}
    v_lshl_add_u32 v{vF}, v1, 4, v3
    v_add_u32 v{vF}, s{sLb}, v{vF}
    v_and_b32 v1, 15, v0
    v_lshlrev_b32 v1, 5, v1
    v_lshlrev_b32 v{vG}, 4, v{vZ}
    v_sub_u32 v{vG}, v{vG}, v1
    s_add_u32 s24, s{sLb}, {RO + 480}
    v_add_u32 v{vG}, s24, v{vG}
    v_lshl_add_u32 v{vZ}, v{vZ}, 3, v1
    s_add_u32 s24, s{sLb}, {RO + 4088 - 7*512}
    v_sub_u32 v{vU}, s24, v{vZ}
    v_add_u32 v{vZ}, s{sLb}, v{vZ}
    v_lshlrev_b32 v242, 16, v242""")
    lnc = a.newlabel('NOCV')
    a(f's_mov_b32 s27, {FL_Z}\ns_mov_b32 s54, 0\ns_cmp_ge_u32 s{sGw}, 432\ns_cbranch_scc1 {lnc}')
    NF = 8
    a(f's_lshr_b32 s24, s43, 6\ns_mul_i32 s24, s24, {FLS}\ns_add_u32 s{sKvF}, s24, {FL_KV}')
    spin(a, 28, f's{sKvF}', 32, sleep=opt.get('kvsleep', 2), wg=True)
    a.tr(7)
    a(f's_lshl_b32 s24, s43, 12\ns_add_u32 m0, s{sLb}, {RO}\ns_add_u32 s24, s24, {WS_KVR}')
    for i in range(4): a.vmem(f'buffer_load_dwordx4 v{vL}, s[16:19], s24 offen offset:{1024*i} {SC} lds', 'cr')
    if not CPRE: rawC(); a.vm += ['raw'] * 8
    def grd(d): return ('lds', f'ds_read_b128 {ar(4*(d+7), 4)}, v{vG} offset:{(56-d)*64}', ('g', d))
    def frd(e): return ('lds', f'ds_read_b128 {vr(FB + 4*(e%NF), 4)}, v{vF} offset:{e*64}', ('f', e))
    def epi(j):
        u = UU + 2*j; T_ = TM; A_ = ACC + 4*j
        ops = [('wait', ('u', j))] + [unp(T_+r, u, 3 - r) for r in range(4)] + [f'v_mul_f32 v{T_+r}, v{T_+r}, v242' for r in range(4)]
        ops += [f'v_cvt_pk_bf16_f32 v{u+i}, v{T_+2*i}, v{T_+2*i+1}' for i in range(2)]
        ops2 = [f'v_cvt_pk_bf16_f32 v{T_+4+i}, v{A_+2*i}, v{A_+2*i+1}' for i in range(2)]
        ops2 += [unp(T_+r, u, r) for r in range(4)] + [unp(A_+r, T_+4, r) for r in range(4)] + [f'v_add_f32 v{A_+r}, v{A_+r}, v{T_+r}' for r in range(4)]
        ops2 += [f'v_cvt_pk_bf16_f32 v{u+i}, v{A_+2*i}, v{A_+2*i+1}' for i in range(2)]
        return ops, ops2
    S.add([frd(0), frd(1), frd(2)]); S.flush()
    a.wait(vm='cr')
    a(sig_early())
    a.tr(5)
    S.add([grd(8*j) for j in range(7, -1, -1)]); S.flush()
    nf = 3
    for e in range(64):
        if e == 24: a.tr(6)
        pre = []
        if e + 1 < 8: pre += [grd(8*j - e - 1) for j in range(7, -1, -1)]
        la = min(NF - 1, 3 + e // 8)
        while nf <= min(e + la, 63): pre.append(frd(nf)); nf += 1
        if e == 7: pre += [('lds', f'ds_read_b64 {vr(UU+2*j, 2)}, v{vU} offset:{(7-j)*512}', ('u', j)) for j in range(8)]
        S.q = pre + S.q
        if e % 8 == 1 and 9 <= e <= 33:
            for j in (e // 4 - 2, e // 4 - 1): S.add(epi(j)[0])
        if not CPRE:
            if e == 11: S.add([('waitvm', 'raw')] + half(2, 0, 'conv'))
            if e == 14: S.add(half(2, 1, 'conv') + csfin(2))
            if e == 24: S.add([('waitvm', 'ls'), sig_late()])
        if e == opt.get('w4touch', -1):
            S.add([f's_mov_b32 s12, s58\ns_mov_b32 s13, s59\ns_mul_i32 s24, s{sGw}, {96*128}', f'v_lshlrev_b32 v{RW}, 7, v0',
                   ('vmem', f'buffer_load_dword v{RW+1}, v{RW}, s[12:15], s24 offen', 't4'), f's_add_u32 s24, s24, 4096', ('vmem', f'buffer_load_dword v{RW+2}, v{RW}, s[12:15], s24 offen', 't4')])
        if opt.get('rp4front', 1):
            if e == opt.get('s4l', 19): S.add(s4load(0) + s4load(1) + s4load(2))
            for i, ee in enumerate(opt.get('s4at', (30, 35, 41))):
                if e == ee: S.add(s4half(i)[0])
                if e == ee + 3: S.add(s4half(i)[1])
        if e % 8 == 2 and e >= 10: S.add(epi(e // 8 - 1)[1])
        for j in range(7, -1, -1):
            if e <= 8*j + 7:
                while any((not isinstance(o, str)) and o[0] == 'lds' and o[2] in (('f', e), ('g', 8*j - e)) for o in S.q): S.fill(1)
                a.wait(lg=[('f', e), ('g', 8*j - e)])
                a(f'v_mfma_f32_16x16x32_bf16 {vr(ACC+4*j, 4)}, {vr(FB + 4*(e%NF), 4)}, {ar(4*(8*j-e+7), 4)}, {"0" if e == 0 else vr(ACC+4*j, 4)}')
                S.fill(2)
    S.add(epi(7)[1]); S.flush()
    a.tr(8)
    for j in range(8): a.lds(f'ds_write_b64 v{vZ}, {vr(UU+2*j, 2)} offset:{512*j}', 'zw')
    for i in range(4): a.lds(f'ds_read_b128 {vr(FB+4*i, 4)}, v{vA} offset:{1024*i}', ('zr', i))
    a(zaddr(24, 43))
    for i in range(4):
        a.wait(lg=('zr', i))
        a.vmem(f'buffer_store_dwordx4 {vr(FB+4*i, 4)}, v1, s[16:19], s24 offen {SC}', 'zs')
        if i < 3: a('s_add_u32 s24, s24, 16384')
    a(f's_bfe_u32 s24, s43, 0x20004\ns_mul_i32 s24, s24, {FLS}\ns_add_u32 s27, s24, {FL_Z}\ns_mov_b32 s54, 16')
    lc2 = a.newlabel('CVJ')
    a(f's_branch {lc2}\n{lnc}:')
    if not CPRE: rawC()
    a('s_waitcnt vmcnt(0)')
    a(sig_early())
    if not CPRE:
        a.vm = []; a.lg = []
        S.add(half(2, 0, '') + half(2, 1, '') + csfin(2)); S.flush()
        a('s_waitcnt vmcnt(0)\n' + sig_late())
    a('s_waitcnt lgkmcnt(0)')
    a(f'{lc2}:')
    a.vm = []; a.lg = []
    a.tr(9)


def rp4_decode_ops(src, dst, fl, t):
    X, Y, Z, Q = t
    ops = []
    for h in range(2):
        ops += [f's_lshl_b32 s{X}, s2, 1\ns_lshr_b32 s{Y}, s{sW}, 1\ns_add_u32 s{X}, s{X}, s{Y}\ns_add_u32 s{X}, s{X}, {224*h}',
                f's_mul_i32 s{Y}, s{X}, 3237\ns_lshr_b32 s{Y}, s{Y}, 18\ns_mul_i32 s{fl[h]}, s{Y}, {FLS}\ns_add_u32 s{fl[h]}, s{fl[h]}, {FL_W4}',
                f's_mul_i32 s{Z}, s{X}, 7282\ns_lshr_b32 s{Z}, s{Z}, 16\ns_mul_i32 s{Q}, s{Z}, 9\ns_sub_u32 s{X}, s{X}, s{Q}',
                f's_mul_i32 s{src[h]}, s{Z}, {64*1152}\ns_lshl_b32 s{Q}, s{X}, 7\ns_add_u32 s{src[h]}, s{src[h]}, s{Q}',
                f's_mul_i32 s{Y}, s{Y}, 9\ns_sub_u32 s{Z}, s{Z}, s{Y}\ns_add_u32 s{X}, s{X}, s{Y}\ns_mul_i32 s{dst[h]}, s{X}, 73728',
                f's_lshl_b32 s{Z}, s{Z}, 11\ns_add_u32 s{dst[h]}, s{dst[h]}, s{Z}\ns_add_u32 s{dst[h]}, s{dst[h]}, {WS_WP4}',
                f's_and_b32 s{Q}, s{sW}, 1\ns_lshl_b32 s{X}, s{Q}, 10\ns_add_u32 s{dst[h]}, s{dst[h]}, s{X}\ns_mul_i32 s{Q}, s{Q}, {32*1152}\ns_add_u32 s{src[h]}, s{src[h]}, s{Q}']
    return ops
def rp4_load_ops(reg, vS, src, nh):
    ops = []
    for h in range(nh):
        for i in range(4):
            ops.append(('vmem', f'buffer_load_dwordx4 {reg(16*h + 4*i, 4)}, v{vS}, s[12:15], s{src[h]} offen {NT}', 'graw'))
            if i < 3: ops.append(f's_add_u32 s{src[h]}, s{src[h]}, {8*1152}')
    return ops
def rp4_finish(a, reg, dst, nh, base, st):
    a(base)
    a(f"""v_lshrrev_b32 v1, 2, v0
    v_lshlrev_b32 v3, 7, v1
    v_bfe_u32 v2, v1, 1, 2
    v_lshl_add_u32 v3, v2, 5, v3
    v_and_b32 v2, 3, v0
    v_lshl_add_u32 v3, v2, 3, v3
    v_add_u32 v3, s{st}, v3
    v_lshlrev_b32 v2, 4, v0
    v_add_u32 v254, s{st}, v2""")
    a.wait(vm='graw')
    for h in range(nh):
        for i in range(4): a.lds(f'ds_write_b128 v254, {reg(16*h + 4*i, 4)} offset:{1024*i}', 'gw')
        for t in range(4):
            a(f'v_xor_b32 v1, {32*t}, v3')
            for hh in range(2): a.lds(f'ds_read_b64_tr_b16 {reg(16*h + 4*t + 2*hh, 2)}, v1 offset:{hh*2048}', ('gr', h, t))
    for h in range(nh):
        for t in range(4):
            a.wait(lg=('gr', h, t))
            a.vmem(f'buffer_store_dwordx4 {reg(16*h + 4*t, 4)}, v2, s[16:19], s{dst[h]} offen {SC}', 'gs')
            if t < 3: a(f's_add_u32 s{dst[h]}, s{dst[h]}, 18432')
```

```python
from common import *
from front import spin as fspin

SPIN_MAX = 200000

def make_p3(a, depth=20, trc=None, sflag='sc1', WLN=16, a_at=5, LF='sc1', t1=100, rot1=False, rp4=True, rp_at=20, rp_gap=2, w0=124, wgap=1, rp_wait=22, s0=30):
    trace = a.trace
    NB = depth + 2
    V = Regs(1, 256)
    AV = V.alloc('Av', 32, 4)
    ACC = [V.alloc('acc0', 16, 4), V.alloc('acc1', 16, 4)]
    W = V.alloc('w', 4 * NB, 4)
    CS = V.alloc('cs', 4, 4); R = V.alloc('r', 8, 4); T = V.alloc('t', 8, 4)
    AB = V.alloc('ab', 16, 4)
    PA = V.alloc('pa', 32, 4); X1R = V.alloc('x1r', 10, 2)
    ST1 = V.alloc('st1', 4, 4)
    vL16 = V.alloc('l16'); vCS = V.alloc('vcs'); vHw = V.alloc('hw')
    vB = [V.alloc('b0'), V.alloc('b1'), V.alloc('b2'), V.alloc('b3')]
    vWL = V.alloc('wl'); vFl = V.alloc('fl'); vTmp = V.alloc('tmp'); vTmp2 = V.alloc('tmp2')
    nv = V.n
    def opreg(u, rt):
        return ar(16*u + 4*rt, 4) if u < 16 else vr(AV + 16*(u-16) + 4*rt, 4)
    HB = 0; CSB = 73728; STG = CSB + 2304; XB = 90112; WLB = STG + 18432; LDS = 163840
    assert WLB + WLN * 4096 <= LDS
    sSl, sMt, sRot, sW, sG, sCq, sRow = 20, 21, 22, 23, 24, 25, 26
    sCh, sK = 30, 40
    sB1 = 88
    sPh = 50
    sFw, sFr, sPf, sSpin, sWl, sNeed = 55, 56, 57, 58, 59, 53
    sLg = 61
    sLo, sHi = 54, 27
    sSt, sTmp, sTmp2, sX = 60, 64, 65, 66
    NST = 324
    NLD = NST - WLN
    SB = [PA + 2*c for c in range(9)]
    def ld(n):
        for op in ldops(n): emit(op)
    def ldops(n):
        class L(list):
            def __call__(self, x): self.append(x)
            def vmem(self, x, t): self.append(('vmem', x, t))
        a = L()
        if n >= NLD: return a
        _ld(a, n)
        return a
    def _ld(a, n):
        ph, c, u = n // 162, (n % 162) // 18, n % 18
        r = W + 4 * (n % NB)
        if not rot1:
            if ph == 0:
                if u % 4 == 0: a(f's_add_u32 s{sTmp}, s{sB1}, {c*73728 + u*1024}')
            elif u % 4 == 0: a(f's_add_u32 s{sTmp}, s{sCh+c}, {WBYTES + u*1024}')
            a.vmem(f'buffer_load_dwordx4 {vr(r, 4)}, v{vL16}, s[16:19], s{sTmp} offen offset:{(u%4)*1024} {LF}', ('w', n))
        elif ph == 0:
            if u % 4 == 0 and u: a(f's_add_u32 s{sTmp}, s{sCh+c}, {u*1024}')
            so = f's{sCh+c}' if u < 4 else f's{sTmp}'
            a.vmem(f'buffer_load_dwordx4 {vr(r, 4)}, v{vL16}, s[16:19], {so} offen offset:{(u%4)*1024} {LF}', ('w', n))
        else:
            if u == 0: a(f's_add_u32 s{sCh+c}, s{sCh+c}, {WBYTES}')
            if u % 2 == 0: a(f's_add_u32 s{sTmp}, s{sCh+c}, s{sK+u//2}')
            a.vmem(f'buffer_load_dwordx4 {vr(r, 4)}, v{vL16}, s[16:19], s{sTmp} offen offset:{(u%2)*1024} {LF}', ('w', n))
    def physof(dst, add_reg, add_const):
        s = f's_add_u32 s{dst}, s{sRot}, {add_const}\n'
        if add_reg is not None: s += f's_add_u32 s{dst}, s{dst}, s{add_reg}\n'
        s += f's_cmp_ge_u32 s{dst}, 9\ns_cselect_b32 s{sTmp2}, 9, 0\ns_sub_u32 s{dst}, s{dst}, s{sTmp2}'
        return s
    def e1a(pre=False):
        a(f'''
        s_load_dwordx2 s[8:9], s[0:1], 0
        s_load_dwordx2 s[12:13], s[0:1], 88
        {slice_code(sSl, sTmp)}
        s_mul_i32 s7, s{sSl}, {FLS}
        s_add_u32 s7, s7, {FL_W3}
        s_cmp_lg_u32 s{sW}, 0
        s_cbranch_scc1 P3_w3
        s_load_dword s4, s[28:29], s7 glc
        P3_w3:
        {mt_code(sMt, sTmp)}
        s_mul_i32 s{sTmp}, s{sMt}, 57
        s_lshr_b32 s{sTmp}, s{sTmp}, 9
        s_mul_i32 s{sTmp}, s{sTmp}, 9
        s_sub_u32 s{sRot}, s{sMt}, s{sTmp}
        v_lshlrev_b32 v{vL16}, 4, v0
        s_mul_i32 s{sTmp}, s{sSl}, {9*73728}
        s_mul_i32 s{sTmp2}, s{sW}, 18432
        s_add_u32 s{sTmp}, s{sTmp}, s{sTmp2}
        s_add_u32 s{sTmp}, s{sTmp}, {WS_WP3}
        s_mov_b32 s10, {MAT}
        s_mov_b32 s11, 0x20000
        s_mov_b32 s14, {MAT}
        s_mov_b32 s15, 0x20000
        s_mov_b32 s{sTmp2}, s{sRot}''')
        e1a.base = True
        a(f's_mov_b32 s{sB1}, s{sTmp}')
        if rot1: e1t(a)
        a(f's_add_u32 s{sX}, s{sW}, 4')
        a(f'''v_mov_b32 v{vTmp2}, s{sPh if rot1 else sW}
        v_mov_b32 v1, s{sPh+1 if rot1 else sX}
        v_cmp_lt_u32 vcc, 15, v0
        s_lshl_b32 s{sTmp2}, s{sW}, 8
        v_mov_b32 v{vFl}, s{sTmp2}
        v_cndmask_b32 v{vTmp2}, v{vTmp2}, v1, vcc
        v_add_u32 v1, 1024, v{vFl}
        v_cndmask_b32 v{vFl}, v{vFl}, v1, vcc
        v_mov_b32 v1, {f's{sPh+2}' if rot1 else 8}
        v_cmp_lt_u32 vcc, 31, v0
        v_mov_b32 v2, 0x800
        v_and_b32 v3, 15, v0
        v_cndmask_b32 v{vTmp2}, v{vTmp2}, v1, vcc
        v_cndmask_b32 v{vFl}, v{vFl}, v2, vcc
        v_lshlrev_b32 v{vTmp2}, 8, v{vTmp2}
        v_lshl_add_u32 v{vTmp2}, v3, 4, v{vTmp2}
        v_lshl_add_u32 v{vFl}, v3, 4, v{vFl}
        v_add_u32 v{vFl}, {CSB}, v{vFl}''')
        a(f'v_add_u32 v{vB[0]}, {XB}, v{vL16}\nv_add_u32 v{vB[1]}, {XB + 36864}, v{vL16}')
    def e1t(a):
        a(f's_mov_b32 s{sTmp2}, s{sRot}')
        for j in range(9):
            a(f's_mul_i32 s{sCh+j}, s{sTmp2}, 73728\ns_add_u32 s{sCh+j}, s{sCh+j}, s{sB1}\ns_lshl_b32 s{sK+j}, s{sTmp2}, 11')
            if j < 8: a(f's_add_u32 s{sTmp2}, s{sTmp2}, 1\ns_cmp_eq_u32 s{sTmp2}, 9\ns_cselect_b32 s{sTmp2}, 0, s{sTmp2}')
        a(physof(sPh, sW, 0)); a(physof(sPh+1, sW, 4)); a(physof(sPh+2, None, 8))
    def e1r(a):
        a(f's_lshl_b32 s{sLg}, s{sW}, 11\ns_add_u32 s{sLg}, s{sLg}, {STG}\ns_add_u32 s{sLg+1}, s{sLg}, 8192\ns_mov_b32 s{sLg+2}, {STG + 16384}')
        a(f'''
        v_add_u32 v{vB[0]}, {XB}, v{vL16}
        v_add_u32 v{vB[1]}, {XB + 36864}, v{vL16}
        v_add_u32 v{vB[2]}, {HB}, v{vL16}
        v_add_u32 v{vB[3]}, {HB + 36864}, v{vL16}
        s_lshr_b32 s{sTmp2}, s{sW}, 1
        s_lshl_b32 s{sX}, s{sTmp2}, 12
        s_and_b32 s{sTmp2}, s{sW}, 1
        s_lshl_b32 s{sTmp2}, s{sTmp2}, 3
        s_add_u32 s{sX}, s{sX}, s{sTmp2}
        s_add_u32 s{sX}, s{sX}, {HB}
        v_add_u32 v{vHw}, s{sX}, v{vL16}
        s_lshl_b32 s{sX}, s{sW}, 6
        s_add_u32 s{sX}, s{sX}, {CSB}
        v_and_b32 v1, 48, v0
        v_add_u32 v{vCS}, s{sX}, v1
        s_mul_i32 s{sX}, s{sMt}, 73728
        s_add_u32 s{sPf}, s{sX}, {WS_PF}
        s_mul_i32 s{sSt}, s{sSl}, {MAT}
        s_add_u32 s{sSt}, s{sSt}, s{sPf}
        s_lshl_b32 s{sX}, s{sW}, 10
        s_add_u32 s{sSt}, s{sSt}, s{sX}
        s_lshl_b32 s{sX}, s{sSl}, 10
        s_add_u32 s{sPf}, s{sPf}, s{sX}
        s_lshr_b32 s{sG}, s{sSl}, 2
        s_and_b32 s{sCq}, s{sSl}, 3
        s_lshl_b32 s{sRow}, s{sMt}, 6
        s_lshl_b32 s{sX}, s{sG}, 5
        s_add_u32 s{sRow}, s{sRow}, s{sX}
        s_mul_i32 s{sWl}, s{sW}, {WLN*1024}
        s_add_u32 s{sWl}, s{sWl}, {WLB}
        v_add_u32 v{vWL}, s{sWl}, v{vL16}
        s_mul_i32 s{sX}, s{sMt}, {4*FLS}
        s_add_u32 s{sX}, s{sX}, {WS_FL}
        s_mul_i32 s{sFw}, s{sW}, {FLS}
        s_add_u32 s{sFw}, s{sFw}, s{sX}
        s_mul_i32 s{sFr}, s{sCq}, {FLS}
        s_add_u32 s{sFr}, s{sFr}, s{sX}
        s_cmp_eq_u32 s{sW}, 3
        s_cselect_b32 s{sNeed}, 8, 4
        s_add_u32 s{sNeed}, s{sNeed}, s{sFr}
        ''')
    def e1late():
        class L(list):
            def __call__(self, x): self.append(x)
        l1 = L(); l2 = L()
        if not rot1: e1t(l1)
        e1r(l2)
        lines = [y.strip() for x in l2 for y in x.split('\n') if y.strip()]
        out = list(l1); i = 0
        while i < len(lines):
            if lines[i].startswith('s_cmp'): out.append(lines[i] + '\n' + lines[i+1]); i += 2
            else: out.append(lines[i]); i += 1
        return out
    def e1w(loaded=False):
        a(f's_mul_i32 s{sX}, s{sSl}, {FLS}\ns_add_u32 s{sX}, s{sX}, {FL_W3}')
        fspin(a, 28, f's{sX}', 81, sleep=8, wg=True, first_loaded=loaded)
    def e1b():
        ops = [f's_mul_i32 s{sX}, s{sSl}, 2304\ns_add_u32 s{sX}, s{sX}, {WS_CS3}']
        for rb in range(9):
            d = PA + 4*rb if rb < 8 else ST1
            ops.append(('vmem', f'buffer_load_dwordx4 {vr(d, 4)}, v{vTmp2}, s[16:19], s{sX} offen {LF}', 'csp'))
            if rb < 8: ops.append(f's_add_u32 s{sX}, s{sX}, {4608*4}')
        for n in range(depth): ops += ldops(n)
        return ops
    def e1c():
        a.wait(vm='csp')
        for rb in range(8):
            for i in range(2): a(f'v_pk_add_f32 {vr(ST1+2*i, 2)}, {vr(ST1+2*i, 2)}, {vr(PA+4*rb+2*i, 2)}')
        a.lds(f'ds_write_b128 v{vFl}, {vr(ST1, 4)}', 'csw')
    R4 = [89, 90, 91, 6, 27, 54, 3]
    def rp4setup():
        ops = [f's_load_dwordx2 s[12:13], s[0:1], 80\ns_mov_b32 s14, {WBYTES}']
        for h in range(2):
            ops += [f's_lshl_b32 s{sX}, s2, 1\ns_lshr_b32 s{sSpin}, s{sW}, 1\ns_add_u32 s{sX}, s{sX}, s{sSpin}\ns_add_u32 s{sX}, s{sX}, {512*h}',
                    f's_mul_i32 s{sSpin}, s{sX}, 3237\ns_lshr_b32 s{sSpin}, s{sSpin}, 18\ns_mul_i32 s{R4[4+h]}, s{sSpin}, {FLS}\ns_add_u32 s{R4[4+h]}, s{R4[4+h]}, {FL_W4}',
                    f's_mul_i32 s{sTmp2}, s{sX}, 7282\ns_lshr_b32 s{sTmp2}, s{sTmp2}, 16\ns_mul_i32 s5, s{sTmp2}, 9\ns_sub_u32 s{sX}, s{sX}, s5',
                    f's_mul_i32 s{R4[h]}, s{sTmp2}, {64*1152}\ns_lshl_b32 s5, s{sX}, 7\ns_add_u32 s{R4[h]}, s{R4[h]}, s5',
                    f's_mul_i32 s{sSpin}, s{sSpin}, 9\ns_sub_u32 s{sTmp2}, s{sTmp2}, s{sSpin}\ns_add_u32 s{sX}, s{sX}, s{sSpin}\ns_mul_i32 s{R4[2+h]}, s{sX}, 73728',
                    f's_lshl_b32 s{sTmp2}, s{sTmp2}, 11\ns_add_u32 s{R4[2+h]}, s{R4[2+h]}, s{sTmp2}\ns_add_u32 s{R4[2+h]}, s{R4[2+h]}, {WS_WP4}',
                    f's_and_b32 s5, s{sW}, 1\ns_lshl_b32 s{sX}, s5, 10\ns_add_u32 s{R4[2+h]}, s{R4[2+h]}, s{sX}\ns_mul_i32 s5, s5, {32*1152}\ns_add_u32 s{R4[h]}, s{R4[h]}, s5']
        ops += [f's_cmp_ge_u32 s2, 68\ns_cselect_b32 s{R4[3]}, {WS_END}, s{R4[3]}\ns_cselect_b32 s{R4[5]}, s{R4[4]}, s{R4[5]}\ns_cselect_b32 s{R4[6]}, 0, 1']
        a1, a2, a3 = PA+26, PA+27, PA+28
        ops += [f'v_lshrrev_b32 v{a1}, 3, v0', f'v_and_b32 v{a2}, 6, v{a1}', f'v_and_b32 v{a3}, 7, v0', f'v_xor_b32 v{a2}, v{a2}, v{a3}', f'v_lshlrev_b32 v{a2}, 4, v{a2}',
                f'v_mul_u32_u24 v{PA+30}, 1152, v{a1}', f'v_add_u32 v{PA+30}, v{PA+30}, v{a2}',
                f'v_lshrrev_b32 v{a1}, 2, v0', f'v_lshlrev_b32 v{a3}, 7, v{a1}', f'v_bfe_u32 v{a2}, v{a1}, 1, 2', f'v_lshl_add_u32 v{a3}, v{a2}, 5, v{a3}',
                f'v_and_b32 v{a2}, 3, v0', f'v_lshl_add_u32 v{a3}, v{a2}, 3, v{a3}', f'v_add_u32 v{PA+31}, s{sWl}, v{a3}']
        return ops
    def xd(i):
        ops = []
        if i % 4 == 0 and i: ops.append(f's_add_u32 m0, m0, 4096\ns_add_u32 s{sX}, s{sX}, 4096')
        ops.append(('vmem', f'buffer_load_dwordx4 v{vL16}, s[16:19], s{sX} offen offset:{(i%4)*1024} {LF} lds', ('x1', i // 6)))
        return ops
    def e2pre():
        a(f's_mul_i32 s7, s{sMt}, {FLS}\ns_add_u32 s7, s7, {FL_X}\ns_cmp_lg_u32 s{sW}, 0\ns_cbranch_scc1 P3_xp\ns_load_dword s4, s[28:29], s7 glc\nP3_xp:')
    def e2(h=None):
        a(f'''s_mul_i32 s{sTmp2}, s{sW}, 18432
        s_mul_i32 s{sX}, s{sMt}, 73728
        s_add_u32 s{sX}, s{sX}, s{sTmp2}
        s_add_u32 m0, s{sTmp2}, {XB}
        s_add_u32 s{sX}, s{sX}, {WS_X1F}
        s_lshl_b32 s{sTmp2}, s{sMt}, 6
        v_add_u32 v{vTmp}, s{sTmp2}, v0
        v_lshlrev_b32 v{vTmp}, 3, v{vTmp}''')
        fspin(a, 28, 's7', 9, sleep=0, wg=True, first_loaded=True)
        if h: h()
        for i in range(12):
            if i == 6: a('s_barrier')
            for op in xd(i): emit(op)
    def oprd(ph, u):
        ops = []
        for rt in range(4):
            if ph == 0: off = (rt & 1) * 18432 + u * 1024; b = vB[rt >> 1]
            else:
                o = u * 4096 + rt * 1024; b = vB[2 + (o >= 36864)]; off = o - (36864 if o >= 36864 else 0)
            ops.append(('lds', f'ds_read_b128 {opreg(u, rt)}, v{b} offset:{off}', ('op', ph, u)))
        return ops
    def stats_code():
        s0 = SB[0]
        ops = [('waitvm', 'stat'), f'v_and_b32 v{T+3}, 15, v0', f'v_lshlrev_b32 v{T+3}, 2, v{T+3}']
        for c in range(1, 9):
            ops.append(f'v_add_f32 v{s0}, v{s0}, v{SB[c]}')
            ops.append(f'v_add_f32 v{s0+1}, v{s0+1}, v{SB[c]+1}')
        ops += [f'v_mul_f32 v{s0}, {fhex(1/576)}, v{s0}',
                f'v_mul_f32 v{s0+1}, {fhex(1/576)}, v{s0+1}',
                f'v_fma_f32 v{s0+1}, -v{s0}, v{s0}, v{s0+1}',
                f'v_max_f32 v{s0+1}, 0, v{s0+1}',
                f'v_cvt_pk_bf16_f32 v{s0+2}, v{s0}, v{s0+1}',
                f'v_and_b32 v{s0+1}, 0xffff0000, v{s0+2}',
                f'v_lshlrev_b32 v{s0}, 16, v{s0+2}',
                f'v_add_f32 v{s0+1}, {fhex(1e-5)}, v{s0+1}',
                f'v_cvt_pk_bf16_f32 v{s0+1}, v{s0+1}, v{s0+1}',
                f'v_lshlrev_b32 v{s0+1}, 16, v{s0+1}',
                f'v_sqrt_f32 v{s0+1}, v{s0+1}',
                f'v_cvt_pk_bf16_f32 v{s0+1}, v{s0+1}, v{s0+1}',
                f'v_lshlrev_b32 v{s0+1}, 16, v{s0+1}',
                f'v_rcp_f32 v{s0+4}, v{s0+1}',
                f'v_sub_f32 v{s0+5}, 0, v{s0}',
                f'v_mul_f32 v{s0+6}, {fhex(GELU_C0)}, v{s0+4}',
                f'v_mul_f32 v{s0+7}, v{s0+4}, v{s0+4}',
                f'v_mul_f32 v{s0+7}, v{s0+7}, v{s0+6}',
                f'v_mul_f32 v{s0+7}, {fhex(0.044715)}, v{s0+7}']
        for rt in range(4):
            for i in range(4):
                ops.append(('lds', f'ds_bpermute_b32 v{AB+4*rt+i}, v{T+3}, v{s0+4+i} offset:{64*rt}', 'ab'))
        return ops
    def gelu4(acc, x, cj):
        k = acc + 4 * x; r = R + 4 * (x & 1); al = AB + 4*x; t = T + 2 * x
        st = [lambda i: f'v_fmac_f32 v{k+i}, v{CS+i}, v{al+1}',
              lambda i: f'v_mul_f32 v{r+i}, v{k+i}, v{k+i}',
              lambda i: f'v_fma_f32 v{r+i}, v{r+i}, v{al+3}, v{al+2}',
              lambda i: f'v_mul_f32 v{r+i}, v{r+i}, v{k+i}',
              lambda i: f'v_exp_f32 v{r+i}, v{r+i}',
              lambda i: f'v_add_f32 v{r+i}, 1.0, v{r+i}',
              lambda i: f'v_rcp_f32 v{r+i}, v{r+i}',
              lambda i: f'v_mul_f32 v{k+i}, v{k+i}, v{r+i}']
        ops = [f(i) for f in st for i in range(4)]
        ops.append(f'v_cvt_pk_bf16_f32 v{t}, v{k}, v{k+1}')
        ops.append(f'v_cvt_pk_bf16_f32 v{t+1}, v{k+2}, v{k+3}')
        o = cj * 8192 + x * 1024
        if o > 65535 - 8:
            ops.append(f'v_add_u32 v{r}, {o}, v{vHw}')
            ops.append(('lds', f'ds_write_b64 v{r}, {vr(t, 2)}', 'hw'))
        else:
            ops.append(('lds', f'ds_write_b64 v{vHw}, {vr(t, 2)} offset:{o}', 'hw'))
        return ops
    def out16(acc, cj):
        ops = [f's_lshl_b32 s{sTmp2}, s{sK+cj}, 2', f's_add_u32 s{sTmp2}, s{sTmp2}, s{sSt}']
        for g in range(2):
            b = acc + 8 * g
            for i in range(8): ops.append(f'v_mul_f32 v{b+i}, v{b+i}, v{AB + 4*(2*g + i//4)}')
            for i in range(4): ops.append(f'v_cvt_pk_bf16_f32 v{T+4*g+i}, v{b+2*i}, v{b+2*i+1}')
            if g == 1: ops.append(f's_add_u32 s{sTmp2}, s{sTmp2}, 4096')
            ops.append(('vmem', f'buffer_store_dwordx4 {vr(T+4*g, 4)}, v{vL16}, s[16:19], s{sTmp2} offen {sflag}', ('store', cj)))
        return ops
    def signal(cj, r):
        return [('waitvm', ('store', cj)), f's_mov_b32 s5, 1\ns_add_u32 s6, s{sFw}, {4*r}\ns_atomic_add s5, s[28:29], s6']
    def poll(areg):
        return [f's_load_dword s4, s[28:29], s{areg} glc']
    def spin(areg):
        l = a.newlabel('K3_sp'); l2 = a.newlabel('K3_ok')
        return [f's_mov_b32 s{sSpin}, 0\n{l}:\ns_cmp_ge_u32 s4, 8\ns_cbranch_scc1 {l2}\ns_add_u32 s{sSpin}, s{sSpin}, 1\ns_cmp_gt_u32 s{sSpin}, {SPIN_MAX}\ns_cbranch_scc1 {l2}\n'
                f's_load_dword s4, s[28:29], s{areg} glc\ns_waitcnt lgkmcnt(0)\ns_branch {l}\n{l2}:']
    RN = [8, 8, 2]
    def ploads(rd, buf):
        n = RN[rd] // 2
        ops = [f's_lshl_b32 s{sTmp2}, s{sPh+rd}, 13', f's_add_u32 s{sTmp2}, s{sTmp2}, s{sPf}']
        if n == 1: ops += [f's_lshl_b32 s{sX}, s{sW}, 2', f's_add_u32 s{sTmp2}, s{sTmp2}, s{sX}']
        mn = {4: 'buffer_load_dwordx4', 1: 'buffer_load_dword'}[n]
        for s in range(8):
            ops.append(('vmem', f'{mn} {vr(buf + n*s, n)}, v{vL16}, s[16:19], s{sTmp2} offen sc1', ('p', rd, s)))
            if s < 7: ops.append(f's_add_u32 s{sTmp2}, s{sTmp2}, {MAT}')
        return ops
    def stage(rd):
        x = [f's_lshl_b32 s{sX}, s{sPh+rd}, 7', f's_mov_b32 m0, s{sLg+rd}', f's_add_u32 s{sX}, s{sX}, s{sXo}',
             ('vmem', f'buffer_load_dwordx4 v{vTmp}, s[8:11], s{sX} offen lds', 'stg')]
        z = [f's_lshl_b32 s{sX}, s{sPh+rd}, 18', f's_add_u32 m0, s{sLg+rd}, 1024', f's_add_u32 s{sX}, s{sX}, s{sZo}',
             ('vmem', f'buffer_load_dwordx4 v{vTmp2}, s[16:19], s{sX} offen {LF} lds', 'stg')]
        return [x, z]
    sXo, sZo = 39, 49
    def x1reads():
        ops = [f's_mul_i32 s{sSpin}, s{sG}, 36864', f's_lshr_b32 s{sX}, s{sCq}, 1', f's_lshl_b32 s{sX}, s{sX}, 10', f's_add_u32 s{sSpin}, s{sSpin}, s{sX}',
               f's_and_b32 s{sX}, s{sCq}, 1', f's_lshl_b32 s{sX}, s{sX}, 3', f's_add_u32 s{sSpin}, s{sSpin}, s{sX}']
        for rd in range(3):
            ops += [f's_lshl_b32 s{sX}, s{sPh+rd}, 11', f's_add_u32 s{sX}, s{sX}, s{sSpin}']
            if rd == 2:
                ops += [f's_lshr_b32 s{sTmp2}, s{sW}, 1', f's_mul_i32 s{sTmp2}, s{sTmp2}, 18432', f's_add_u32 s{sX}, s{sX}, s{sTmp2}',
                        f's_and_b32 s{sTmp2}, s{sW}, 1', f's_lshl_b32 s{sTmp2}, s{sTmp2}, 2', f's_add_u32 s{sX}, s{sX}, s{sTmp2}']
            ops.append(f'v_add_u32 v{vTmp}, s{sX}, v{vB[0]}')
            ops.append(('lds', f'ds_read_b64 {vr(X1R + 4*rd, 2)}, v{vTmp}' if rd < 2 else f'ds_read_b32 v{X1R + 8}, v{vTmp}', 'x1r'))
            if rd < 2: ops.append(('lds', f'ds_read_b64 {vr(X1R + 4*rd + 2, 2)}, v{vTmp} offset:18432', 'x1r'))
        ops += [f's_mul_i32 s{sXo}, s{sRow}, 1152', f's_lshl_b32 s{sX}, s{sCq}, 5', f's_add_u32 s{sXo}, s{sXo}, s{sX}',
                f's_lshl_b32 s{sZo}, s{sCq}, 16', f's_lshl_b32 s{sX}, s{sRow}, 1', f's_add_u32 s{sZo}, s{sZo}, s{sX}', f's_add_u32 s{sZo}, s{sZo}, {WS_ZT}',
                f'v_lshrrev_b32 v{vTmp}, 1, v0', f'v_mul_u32_u24 v{vTmp}, 1152, v{vTmp}', f'v_and_b32 v{vTmp2}, 1, v0',
                f'v_lshl_add_u32 v{vTmp}, v{vTmp2}, 4, v{vTmp}', f'v_lshrrev_b32 v{vTmp2}, 2, v0', f'v_lshlrev_b32 v{vTmp2}, 12, v{vTmp2}',
                f'v_and_b32 v{vFl}, 3, v0', f'v_lshl_add_u32 v{vTmp2}, v{vFl}, 4, v{vTmp2}', f'v_and_b32 v{vFl}, 15, v0', f'v_lshlrev_b32 v{vFl}, 3, v{vFl}']
        return ops
    def unp(d, s, i): return f'v_lshlrev_b32 v{d}, 16, v{s+i//2}' if i % 2 == 0 else f'v_and_b32 v{d}, 0xffff0000, v{s+i//2}'
    def cvt(d, r, n): return [f'v_cvt_pk_bf16_f32 v{d+i}, v{r+2*i}, v{r+2*i+1}' for i in range(n//2)]
    def rnd(r, n, tmp): return cvt(tmp, r, n) + [unp(r+i, tmp, i) for i in range(n)]
    XP = [R, R + 4, CS]; SP = [[AB+1, AB+2, AB+3, AB+5], [AB+6, AB+7, AB+9, AB+10], [CS+2, CS+3]]; VO = [AB+11, AB+13, AB+14]
    def pre_ops(rd):
        n = RN[rd]; ops = []
        xr = XP[rd]; zr = PA; S = PA + 4; U = PA + 12; TM = PA + 20; vO = VO[rd]; a1, a2 = PA + 24, PA + 25
        if n == 8: ops += [f's_mov_b32 s{sX}, 0']
        else: ops += [f's_lshr_b32 s{sX}, s{sW}, 1']
        ops += [f'v_and_b32 v{a1}, 15, v0', f'v_lshrrev_b32 v{a2}, 4, v0', f'v_lshlrev_b32 v{a2}, 3, v{a2}',
                f'v_mul_u32_u24 v{vO}, 1152, v{a1}', f'v_add_u32 v{vO}, v{vO}, v{a2}', f'v_lshl_add_u32 v{a1}, v{a1}, 5, v{a2}',
                f's_lshl_b32 s{sSpin}, s{sX}, 9', f's_add_u32 s{sSpin}, s{sSpin}, s{sLg+rd}', f'v_add_u32 v{a1}, s{sSpin}, v{a1}']
        ops.append(('lds', f'ds_read_b64 {vr(xr, 2)}, v{a1}', ('x', rd)))
        if n == 8: ops.append(('lds', f'ds_read_b64 {vr(xr+2, 2)}, v{a1} offset:512', ('x', rd)))
        ops += [f'v_lshrrev_b32 v{a1}, 2, v0', f'v_and_b32 v{a2}, 3, v0', f'v_lshlrev_b32 v{a2}, 3, v{a2}', f'v_lshl_add_u32 v{a1}, v{a1}, 6, v{a2}',
                f's_lshl_b32 s{sSpin}, s{sX}, 5', f's_add_u32 s{sSpin}, s{sSpin}, s{sLg+rd}', f'v_add_u32 v{a1}, s{sSpin}, v{a1}']
        ops.append(('lds', f'ds_read_b64_tr_b16 {vr(zr, 2)}, v{a1} offset:1024', ('z', rd)))
        if n == 8: ops.append(('lds', f'ds_read_b64_tr_b16 {vr(zr+2, 2)}, v{a1} offset:{1024+32}', ('z', rd)))
        ops += [f's_mul_i32 s{sSpin}, s{sX}, {16*1152}', f's_add_u32 s{sSpin}, s{sSpin}, s{sXo}', f'v_add_u32 v{vO}, s{sSpin}, v{vO}',
                f's_lshl_b32 s{sSpin}, s{sPh+rd}, 7', f'v_add_u32 v{vO}, s{sSpin}, v{vO}']
        if n < 8:
            ops += [f's_cmp_eq_u32 s{sX}, 1\ns_cselect_b64 vcc, -1, 0', f'v_cndmask_b32 v{ST1}, v{ST1}, v{ST1+2}, vcc', f'v_cndmask_b32 v{ST1+1}, v{ST1+1}, v{ST1+3}, vcc']
        st = lambda i: ST1 + 2*(i//4)
        ops.append(('wait', ('x', rd)))
        if n == 2:
            ops += [('wait', ('z', rd)), f's_bitcmp1_b32 s{sW}, 0\ns_cselect_b64 vcc, -1, 0\ns_cselect_b32 s{sSpin}, 4, 0', f'v_cndmask_b32 v{xr}, v{xr}, v{xr+1}, vcc',
                    f'v_cndmask_b32 v{zr}, v{zr}, v{zr+1}, vcc', f'v_add_u32 v{vO}, s{sSpin}, v{vO}']
        ops += [unp(S+i, xr, i) for i in range(n)]
        ops += [f'v_sub_f32 v{S+i}, v{S+i}, v{st(i)}' for i in range(n)] + rnd(S, n, TM)
        ops += [f'v_mul_f32 v{S+i}, v{S+i}, v{st(i)+1}' for i in range(n)] + rnd(S, n, TM)
        ops.append(('wait', ('z', rd)))
        ops += [unp(U+i, zr, i) for i in range(n)] + [f'v_mul_f32 v{S+i}, v{S+i}, v{U+i}' for i in range(n)]
        ops += [f'v_cvt_pk_bf16_f32 v{SP[rd][i]}, v{S+2*i}, v{S+2*i+1}' for i in range(n//2)]
        return ops
    def cost(op):
        if not isinstance(op, str): return 0 if op[0] in ('wait', 'waitvm') else 1
        if op.startswith('v_exp') or op.startswith('v_rcp') or op.startswith('v_sqrt'): return 2
        return 1
    def emit(op):
        if isinstance(op, str): a(op)
        elif op[0] == 'wait': a.wait(lg=op[1])
        elif op[0] == 'waitvm': a.wait(vm=op[1])
        elif op[0] == 'lds': a.lds(op[1], op[2])
        elif op[0] == 'vmem': a.vmem(op[1], op[2])
        elif op[0] == 'fspin': fspin(a, 28, 's7', op[1], first_loaded=True, sleep=8, wg=True)
        elif op[0] == 'bar':
            a.wait(lg_all=True); a('s_barrier')
        elif op[0] == 'barvm':
            a.wait(vm=op[1]); a('s_barrier')
    F = [[[] for m in range(4)] for n in range(NST)]
    def spread(ops, g0, g1):
        wts = [(0.55 if g % 4 == 3 else 1.0) for g in range(g0, g1)]
        tw = sum(wts); tot = sum(cost(o) for o in ops)
        cum = 0; gi = 0; acc_w = wts[0]
        for o in ops:
            while gi < len(wts) - 1 and (cum + cost(o) * 0.5) / max(tot, 1) > acc_w / tw:
                gi += 1; acc_w += wts[gi]
            g = g0 + gi
            F[g // 4][g % 4].append(o)
            cum += cost(o)
    def run_main():
        nld = depth
        a(f's_mov_b32 s6, s{sX}')
        for op in e1late(): a(op)
        a(f's_mov_b32 s{sX}, s6')
        a.wait(vm=('x1', 0), lg_all=True); a('s_barrier')
        a.tr(2) if trc is None else None
        for u in range(3):
            for op in oprd(0, u): emit(op)
        for i in range(12, 18): F[(i-12)//3][(i-12)%3] += xd(i)
        for c in range(9):
            F[2 + c//3][c%3] += [f's_mov_b32 s{sTmp2}, {WS_ST2 + c * 16384}', ('vmem', f'buffer_load_dwordx2 {vr(SB[c], 2)}, v{vTmp}, s[16:19], s{sTmp2} offen {LF}', 'stat')]
        for u in range(3, 18):
            n = u - 3
            if u % 6 == 0: F[n][0].insert(0, ('barvm', ('x1', u // 6)))
            for m, o in enumerate(oprd(0, u)): F[n][m].append(o)
        if rp4: spread(rp4setup(), 4*5, 4*9)
        spread(x1reads(), 4*9+1, 4*12)
        spread(stats_code(), 4*12, 4*17)
        F[17][0] += [('bar',), ('lds', f'ds_read_b128 {vr(CS, 4)}, v{vCS} offset:0', ('cs', 0))]
        for gc in range(17):
            n0 = 18 * (gc + 1)
            acc = ACC[gc % 2]
            if gc < 9:
                gs = [gelu4(acc, x, gc) for x in range(4)]
                E = [('wait', [('cs', gc), 'ab'])] + sum([g[:4] for g in gs], [])
                if gc < 8: E.append(('lds', f'ds_read_b128 {vr(CS, 4)}, v{vCS} offset:{(gc+1)*256}', ('cs', gc + 1)))
                for x in range(4): E += gs[x][4:]
                if gc == 8:
                    F[n0][0] += [('bar',)] + oprd(1, 14) + oprd(1, 15)
                    spread(E, 4*n0 + 2, 4*(n0 + 14))
                    F[n0+13][3] += [('bar',)] + oprd(1, 16) + oprd(1, 17)
                else:
                    spread(E, 4*n0 + 2, 4*(n0 + 18))
            else:
                spread(out16(acc, gc - 9), 4*n0 + 2, 4*(n0 + 5))
        F[144][0].insert(0, ('bar',))
        for u in range(14):
            for m, o in enumerate(oprd(1, u)): F[144 + u + 1][m].append(o)
        P2 = 162
        slow = []
        for i in range(WLN):
            u = 18 - WLN + i
            slow.append(([f's_add_u32 s{sX}, s{sCh+8}, s{sK+u//2}', f's_add_u32 m0, s{sWl}, {1024*i}', f's_add_u32 s{sX}, s{sX}, {WBYTES + (u%2)*1024}'] if rot1 else
                         [f's_add_u32 m0, s{sWl}, {1024*i}', f's_add_u32 s{sX}, s{sCh+8}, {WBYTES + u*1024}']) + [
                         ('vmem', f'buffer_load_dwordx4 v{vL16}, s[16:19], s{sX} offen {LF} lds', 'wl')])
        sx = [stage(r)[0] for r in range(3)] + [[f's_lshl_b32 s{sX}, s{sRow}, 3', f's_add_u32 s{sX}, s{sX}, {WS_ST1}',
               ('vmem', f'buffer_load_dwordx2 {vr(ST1, 2)}, v{vFl}, s[16:19], s{sX} offen {LF}', 'stg'),
               ('vmem', f'buffer_load_dwordx2 {vr(ST1+2, 2)}, v{vFl}, s[16:19], s{sX} offen offset:128 {LF}', 'stg')]]
        zs_ = [stage(r)[1] for r in range(3)]
        if not rp4:
            slow = sx + slow + zs_
            pos = [s0 + (i * (140 - s0)) // len(slow) for i in range(len(slow))]
            F[2][3] += [f's_sub_u32 s89, s2, 144\ns_cmp_ge_u32 s89, 108\ns_cbranch_scc1 P3_n4\ns_cmp_lg_u32 s{sW}, 1\ns_cbranch_scc1 P3_n4\n'
                        f's_mul_i32 s89, s89, 12\ns_mul_i32 s90, s89, 3237\ns_lshr_b32 s90, s90, 19\ns_mul_i32 s91, s90, 162\ns_add_u32 s91, s91, 162\ns_sub_u32 s89, s91, s89\ns_min_u32 s89, s89, 12\n'
                        f's_mul_i32 s90, s90, {FLS}\ns_add_u32 s90, s90, {FL_W4}\ns_atomic_add s89, s[28:29], s90\ns_sub_u32 s5, 12, s89\ns_cmp_eq_u32 s5, 0\ns_cbranch_scc1 P3_n4\n'
                        f's_add_u32 s91, s90, {FLS}\ns_atomic_add s5, s[28:29], s91\nP3_n4:']
            for i, x in enumerate(slow): F[pos[i]][3] += x
            chk = ((pos[4], FL_W4, sSl, 162), (pos[-3], FL_Z, sCq, 576))
        else:
            n = rp_at
            for h in range(2):
                for i in range(4):
                    F[n][3] += [f's_add_u32 m0, s{sWl}, {h*4096 + i*1024}', f's_add_u32 s{sX}, s{R4[h]}, {i*8*1152}',
                                ('vmem', f'buffer_load_dwordx4 v{PA+30}, s[12:15], s{sX} offen nt lds', ('r4', h))]
                    n += rp_gap
            F[n][3] += [f's_load_dwordx2 s[12:13], s[0:1], 88\ns_mov_b32 s14, {MAT}']
            n += rp_wait
            for h in range(2):
                F[n][3] += [('waitvm', ('r4', h))]
                for t in range(4):
                    F[n + t//2][3] += [f'v_xor_b32 v{PA+29}, {32*t}, v{PA+31}'] + [('lds', f'ds_read_b64_tr_b16 {vr(PA + 4*t + 2*hh, 2)}, v{PA+29} offset:{h*4096 + hh*2048}', ('r4r', h, t)) for hh in range(2)]
                for t in range(4):
                    F[n + 3 + t][3] += [f's_add_u32 s{sX}, s{R4[2+h]}, {t*18432}', ('wait', ('r4r', h, t)),
                                        ('vmem', f'buffer_store_dwordx4 {vr(PA + 4*t, 4)}, v{vL16}, s[16:19], s{sX} offen sc1', 'r4s')]
                n += 8
            n += 10
            F[n][3] += [('waitvm', 'r4s'), f's_barrier\ns_bitcmp1_b32 s{sW}, 0\ns_cbranch_scc1 P3_n4\ns_mov_b32 s5, 2\ns_atomic_add s5, s[28:29], s{R4[4]}\ns_cmp_ge_u32 s2, 68\ns_cbranch_scc1 P3_n4\ns_atomic_add s5, s[28:29], s{R4[5]}\nP3_n4:']
            p0 = n + 2
            for i, x in enumerate(sx + zs_): F[p0 + 3*i][3] += x
            assert p0 + 3*7 <= w0 - 2, (p0,)
            for i, x in enumerate(slow): F[w0 + wgap*i][3] += x
            chk = ((w0, FL_W4, sSl, 162), (p0 + 12, FL_Z, sCq, 576))
        F[1][3] += [f's_cmp_lg_u32 s{sW}, 0\ns_cbranch_scc1 P3_nz\ns_atomic_add s{sLo}, s[28:29], s{sHi}\nP3_nz:']
        for (p_, base, idx, tgt) in chk:
            F[p_-9][2] += [f's_mul_i32 s7, s{idx}, {FLS}\ns_add_u32 s7, s7, {base}\ns_cmp_lg_u32 s{sW}, 0\ns_cbranch_scc1 P3_c{tgt}\ns_load_dword s4, s[28:29], s7 glc\nP3_c{tgt}:']
            F[p_][2] += [('fspin', tgt)]
        def wreg(n):
            return W + 4 * (n % NB) if n < NLD + 4 else W + 4 * ((NLD - 2 + (n - NLD + 2) % 6) % NB)
        for n in range(NLD, NST):
            F[n-4][1].append(('lds', f'ds_read_b128 {vr(wreg(n), 4)}, v{vWL} offset:{(n-NLD)*1024}', ('wl', n)))
        busy = sorted({(wreg(n) - W) // 4 for n in range(NLD - 2, NST)})
        free = [i for i in range(NB) if i not in busy]
        runs = [i for i in range(NB - 7) if all((i + k) in free for k in range(8))]
        PB = W + 4 * runs[0]
        PD = AV
        for rd in range(3): spread(pre_ops(rd), 4*(P2 + 18*(2+rd) + 6), 4*(P2 + 18*(2+rd) + 18))
        F[P2+18*5+2][1] += signal(3, 0)
        F[P2+18*6+10][1] += poll(sFr)
        F[P2+18*7+a_at][0] += ['s_waitcnt lgkmcnt(0)'] + spin(sFr)
        spread(ploads(0, PA), 4*(P2+18*7+a_at)+1, 4*(P2+18*7+a_at+3))
        F[P2+18*7+14][1] += signal(6, 1)
        F[NST-1][0] += poll(sNeed)
        for c in range(18):
            if trc is None:
                if c in (1, 9, 10, 17): a.tr({1: 3, 9: 4, 10: 5, 17: 6}[c])
            elif trc <= c < trc + 10: Gen.tr(a, c - trc)
            for u in range(18):
                n = 18 * c + u
                cnt = 0
                while n >= 5 and nld < min(n + depth + 1, NLD) and cnt < 2:
                    ld(nld); nld += 1; cnt += 1
                if n >= NLD: a.wait(lg=('wl', n))
                elif n >= 18:
                    if n % 2 == 0: a.wait(vm=('w', n + 1))
                else: a.wait(vm=('w', n))
                if c in (0, 9): a.wait(lg=('op', c // 9, u))
                r = wreg(n); acc = ACC[c % 2]
                for rt in range(4):
                    cin = '0' if u == 0 else vr(acc + 4*rt, 4)
                    a(f'v_mfma_f32_16x16x32_bf16 {vr(acc + 4*rt, 4)}, {vr(r, 4)}, {opreg(u, rt)}, {cin}')
                    for op in F[n][rt]: emit(op)
        a.tr(7)
        def pk(op, d, s0, s1, n): return [f'{op} {vr(d+2*i, 2)}, {vr(s0+2*i, 2)}, {vr(s1+2*i, 2)}' for i in range(n//2)]
        def accb(d, s, n): return [f'v_dot2c_f32_bf16 v{d+i}, s{sLo if i % 2 == 0 else sHi}, v{s+i//2}' for i in range(n)]
        def fin_ops(rd, buf):
            n = RN[rd]; h = n // 2; B = ACC[0]; U = ACC[0] + 8; x1r = X1R + 4 * rd; TM = AV + 16; O = AV + 20 + 4 * rd; vO = VO[rd]
            ops = [('waitvm', ('p', rd, 0))] + [unp(B+i, buf, i) for i in range(n)]
            for s in range(1, 8):
                ops += [('waitvm', ('p', rd, s))] + accb(B, buf + h*s, n)
            ops += rnd(B, n, TM) + accb(B, x1r, n) + rnd(B, n, TM)
            ops += [f'v_mul_f32 v{U+i}, {fhex(-1.4426950408889634)}, v{B+i}' for i in range(n)]
            ops += [f'v_exp_f32 v{U+i}, v{U+i}' for i in range(n)] + [f'v_add_f32 v{U+i}, 1.0, v{U+i}' for i in range(n)] + [f'v_rcp_f32 v{U+i}, v{U+i}' for i in range(n)]
            ops += pk('v_pk_mul_f32', B, B, U, n) + [unp(U+i, SP[rd][i//2], i % 2) for i in range(n)] + rnd(B, n, TM) + pk('v_pk_mul_f32', B, B, U, n) + rnd(B, n, TM) + accb(B, XP[rd], n)
            ops += cvt(O, B, n)
            ops.append(('vmem', f'buffer_store_dwordx2 {vr(O, 2)}, v{vO}, s[12:15], 0 offen' if n > 2 else f'buffer_store_dword v{O}, v{vO}, s[12:15], 0 offen', 'o'))
            if n == 8: ops += [f's_movk_i32 s{sTmp}, {16*1152}', ('vmem', f'buffer_store_dwordx2 {vr(O+2, 2)}, v{vO}, s[12:15], s{sTmp} offen', 'o')]
            return ops
        fa = fin_ops(0, PA)
        def run(seq):
            for op in seq: emit(op)
        run(out16(ACC[1], 8) + [f's_mov_b32 s{sLo}, 0x3f80', f's_mov_b32 s{sHi}, 0x3f800000'] + signal(7, 2) + [f's_add_u32 s7, s{sFr}, 12'])
        half = t1
        run(fa[:half] + signal(8, 3) + ['s_waitcnt lgkmcnt(1)' if False else 's_waitcnt lgkmcnt(0)'] + spin(sNeed) + ploads(1, PB) + fa[half:-3])
        a.tr(8)
        run(poll(7) + fa[-3:])
        a('s_waitcnt lgkmcnt(0)\ns_cmp_ge_u32 s4, 8\ns_cbranch_scc0 K3_q2')
        vm0 = list(a.vm)
        fb = fin_ops(1, PB)
        run(ploads(2, PD) + fb[:-3])
        a('s_branch K3_join2\nK3_q2:')
        a.vm = vm0
        run(poll(7) + fb[:-3] + ['s_waitcnt lgkmcnt(0)'] + spin(7) + ploads(2, PD))
        a('K3_join2:')
        a.vm = [('p', 2, s) for s in range(8)]
        a.tr(9)
        run(fb[-3:] + fin_ops(2, PD))
    return dict(e1a=e1a, e1w=e1w, e1b=e1b, e1c=e1c, e2=e2, e2pre=e2pre, emit=emit, main=run_main, W=W, nv=nv, regs=V.names)
```

```python
from common import *
from front import spin as fspin
SPIN_MAX = 200000

def make_p3(a, depth=19, trc=None, LF='sc1', t0=30, t1=110, a_at=108, a_gap=3, b_at=150, NI=14, BAR=6, LA=3, LEAD=31, rp4=False, npf=19, stg=0, pfgap=1, pf0=5, nopre=False, nobar=False, sfl='sc1', dfl='', burst=True, pre_at=1, trn=None, pfl='sc1', fast=None, s7at=1, noex=False):
    NB = depth + 2
    V = Regs(4, 254)
    AV = V.alloc('Av', 32, 4)
    AC = [V.alloc('ac0', 32, 4), V.alloc('ac1', 32, 4)]
    W = V.alloc('w', 4 * NB, 4)
    CS = V.alloc('cs', 16, 4); R = V.alloc('r', 8, 4); T = V.alloc('t', 8, 4)
    ST1 = V.alloc('st1', 4, 4); AL = V.alloc('al', 4, 4); X1R = V.alloc('x1r', 10, 2); K1 = V.alloc('k1', 6, 2)
    vL16 = V.alloc('l16'); vW32 = V.alloc('w32'); V.alloc('w32b'); vX = [CS + 12, CS + 13, CS + 14, CS + 15]; vHi = V.alloc('hi'); vH = [V.alloc('h0'), V.alloc('h1')]
    vCS = V.alloc('vcs'); vFl = V.alloc('fl'); vTmp = V.alloc('tmp'); vTmp2 = V.alloc('tmp2')
    vD4 = V.alloc('d4'); vT4 = [V.alloc('t40'), V.alloc('t41'), V.alloc('t42')]
    nv = V.n
    def op16(p, off): return ar(16*p + off, 4) if p < 16 else vr(AV + 16*(p-16) + off, 4)
    CSB = 73728; STG = CSB + 2304; XB = 90112; WLB = STG + 9216 + 768
    sSl, sMt, sRot, sW, sG, sCq, sRow = 20, 21, 22, 23, 24, 25, 26
    sCh, sK = 30, 40
    sB1, sBH = 88, 59
    sPh = 50
    sFw, sFr, sPf, sSpin = 55, 56, 57, 58
    sLg = [61, 62, 63, 91]
    OFF = [0, 4, 6, 8]
    sLo, sHi = 54, 27
    sSt, sTmp, sTmp2, sX = 60, 64, 65, 66
    sXo, sZo, sM4, sD = 39, 49, 89, 90
    sFast = sG
    N1 = 162
    H0 = 18
    def bk(n): return (0, 2*n) if n < H0 else (1 + (n - H0) // 36, (n - H0) % 36)
    SB = [AC[0] + 2*c for c in range(9)]
    def emit(op):
        if isinstance(op, str): a(op)
        elif op[0] == 'wait': a.wait(lg=op[1])
        elif op[0] == 'waitvm': a.wait(vm=op[1])
        elif op[0] == 'lds': a.lds(op[1], op[2])
        elif op[0] == 'vmem': a.vmem(op[1], op[2])
        elif op[0] == 'fspin': fspin(a, 28, 's7', op[1], first_loaded=True, sleep=8, wg=True)
        elif op[0] == 'bar': a.wait(lg_all=True); a('s_barrier')
        elif op[0] == 'barvm': a.wait(vm=op[1]); a('s_barrier')
        elif op[0] == 'tr': a.tr(op[1])
    def ldops(n):
        if n >= N1: return []
        blk, k = bk(n)
        ops = []
        if k % 8 == 0: ops.append(f's_add_u32 s{sTmp}, s{sBH}, {k*512}' if blk == 0 else f's_add_u32 s{sTmp}, s{sB1}, {(blk-1)*4*36864 + k*512}')
        ops.append(('vmem', f'buffer_load_dwordx4 {vr(W + 4*(n % NB), 4)}, v{vW32 + k%2}, s[16:19], s{sTmp} offen offset:{(k%8)//2*1024} {LF}', ('w', n)))
        return ops
    def physof(dst, add_reg, add_const):
        s = f's_add_u32 s{dst}, s{sRot}, {add_const}\n'
        if add_reg is not None: s += f's_add_u32 s{dst}, s{dst}, s{add_reg}\n'
        return s + f's_cmp_ge_u32 s{dst}, 9\ns_cselect_b32 s{sTmp2}, 9, 0\ns_sub_u32 s{dst}, s{dst}, s{sTmp2}'
    def e1a(pre=False):
        a(f'''
        s_load_dwordx2 s[8:9], s[0:1], 88
        s_load_dwordx2 s[12:13], s[0:1], 80
        {slice_code(sSl, sTmp)}
        s_mul_i32 s7, s{sSl}, {FLS}
        s_add_u32 s7, s7, {FL_W3}
        s_cmp_lg_u32 s{sW}, 0
        s_cbranch_scc1 P3_w3
        s_load_dword s4, s[28:29], s7 glc
        P3_w3:
        {mt_code(sMt, sTmp)}
        v_lshlrev_b32 v{vL16}, 4, v0
        s_mul_i32 s{sTmp}, s{sSl}, {9*73728}
        s_add_u32 s{sTmp}, s{sTmp}, {WS_WP3}
        s_mul_i32 s{sTmp2}, s{sW}, 36864
        s_add_u32 s{sB1}, s{sTmp}, s{sTmp2}
        s_lshr_b32 s{sTmp2}, s{sW}, 1
        s_mul_i32 s{sTmp2}, s{sTmp2}, 36864
        s_add_u32 s{sBH}, s{sTmp}, s{sTmp2}
        s_add_u32 s{sBH}, s{sBH}, {16*36864}
        s_mov_b32 s10, {MAT}
        s_mov_b32 s11, 0x20000
        s_mov_b32 s14, {WBYTES}
        s_mov_b32 s15, 0x20000
        v_and_b32 v3, 15, v0
        v_lshrrev_b32 v1, 5, v0
        v_lshlrev_b32 v1, 8, v1
        v_lshl_add_u32 v{vH[0]}, v3, 4, v1
        v_bfe_u32 v2, v0, 4, 1
        v_mul_u32_u24 v{vW32}, 18432, v2
        v_add_u32 v{vW32}, v{vW32}, v{vH[0]}
        s_and_b32 s{sTmp2}, s{sW}, 1
        s_lshl_b32 s{sTmp2}, s{sTmp2}, 9
        v_add_u32 v{vW32}, s{sTmp2}, v{vW32}
        v_xor_b32 v{vW32+1}, 512, v{vW32}
        v_lshl_add_u32 v{vH[0]}, v2, 10, v{vH[0]}
        v_lshrrev_b32 v1, 4, v0
        v_lshl_add_u32 v1, v1, 2, s{sW}
        v_min_u32 v1, 8, v1
        v_lshlrev_b32 v1, 8, v1
        v_lshl_add_u32 v{vTmp2}, v3, 4, v1
        v_add_u32 v{vFl}, {CSB}, v{vTmp2}''')
    def e1w(loaded=False):
        fspin(a, 28, 's7', 81, sleep=8, wg=True, first_loaded=loaded)
    def e1b():
        ops = [f's_mul_i32 s{sX}, s{sSl}, 2304\ns_add_u32 s{sX}, s{sX}, {WS_CS3}']
        for rb in range(9):
            ops.append(('vmem', f'buffer_load_dwordx4 {vr(AC[0] + 4*rb, 4)}, v{vTmp2}, s[16:19], s{sX} offen {LF}', 'csp'))
            if rb < 8: ops.append(f's_add_u32 s{sX}, s{sX}, {4608*4}')
        for n in range(depth): ops += ldops(n)
        return ops
    def e1c():
        a.wait(vm='csp')
        d = AC[0] + 32
        for rb in range(8):
            for i in range(2): a(f'v_pk_add_f32 {vr(d+2*i, 2)}, {vr(d+2*i, 2)}, {vr(AC[0]+4*rb+2*i, 2)}')
        a.lds(f'ds_write_b128 v{vFl}, {vr(d, 4)}', 'csw')
    def xd(i):
        ops = []
        if i % 4 == 0 and i: ops.append(f's_add_u32 m0, m0, 4096\ns_add_u32 s{sX}, s{sX}, 4096')
        ops.append(('vmem', f'buffer_load_dwordx4 v{vL16}, s[16:19], s{sX} offen offset:{(i%4)*1024} {LF} lds', ('x1', i // 6)))
        return ops
    def e2pre():
        a(f's_mul_i32 s7, s{sMt}, {FLS}\ns_add_u32 s7, s7, {FL_X}\ns_cmp_lg_u32 s{sW}, 0\ns_cbranch_scc1 P3_xp\ns_load_dword s4, s[28:29], s7 glc\nP3_xp:')
    def e2(h=None):
        a(f'''s_mul_i32 s{sTmp2}, s{sW}, 18432
        s_mul_i32 s{sX}, s{sMt}, 73728
        s_add_u32 s{sX}, s{sX}, s{sTmp2}
        s_add_u32 m0, s{sTmp2}, {XB}
        s_add_u32 s{sX}, s{sX}, {WS_X1F}
        s_lshl_b32 s{sTmp2}, s{sMt}, 6
        v_add_u32 v{vTmp}, s{sTmp2}, v0
        v_lshlrev_b32 v{vTmp}, 3, v{vTmp}''')
        fspin(a, 28, 's7', 9, sleep=0, wg=True, first_loaded=True)
        if h: h()
        for i in range(12):
            if i == 6: a('s_barrier')
            for op in xd(i): emit(op)
    def e1late():
        Y = 6
        a(f'''s_mul_i32 s{Y}, s{sMt}, 57
        s_lshr_b32 s{Y}, s{Y}, 9
        s_mul_i32 s{Y}, s{Y}, 9
        s_sub_u32 s{sRot}, s{sMt}, s{Y}
        s_mul_i32 s{Y}, s{sSl}, {576*1152}
        s_mul_i32 s{sTmp2}, s{sW}, {8*1152}
        s_add_u32 s{Y}, s{Y}, s{sTmp2}
        s_mov_b32 s{sTmp2}, s{sRot}''')
        for j in range(9):
            a(f's_lshl_b32 s{sCh+j}, s{sTmp2}, 7\ns_add_u32 s{sCh+j}, s{sCh+j}, s{Y}\ns_lshl_b32 s{sK+j}, s{sTmp2}, 13')
            if j < 8: a(f's_add_u32 s{sTmp2}, s{sTmp2}, 1\ns_cmp_eq_u32 s{sTmp2}, 9\ns_cselect_b32 s{sTmp2}, 0, s{sTmp2}')
        a(f's_lshr_b32 s{Y}, s{sW}, 1')
        a(physof(sPh, sW, 0)); a(physof(sPh+1, Y, 4)); a(physof(sPh+2, Y, 6)); a(physof(sPh+3, None, 8))
        a(f'''s_lshl_b32 s{sLg[0]}, s{sW}, 10
        s_add_u32 s{sLg[0]}, s{sLg[0]}, {STG - 1024}
        s_lshl_b32 s{sLg[1]}, s{Y}, 10
        s_add_u32 s{sLg[1]}, s{sLg[1]}, {STG - 1024 + 4096}
        s_add_u32 s{sLg[2]}, s{sLg[1]}, 2048
        s_mov_b32 s{sLg[3]}, {STG + 8192 - 1024}
        s_and_b32 s{sTmp2}, s{sW}, 1
        s_mul_i32 s{Y}, s{sTmp2}, 36864
        s_add_u32 s{Y}, s{Y}, {XB}
        v_add_u32 v{vX[0]}, s{Y}, v{vW32}
        s_sub_u32 s{Y}, {2*XB + 36864}, s{Y}
        v_add_u32 v{vX[1]}, s{Y}, v{vW32}
        v_xor_b32 v{vX[2]}, 512, v{vX[0]}
        v_xor_b32 v{vX[3]}, 512, v{vX[1]}
        v_add_u32 v{vHi}, 0x10000, v{vL16}
        s_lshl_b32 s{sTmp2}, s{sTmp2}, 11
        s_lshl_b32 s{Y}, s{sW}, 12
        s_add_u32 s{Y}, s{Y}, s{sTmp2}
        v_add_u32 v{vH[0]}, s{Y}, v{vH[0]}
        v_xor_b32 v{vH[1]}, 2048, v{vH[0]}
        s_lshl_b32 s{Y}, s{sW}, 7
        s_add_u32 s{Y}, s{Y}, {CSB}
        v_lshrrev_b32 v1, 5, v0
        v_lshl_add_u32 v{vCS}, v1, 4, s{Y}
        s_mul_i32 s{Y}, s{sMt}, 73728
        s_add_u32 s{sPf}, s{Y}, {WS_PF}
        s_mul_i32 s{sSt}, s{sSl}, {MAT}
        s_add_u32 s{sSt}, s{sSt}, s{sPf}
        s_lshl_b32 s{sM4}, s{sW}, 10
        s_add_u32 s{sSt}, s{sSt}, s{sM4}
        s_lshl_b32 s{Y}, s{sSl}, 10
        s_add_u32 s{sPf}, s{sPf}, s{Y}
        s_lshr_b32 s{sG}, s{sSl}, 2
        s_and_b32 s{sCq}, s{sSl}, 3
        s_lshl_b32 s{sRow}, s{sMt}, 6
        s_lshl_b32 s{Y}, s{sG}, 5
        s_add_u32 s{sRow}, s{sRow}, s{Y}
        s_mul_i32 s{Y}, s{sMt}, {4*FLS}
        s_add_u32 s{Y}, s{Y}, {WS_FL}
        s_mul_i32 s{sFw}, s{sW}, {FLS}
        s_add_u32 s{sFw}, s{sFw}, s{Y}
        s_mul_i32 s{sFr}, s{sCq}, {FLS}
        s_add_u32 s{sFr}, s{sFr}, s{Y}
        v_lshrrev_b32 v1, 3, v0
        v_and_b32 v2, 6, v1
        v_and_b32 v3, 7, v0
        v_xor_b32 v2, v2, v3
        v_mul_u32_u24 v{vD4}, 1152, v1
        v_lshl_add_u32 v{vD4}, v2, 4, v{vD4}
        v_lshrrev_b32 v1, 2, v0
        v_bfe_u32 v2, v1, 1, 2
        v_xor_b32 v2, s{sW}, v2
        v_lshlrev_b32 v2, 5, v2
        v_lshl_add_u32 v2, v1, 7, v2
        v_and_b32 v3, 3, v0
        v_lshl_add_u32 v{vT4[0]}, v3, 3, v2
        v_add_u32 v{vT4[1]}, 0xf000, v{vT4[0]}
        v_add_u32 v{vT4[2]}, 0x1e000, v{vT4[0]}''')
    def xrd(k, Ts): return ('lds', f'ds_read_b128 {op16(k//2, 8*(k%2) + 4*Ts)}, v{vX[Ts + 2*(k%2)]} offset:{k//2*1024}', ('xo', k))
    def hrd(p):
        ops = []
        for rt in range(4):
            o = p * 4096 + rt * 1024
            ops.append(('lds', f'ds_read_b128 {op16(p, 4*rt)}, v{vL16 if o < 65536 else vHi} offset:{o if o < 65536 else o - 65536}', ('ho', p)))
        return ops
    def stats_code():
        s0 = SB[0]; A1 = T; A2 = T + 1
        ops = [f'v_and_b32 v{A2}, 15, v0', f'v_lshlrev_b32 v{A2}, 2, v{A2}', f'v_and_b32 v{A1}, 31, v0', f's_and_b32 s{sTmp2}, s{sW}, 1\ns_lshl_b32 s{sTmp2}, s{sTmp2}, 7',
               f'v_lshl_add_u32 v{A1}, v{A1}, 2, s{sTmp2}', f'v_xor_b32 v{T+2}, 128, v{A1}', ('waitvm', 'stat')]
        for c in range(1, 9):
            ops += [f'v_add_f32 v{s0}, v{s0}, v{SB[c]}', f'v_add_f32 v{s0+1}, v{s0+1}, v{SB[c]+1}']
        ops += [f'v_mul_f32 v{s0}, {fhex(1/576)}, v{s0}', f'v_mul_f32 v{s0+1}, {fhex(1/576)}, v{s0+1}', f'v_fma_f32 v{s0+1}, -v{s0}, v{s0}, v{s0+1}',
                f'v_max_f32 v{s0+1}, 0, v{s0+1}', f'v_cvt_pk_bf16_f32 v{s0+2}, v{s0}, v{s0+1}', f'v_and_b32 v{s0+1}, 0xffff0000, v{s0+2}', f'v_lshlrev_b32 v{s0}, 16, v{s0+2}',
                f'v_add_f32 v{s0+1}, {fhex(1e-5)}, v{s0+1}', f'v_cvt_pk_bf16_f32 v{s0+1}, v{s0+1}, v{s0+1}', f'v_lshlrev_b32 v{s0+1}, 16, v{s0+1}', f'v_sqrt_f32 v{s0+1}, v{s0+1}',
                f'v_sub_f32 v{R+1}, 0, v{s0}',
                f'v_cvt_pk_bf16_f32 v{s0+1}, v{s0+1}, v{s0+1}', f'v_lshlrev_b32 v{s0+1}, 16, v{s0+1}', f'v_rcp_f32 v{R}, v{s0+1}', 's_nop 0',
                f'v_mul_f32 v{R+2}, {fhex(GELU_C0)}, v{R}', f'v_mul_f32 v{R+3}, v{R}, v{R}', f'v_mul_f32 v{R+3}, v{R+3}, v{R+2}', f'v_mul_f32 v{R+3}, {fhex(0.044715)}, v{R+3}']
        for Ts in range(2):
            for i in range(3): ops.append(('lds', f'ds_bpermute_b32 v{K1+3*Ts+i}, v{A1 if Ts == 0 else T+2}, v{R+1+i}', 'ab'))
        for rt in range(4): ops.append(('lds', f'ds_bpermute_b32 v{AL+rt}, v{A2}, v{R} offset:{64*rt}', 'ab'))
        return ops
    def csrd(blk):
        if blk == 0:
            pre = [f's_lshr_b32 s{sTmp2}, s{sW}, 1\ns_sub_u32 s{sTmp2}, s{sTmp2}, s{sW}\ns_lshl_b32 s{sTmp2}, s{sTmp2}, 7', f'v_add_u32 v{T+3}, s{sTmp2}, v{vCS}']
            return pre + [('lds', f'ds_read_b128 {vr(CS+4*g, 4)}, v{T+3} offset:{2048 + 32*g}', ('cs', 0)) for g in range(4)]
        return [('lds', f'ds_read_b128 {vr(CS+4*g, 4)}, v{vCS} offset:{(blk-1)*512 + 32*g}', ('cs', blk)) for g in range(4)]
    def gelu_blk(blk):
        acc = AC[(blk + 1) % 2]; nT = 1 if blk == 0 else 2
        E = [('wait', [('cs', blk), 'ab', 'exr'])]
        if blk == 0: E += [f'v_add_f32 v{acc+i}, v{acc+i}, v{acc+16+i}' for i in range(16)]
        for Ts in range(nT):
            E += [f'v_fmac_f32 v{acc+16*Ts+i}, v{CS+i}, v{K1+3*Ts}' for i in range(16)]
        if blk < 4: E += csrd(blk + 1)
        if blk == 0: E += [f's_lshr_b32 s{sTmp2}, s{sW}, 1\ns_sub_u32 s{sTmp2}, s{sTmp2}, s{sW}\ns_lshl_b32 s{sTmp2}, s{sTmp2}, 12', f'v_add_u32 v{acc+16}, s{sTmp2}, v{vH[0]}']
        j = 0
        for Ts in range(nT):
            for g in (0, 2, 1, 3):
                k = acc + 16*Ts + 4*g; r = R + 4*(j & 1); j += 1
                k0, k1 = K1 + 3*Ts + 1, K1 + 3*Ts + 2
                st = [lambda i: f'v_mul_f32 v{r+i}, v{k+i}, v{k+i}', lambda i: f'v_fma_f32 v{r+i}, v{r+i}, v{k1}, v{k0}', lambda i: f'v_mul_f32 v{r+i}, v{r+i}, v{k+i}',
                      lambda i: f'v_exp_f32 v{r+i}, v{r+i}', lambda i: f'v_add_f32 v{r+i}, 1.0, v{r+i}', lambda i: f'v_rcp_f32 v{r+i}, v{r+i}', lambda i: f'v_mul_f32 v{k+i}, v{k+i}, v{r+i}']
                E += [f(i) for f in st for i in range(4)]
                t = T + 4*(g & 1) + 2*(g >> 1)
                E += [f'v_cvt_pk_bf16_f32 v{t}, v{k}, v{k+1}', f'v_cvt_pk_bf16_f32 v{t+1}, v{k+2}, v{k+3}']
                if g >= 2:
                    if blk == 0: E.append(('lds', f'ds_write_b128 v{acc+16}, {vr(T + 4*(g&1), 4)} offset:{(g&1)*512}', 'hw'))
                    else: E.append(('lds', f'ds_write_b128 v{vH[Ts]}, {vr(T + 4*(g&1), 4)} offset:{(2 + 4*(blk-1))*4096 + (g&1)*512}', 'hw'))
        return E
    def bsel(r):
        return r - (r & 1), r & 1
    def gelu_pk():
        acc = AC[1]; TT = AC[0]
        E = [('wait', ('cs', 4))]
        for Ts in range(2):
            pn, sn = bsel(K1+3*Ts)
            E += [f'v_pk_fma_f32 {vr(acc+16*Ts+2*i, 2)}, {vr(CS+2*i, 2)}, {vr(pn, 2)}, {vr(acc+16*Ts+2*i, 2)} op_sel:[0,{sn},0] op_sel_hi:[1,{sn},1]' for i in range(8)]
        for Ts in range(2):
            A_ = acc + 16*Ts; T_ = TT + 16*Ts
            (pn, sn), (p0_, s0_), (p1_, s1_) = bsel(K1+3*Ts), bsel(K1+3*Ts+1), bsel(K1+3*Ts+2)
            P = lambda r: vr(r, 2)
            E += [f'v_pk_mul_f32 {P(T_+2*i)}, {P(A_+2*i)}, {P(A_+2*i)}' for i in range(8)]
            E += [f'v_pk_fma_f32 {P(T_+2*i)}, {P(T_+2*i)}, {P(p1_)}, {P(p0_)} op_sel:[0,{s1_},{s0_}] op_sel_hi:[1,{s1_},{s0_}]' for i in range(8)]
            E += [f'v_pk_mul_f32 {P(T_+2*i)}, {P(T_+2*i)}, {P(A_+2*i)}' for i in range(8)]
            E += [f'v_exp_f32 v{T_+i}, v{T_+i}' for i in range(16)]
            E += [f'v_pk_add_f32 {P(T_+2*i)}, {P(T_+2*i)}, 1.0 op_sel_hi:[1,0]' for i in range(8)]
            E += [f'v_rcp_f32 v{T_+i}, v{T_+i}' for i in range(16)]
            E += [f'v_pk_mul_f32 {P(A_+2*i)}, {P(A_+2*i)}, {P(T_+2*i)}' for i in range(8)]
            O = T if Ts == 0 else R
            for g in (0, 2, 1, 3):
                k = A_ + 4*g; t = O + 4*(g & 1) + 2*(g >> 1)
                E += [f'v_cvt_pk_bf16_f32 v{t}, v{k}, v{k+1}', f'v_cvt_pk_bf16_f32 v{t+1}, v{k+2}, v{k+3}']
                if g >= 2: E.append(('lds', f'ds_write_b128 v{vH[Ts]}, {vr(O + 4*(g&1), 4)} offset:{14*4096 + (g&1)*512}', 'hw'))
        return E
    A2 = [AC[0], AC[0] + 16, AC[1], AC[1] + 16]
    def out16(cj):
        acc = A2[cj % 4]
        ops = [f's_add_u32 s{sTmp2}, s{sK+cj}, s{sSt}']
        for g in range(2):
            b = acc + 8 * g
            for i in range(8): ops.append(f'v_mul_f32 v{b+i}, v{b+i}, v{AL + 2*g + i//4}')
            for i in range(4): ops.append(f'v_cvt_pk_bf16_f32 v{T+4*g+i}, v{b+2*i}, v{b+2*i+1}')
            if g == 1: ops.append(f's_add_u32 s{sTmp2}, s{sTmp2}, 4096')
            st_ = f'buffer_store_dwordx4 {vr(T+4*g, 4)}, v{vL16}, s[16:19], s{sTmp2} offen '
            if fast is None: ops.append(('vmem', st_ + sfl, ('store', cj)))
            else:
                l1 = a.newlabel('FS'); l2 = a.newlabel('FE')
                ops.append(('vmem', f's_cmp_eq_u32 s{sFast}, {g}\ns_cbranch_scc1 {l1}\n{st_}{sfl}\ns_branch {l2}\n{l1}:\n{st_}{fast}\n{l2}:', ('store', cj)))
        return ops
    def signal(cj, r): return [('waitvm', ('store', cj)), f's_mov_b32 s5, 1\ns_add_u32 s6, s{sFw}, {4*r}\ns_atomic_add s5, s[28:29], s6']
    def poll(areg): return [f's_load_dword s4, s[28:29], s{areg} glc']
    def spin(areg):
        l = a.newlabel('K3_sp'); l2 = a.newlabel('K3_ok')
        return [f's_mov_b32 s{sSpin}, 0\n{l}:\ns_cmp_ge_u32 s4, 8\ns_cbranch_scc1 {l2}\ns_add_u32 s{sSpin}, s{sSpin}, 1\ns_cmp_gt_u32 s{sSpin}, {SPIN_MAX}\ns_cbranch_scc1 {l2}\n'
                f's_load_dword s4, s[28:29], s{areg} glc\ns_waitcnt lgkmcnt(0)\ns_branch {l}\n{l2}:']
    RN = [8, 4, 4, 2]
    MN = {8: 'dwordx4', 4: 'dwordx2', 2: 'dword'}
    def suboff(rd, dst, t):
        if RN[rd] == 8: return ''
        if RN[rd] == 4: return f'\ns_and_b32 s{t}, s{sW}, 1\ns_lshl_b32 s{t}, s{t}, 3\ns_add_u32 s{dst}, s{dst}, s{t}'
        return f'\ns_lshl_b32 s{t}, s{sW}, 2\ns_add_u32 s{dst}, s{dst}, s{t}'
    def ploads(rd, buf, sr=None):
        n = RN[rd] // 2; sr = sr or sTmp2
        ops = [f's_lshl_b32 s{sr}, s{sPh+rd}, 13\ns_add_u32 s{sr}, s{sr}, s{sPf}' + suboff(rd, sr, sX)]
        for s in range(8):
            ops.append(('vmem', f'buffer_load_{MN[RN[rd]]} {vr(buf + n*s, n)}, v{vL16}, s[16:19], s{sr} offen {pfl}', ('p', rd, s)))
            if s < 7: ops.append(f's_add_u32 s{sr}, s{sr}, {MAT}')
        return ops
    def stage(rd):
        x = [f's_lshl_b32 s{sX}, s{sPh+rd}, 13\ns_add_u32 s{sX}, s{sX}, s{sPf}\ns_add_u32 s{sX}, s{sX}, {WS_XP - WS_PF}' + suboff(rd, sX, 6),
             ('vmem', f'buffer_load_{MN[RN[rd]]} {vr(XP[rd], RN[rd]//2)}, v{vL16}, s[16:19], s{sX} offen {LF}', 'stg')]
        z = [f's_lshl_b32 s{sX}, s{sPh+rd}, 18', f's_add_u32 m0, s{sLg[rd]}, 1024', f's_add_u32 s{sX}, s{sX}, s{sZo}',
             ('vmem', f'buffer_load_dwordx4 v{vL16}, s[16:19], s{sX} offen {LF} lds', 'stg')]
        return [x, z]
    def x1reads():
        ops = [f's_mul_i32 s{sSpin}, s{sG}, 36864\ns_lshr_b32 s{sX}, s{sCq}, 1\ns_lshl_b32 s{sX}, s{sX}, 10\ns_add_u32 s{sSpin}, s{sSpin}, s{sX}',
               f's_and_b32 s{sX}, s{sCq}, 1\ns_lshl_b32 s{sX}, s{sX}, 3\ns_add_u32 s{sSpin}, s{sSpin}, s{sX}\ns_add_u32 s{sSpin}, s{sSpin}, {XB}']
        for rd in range(4):
            ops += [f's_lshl_b32 s{sX}, s{sPh+rd}, 11\ns_add_u32 s{sX}, s{sX}, s{sSpin}']
            if RN[rd] == 4: ops += [f's_and_b32 s6, s{sW}, 1\ns_mul_i32 s6, s6, 18432\ns_add_u32 s{sX}, s{sX}, s6']
            if RN[rd] == 2:
                ops += [f's_lshr_b32 s6, s{sW}, 1\ns_mul_i32 s6, s6, 18432\ns_add_u32 s{sX}, s{sX}, s6', f's_and_b32 s6, s{sW}, 1\ns_lshl_b32 s6, s6, 2\ns_add_u32 s{sX}, s{sX}, s6']
            ops.append(f'v_add_u32 v{vTmp}, s{sX}, v{vL16}')
            ops.append(('lds', f'ds_read_b64 {vr(X1R + OFF[rd], 2)}, v{vTmp}' if RN[rd] > 2 else f'ds_read_b32 v{X1R + 8}, v{vTmp}', 'x1r'))
            if RN[rd] == 8: ops.append(('lds', f'ds_read_b64 {vr(X1R + 2, 2)}, v{vTmp} offset:18432', 'x1r'))
        ops += [f's_mul_i32 s{sXo}, s{sRow}, 1152\ns_lshl_b32 s{sX}, s{sCq}, 5\ns_add_u32 s{sXo}, s{sXo}, s{sX}',
                f's_lshl_b32 s{sZo}, s{sCq}, 16\ns_lshl_b32 s{sX}, s{sRow}, 5\ns_add_u32 s{sZo}, s{sZo}, s{sX}\ns_add_u32 s{sZo}, s{sZo}, {WS_ZT}',
                f'v_and_b32 v{vFl}, 15, v0', f'v_lshlrev_b32 v{vFl}, 3, v{vFl}']
        return ops
    def unp(d, s, i): return f'v_lshlrev_b32 v{d}, 16, v{s+i//2}' if i % 2 == 0 else f'v_and_b32 v{d}, 0xffff0000, v{s+i//2}'
    def cvt(d, r, n): return [f'v_cvt_pk_bf16_f32 v{d+i}, v{r+2*i}, v{r+2*i+1}' for i in range(n//2)]
    def rnd(r, n, tmp): return cvt(tmp, r, n) + [unp(r+i, tmp, i) for i in range(n)]
    NWF = LA + 2
    late = {(n % NB) for n in range(N1 - LA - 2, N1)}
    st0 = [i for i in range(NB - NWF + 1) if all((i + k) not in late for k in range(NWF))]
    cand = [i for i in st0 if i == 0 or i + NWF == NB]
    assert cand, (late, st0)
    WF = W + 4 * cand[0]
    PA = W + 4 * NWF if cand[0] == 0 else W
    PB = PA + 32
    assert 4 * NWF + 64 <= 4 * NB
    XP = [CS + o for o in OFF]; SP = [CS + 12, R, R + 2, CS + 10]; VO = [R + 4, R + 5, R + 6, R + 7]
    def pre_ops(rd):
        n = RN[rd]; ops = []
        xr = XP[rd]; zr = PB; S = PB + 4; U = PB + 12; TM = PB + 20; vO = VO[rd]; a1, a2 = PB + 24, PB + 25
        ops += [f's_mov_b32 s{sX}, 0'] if n == 8 else [f's_and_b32 s{sX}, s{sW}, 1'] if n == 4 else [f's_lshr_b32 s{sX}, s{sW}, 1']
        ops += [f'v_and_b32 v{a1}, 15, v0', f'v_lshrrev_b32 v{a2}, 4, v0', f'v_lshlrev_b32 v{a2}, 3, v{a2}',
                f'v_mul_u32_u24 v{vO}, 1152, v{a1}', f'v_add_u32 v{vO}, v{vO}, v{a2}']
        ops.append(('waitvm', 'stg'))
        ops += [f'v_lshrrev_b32 v{a1}, 2, v0', f'v_and_b32 v{a2}, 3, v0', f'v_lshlrev_b32 v{a2}, 3, v{a2}', f'v_lshl_add_u32 v{a1}, v{a1}, 6, v{a2}',
                f's_lshl_b32 s{sSpin}, s{sX}, 5', f's_add_u32 s{sSpin}, s{sSpin}, s{sLg[rd]}', f'v_add_u32 v{a1}, s{sSpin}, v{a1}']
        ops.append(('lds', f'ds_read_b64_tr_b16 {vr(zr, 2)}, v{a1} offset:1024', ('z', rd)))
        if n == 8: ops.append(('lds', f'ds_read_b64_tr_b16 {vr(zr+2, 2)}, v{a1} offset:{1024+32}', ('z', rd)))
        ops += [f's_mul_i32 s{sSpin}, s{sX}, {16*1152}', f's_add_u32 s{sSpin}, s{sSpin}, s{sXo}', f'v_add_u32 v{vO}, s{sSpin}, v{vO}',
                f's_lshl_b32 s{sSpin}, s{sPh+rd}, 7', f'v_add_u32 v{vO}, s{sSpin}, v{vO}']
        if n < 8:
            ops += [f's_cmp_eq_u32 s{sX}, 1\ns_cselect_b64 vcc, -1, 0', f'v_cndmask_b32 v{PB+26}, v{ST1}, v{ST1+2}, vcc', f'v_cndmask_b32 v{PB+27}, v{ST1+1}, v{ST1+3}, vcc']
        st = (lambda i: ST1 + 2*(i//4)) if n == 8 else (lambda i: PB + 26)
        if n == 2:
            ops += [('wait', ('z', rd)), f's_bitcmp1_b32 s{sW}, 0\ns_cselect_b64 vcc, -1, 0\ns_cselect_b32 s{sSpin}, 4, 0',
                    f'v_cndmask_b32 v{zr}, v{zr}, v{zr+1}, vcc', f'v_add_u32 v{vO}, s{sSpin}, v{vO}']
        ops += [unp(S+i, xr, i) for i in range(n)]
        ops += [f'v_sub_f32 v{S+i}, v{S+i}, v{st(i)}' for i in range(n)] + rnd(S, n, TM)
        ops += [f'v_mul_f32 v{S+i}, v{S+i}, v{st(i)+1}' for i in range(n)] + rnd(S, n, TM)
        ops.append(('wait', ('z', rd)))
        ops += [unp(U+i, zr, i) for i in range(n)] + [f'v_mul_f32 v{S+i}, v{S+i}, v{U+i}' for i in range(n)] + cvt(SP[rd], S, n)
        return ops
    def cost(op):
        if not isinstance(op, str):
            if op[0] in ('wait', 'waitvm'): return 0.5
            if op[0] == 'lds': return 4 if 'write' in op[1] else 1.2
            return 2
        if op.startswith('v_exp') or op.startswith('v_rcp') or op.startswith('v_sqrt'): return 2
        return op.count('\n') + 1

    def run_main():
        nonlocal NI
        if burst: NI = 0
        seq2 = [(0, p) for p in range(14)] + [(1, p) for p in range(NI)] + [(0, p) for p in range(14, 18)] + [(1, p) for p in range(NI, 18)] + [(c, p) for c in range(2, 9) for p in range(18)]
        NS = N1 + 162
        nm = [2] * N1 + [4] * 162
        F = [[[] for m in range(nm[n])] for n in range(NS)]
        PRE = [[] for n in range(NS)]
        def spread(ops, n0, n1, skip=0):
            gaps = [(n, m) for n in range(n0, n1) for m in range(nm[n])][skip:]
            cap = []
            for (n, m) in gaps:
                base = 6.0 if n < N1 else 2.6
                used = sum(cost(o) for o in F[n][m]) + ((2.6 if n < N1 else 1.0) if m == nm[n] - 1 else 0)
                cap.append(max(0.3, base - used))
            tw = sum(cap); tot = sum(cost(o) for o in ops)
            cum = 0; gi = 0; accw = cap[0]
            for o in ops:
                while gi < len(gaps) - 1 and (cum + cost(o) * 0.5) / max(tot, 1) > accw / tw:
                    gi += 1; accw += cap[gi]
                F[gaps[gi][0]][gaps[gi][1]].append(o)
                cum += cost(o)
        e1late()
        a.wait(vm=('x1', 0), lg_all=True); a('s_barrier')
        if trc is None: a.tr(2)
        XL = 3
        for u in range(XL):
            for Ts in range(2): emit(xrd(2*u, Ts))
        for i in range(12, 18): F[(i-12)//2][i%2] += xd(i)
        F[0][0] += [f's_cmp_lg_u32 s{sW}, 0\ns_cbranch_scc1 P3_nz\ns_atomic_add s{sLo}, s[28:29], s{sHi}\nP3_nz:']
        for c in range(9):
            F[3 + c//4][(c//2)%2] += [f's_mov_b32 s{sTmp2}, {WS_ST2 + c * 16384}', ('vmem', f'buffer_load_dwordx2 {vr(SB[c], 2)}, v{vTmp}, s[16:19], s{sTmp2} offen {LF}', 'stat')]
        for u in range(XL, 18):
            if u % 6 == 0: F[u-XL][0].insert(0, ('barvm', ('x1', u // 6)))
            for Ts in range(2): F[u-XL][Ts].append(xrd(2*u, Ts))
        for u in range(18):
            for Ts in range(2): F[u + 2][Ts].append(xrd(2*u + 1, Ts))
        spread(stats_code(), 12, 18)
        EXB = 14 * 4096
        F[19][1] += [f's_lshl_b32 s{sTmp2}, s{sW}, 12\nv_add_u32 v{T+4}, s{sTmp2}, v{vL16}', f'v_xor_b32 v{T+5}, 4096, v{T+4}']
        for i in range(4): F[20 + i//2][i%2].append(('lds', f'ds_write_b128 v{T+4}, {vr(AC[1]+16+4*i, 4)} offset:{EXB + 1024*i}', 'exw'))
        spread(x1reads(), 18, 24)
        HBAR = 25
        PRE[HBAR] += [('bar',)]
        for i in range(4): F[HBAR + i//2][i%2].append(('lds', f'ds_read_b128 {vr(AC[1]+16+4*i, 4)}, v{T+5} offset:{EXB + 1024*i}', 'exr'))
        spread(csrd(0), HBAR, HBAR + 2)
        slots = [WLB + 4096*i for i in range(19)]
        assert WLB % 256 == 0 and slots[-1] + 4096 <= 163840
        def dma(s, addr):
            c, p = seq2[s]; u = (16 + p) if p < 2 else p - 2
            return [f's_add_u32 m0, s{sM4}, {addr}\ns_add_u32 s{sD}, s{sCh+c}, {u*32*1152}',
                    ('vmem', f'buffer_load_dwordx4 v{vD4}, s[12:15], s{sD} offen {dfl} lds', ('d', s))]
        where = {}
        sx = [stage(r)[0] for r in range(4)] + [[f's_lshl_b32 s{sX}, s{sRow}, 3', f's_add_u32 s{sX}, s{sX}, {WS_ST1}',
               ('vmem', f'buffer_load_dwordx2 {vr(ST1, 2)}, v{vFl}, s[16:19], s{sX} offen {LF}', 'stg'),
               ('vmem', f'buffer_load_dwordx2 {vr(ST1+2, 2)}, v{vFl}, s[16:19], s{sX} offen offset:128 {LF}', 'stg')]]
        zs_ = [stage(r)[1] for r in range(4)]
        zc = N1 - 36
        F[zc-12][0] += [f's_mul_i32 s7, s{sCq}, {FLS}\ns_add_u32 s7, s7, {FL_Z}\ns_cmp_lg_u32 s{sW}, 0\ns_cbranch_scc1 P3_cz\ns_load_dword s4, s[28:29], s7 glc\nP3_cz:']
        PRE[zc] += [('fspin', 576)]
        if burst: pass
        elif stg == 0:
            for i, x in enumerate(sx + zs_): F[N1 + 2 + 3*i][3] += x
        elif stg == 1:
            for i, x in enumerate(sx): F[HBAR + 2 + i][0] += x
            for i, x in enumerate(zs_): F[N1 + 2 + 3*i][3] += x
        else:
            for i, x in enumerate(sx + zs_): F[N1 - 8 + i][0] += x
        for i in range(npf):
            where[i] = slots[i]
            F[N1 - npf - pf0 + pfgap*i - (pfgap-1)*npf][1] += dma(i, slots[i])
        free = slots[npf:]
        pend = []
        nxt = npf
        if burst:
            G0 = 0
            bars = [-LA] + list(range(0, 162 - LA, BAR))
        else:
            G0 = 14 + NI - LA
            bars = sorted(set([-LA] + list(range(G0 % BAR, 162 - LA, BAR))))
        assert G0 in bars
        def nextbar(s): return min([b for b in bars if b >= s] + [10**9])
        B0 = nextbar(0)
        if burst:
            extra = zs_ + [sx[4]] + sx[:4]
            if noex: extra = []
            for p in range(10):
                where[nxt] = p * 4096; extra.append(dma(nxt, where[nxt])); nxt += 1
            for p in range(10, 14): extra.append(hrd(p))
            g = gelu_pk(); seqb = [('bar',)]
            step = len(g) // (len(extra) + 2)
            for i, o in enumerate(g):
                if i % step == 0 and extra: seqb += extra.pop(0)
                seqb.append(o)
            assert not extra
            PRE[N1] += seqb
            for p in range(10, 14): pend.append((0, p * 4096))
        else:
            for p in range(10): pend.append((B0, p * 4096))
            for p in range(10, 14): pend.append((nextbar(max(B0 + 1, p + 1)), p * 4096))
        for p in range(14, 18): pend.append((nextbar(10) if burst else nextbar(14 + NI + p - 14 + 1), p * 4096))
        trd = lambda s: [('lds', f'ds_read_b64_tr_b16 {vr(WF + 4*(s % NWF) + 2*h, 2)}, v{vT4[(where[s] + h*2048) // 0xf000]} offset:{(where[s] + h*2048) % 0xf000}', ('t', s)) for h in range(2)]
        for s in range(-LA, 162):
            n = N1 + s
            if s in bars:
                nb_ = nextbar(s + 1)
                last = min(161, nb_ + LA - 1)
                assert last < nxt, (s, last, nxt)
                if s in (B0, G0): PRE[n] += [('waitvm', ('d', last)), ('bar',)]
                elif nobar: PRE[n] += [('waitvm', ('d', last))]
                else: PRE[n] += [('barvm', ('d', last))]
                free += [ad for (b, ad) in pend if b <= s]; pend = [(b, ad) for (b, ad) in pend if b > s]
                if s == B0 and not burst:
                    for i, p in enumerate(range(10, 14)):
                        for m, o in enumerate(hrd(p)): F[n + i][m].append(o)
                if s == G0:
                    for i, p in enumerate(range(14, 18)):
                        for m, o in enumerate(hrd(p)): F[n + i][m].append(o)
            if s + LA < 162: F[n][0] = trd(s + LA) + F[n][0]
            if s >= 0:
                pend.append((nextbar(s + 1), where[s]))
                cnt = 0
                while free and nxt < 162 and nxt <= s + LEAD and cnt < 2:
                    where[nxt] = free.pop(0)
                    d_ = dma(nxt, where[nxt])
                    if cnt == 0: F[n][1] += d_[:1]; F[n][2] += d_[1:]
                    else: F[n][2] += d_
                    nxt += 1; cnt += 1
                    lastdma = s
        assert B0 <= 10 - 4, B0
        for p in range(10):
            for m, o in enumerate(hrd(p)): F[zc + 2*p + 2 + m//2][m % 2].append(o)
        spread(gelu_blk(0), HBAR + 3, H0 + 36)
        for blk in range(1, 4): spread(gelu_blk(blk), H0 + 36*blk, H0 + 36*(blk+1), skip=3)
        if not burst: spread(gelu_blk(4), N1, N1 + G0, skip=4)
        done = {}
        for s, (c, p) in enumerate(seq2):
            if p == 17: done[c] = s
        spread(out16(0), N1 + done[0] + 1, N1 + done[0] + 6, skip=2)
        spread(out16(1), N1 + max(done[1] + 1, done[0] + 6), N1 + max(done[1] + 1, done[0] + 6) + 5, skip=2)
        for c in range(2, 8): spread(out16(c), N1 + done[c] + 1, N1 + done[c] + 6, skip=2)
        P2 = N1
        for rd in range(0 if nopre else 4): spread(pre_ops(rd), P2 + 18*(pre_at+rd) + 6, P2 + 18*(pre_at+rd) + 18)
        F[P2+18*4+15][3] += signal(3, 0)
        F[P2+a_at-10][3] += poll(sFr)
        F[P2+a_at][3] += ['s_waitcnt lgkmcnt(0)'] + spin(sFr)
        pl = ploads(0, PA, sTmp)
        F[P2+a_at][3] += pl[:1]
        for i in range(8): F[P2+a_at+1+a_gap*i][3] += pl[1+2*i:3+2*i]
        F[P2+18*6+15][3] += signal(5, 1)
        F[P2+b_at-10][3] += [f's_add_u32 s7, s{sFr}, 4'] + poll(7)
        F[P2+b_at][3] += ['s_waitcnt lgkmcnt(0)'] + spin(7)
        pl = ploads(1, PB, sTmp)
        F[P2+b_at][3] += pl[:1]
        for i in range(8): F[P2+b_at+1+i//2][2+i%2] += pl[1+2*i:3+2*i]
        F[NS-s7at][3] += signal(7, 2)
        nld = depth
        for n in range(NS):
            if trc is None:
                if n in (18, 162, 180, 306): a.tr({18: 3, 162: 4, 180: 5, 306: 6}[n])
            elif trn is not None:
                if n in trn: Gen.tr(a, trn.index(n))
            elif n % 18 == 0 and trc <= n // 18 < trc + 10: Gen.tr(a, n // 18 - trc)
            for i_, op in enumerate(PRE[n]):
                if trn is not None and (n, i_ - len(PRE[n])) in trn: Gen.tr(a, trn.index((n, i_ - len(PRE[n]))))
                if trn is not None and (n, i_) in trn: Gen.tr(a, trn.index((n, i_)))
                emit(op)
            if n < N1:
                cnt = 0
                while n >= 6 and nld < min(n + depth + 1, N1) and cnt < 2:
                    for op in ldops(nld): emit(op)
                    nld += 1; cnt += 1
                blk, k = bk(n)
                if n >= 18:
                    if n % 2 == 0: a.wait(vm=('w', n + 1))
                else: a.wait(vm=('w', n))
                if blk <= 1: a.wait(lg=('xo', k))
                acc = AC[(blk + 1) % 2]
                for m in range(nm[n]):
                    d = vr(acc + 16*m, 16)
                    a(f'v_mfma_f32_32x32x16_bf16 {d}, {vr(W + 4*(n % NB), 4)}, {op16(k//2, 8*(k%2) + 4*m)}, {"0" if k == 0 else d}')
                    for op in F[n][m]: emit(op)
            else:
                s = n - N1; c, p = seq2[s]
                a.wait(lg=[('t', s), ('ho', p)])
                for rt in range(4):
                    d = vr(A2[c % 4] + 4*rt, 4)
                    a(f'v_mfma_f32_16x16x32_bf16 {d}, {vr(WF + 4*(s % NWF), 4)}, {op16(p, 4*rt)}, {"0" if p == 0 else d}')
                    for op in F[n][rt]: emit(op)
        a.tr(7)
        PD = AV
        def pk(op, d, s0, s1, n): return [f'{op} {vr(d+2*i, 2)}, {vr(s0+2*i, 2)}, {vr(s1+2*i, 2)}' for i in range(n//2)]
        def accb(d, s, n): return [f'v_dot2c_f32_bf16 v{d+i}, s{sLo if i % 2 == 0 else sHi}, v{s+i//2}' for i in range(n)]
        def fin_ops(rd, buf):
            n = RN[rd]; h = n // 2; B = AC[1]; U = AC[1] + 8; x1r = X1R + OFF[rd]; TM = AV + 16; O = AV + 20 + OFF[rd]; vO = VO[rd]
            ops = [('waitvm', ('p', rd, 0))] + [unp(B+i, buf, i) for i in range(n)]
            for s in range(1, 8):
                ops += [('waitvm', ('p', rd, s))] + accb(B, buf + h*s, n)
            ops += rnd(B, n, TM) + accb(B, x1r, n) + rnd(B, n, TM)
            ops += [f'v_mul_f32 v{U+i}, {fhex(-1.4426950408889634)}, v{B+i}' for i in range(n)]
            ops += [f'v_exp_f32 v{U+i}, v{U+i}' for i in range(n)] + [f'v_add_f32 v{U+i}, 1.0, v{U+i}' for i in range(n)] + [f'v_rcp_f32 v{U+i}, v{U+i}' for i in range(n)]
            ops += pk('v_pk_mul_f32', B, B, U, n) + [unp(U+i, SP[rd], i) for i in range(n)] + rnd(B, n, TM) + pk('v_pk_mul_f32', B, B, U, n) + rnd(B, n, TM) + accb(B, XP[rd], n)
            ops += cvt(O, B, n)
            ops.append(('vmem', f'buffer_store_dwordx2 {vr(O, 2)}, v{vO}, s[8:11], 0 offen' if n > 2 else f'buffer_store_dword v{O}, v{vO}, s[8:11], 0 offen', 'o'))
            if n == 8: ops += [f's_movk_i32 s{sTmp}, {16*1152}', ('vmem', f'buffer_store_dwordx2 {vr(O+2, 2)}, v{vO}, s[8:11], s{sTmp} offen', 'o')]
            return ops
        PC = PB + 16
        fa = fin_ops(0, PA); fb = fin_ops(1, PB); fc = fin_ops(2, PC); fd = fin_ops(3, PD)
        def run(seq):
            for op in seq: emit(op)
        def two(areg, loads, work, tag, post=[]):
            a(f's_waitcnt lgkmcnt(0)\ns_cmp_ge_u32 s4, 8\ns_cbranch_scc0 K3_{tag}2')
            vm0 = list(a.vm)
            run(loads + work + post)
            a(f's_branch K3_{tag}j\nK3_{tag}2:')
            a.vm = vm0
            run(poll(areg) + work + ['s_waitcnt lgkmcnt(0)'] + post + spin(areg) + loads)
            a(f'K3_{tag}j:')
        run(out16(8) + [f's_mov_b32 s{sLo}, 0x3f80', f's_mov_b32 s{sHi}, 0x3f800000', f's_add_u32 s7, s{sFr}, 8', f's_add_u32 s{sD}, s{sFr}, 12'])
        run(fa[:t0] + poll(7) + fa[t0:t1] + signal(8, 3)[:1])
        run(['s_waitcnt lgkmcnt(0)'] + signal(8, 3)[1:] + spin(7) + ploads(2, PC))
        a.tr(8)
        run(fa[t1:] + poll(sD) + fb)
        two(sD, ploads(3, PD), fc[:-1], 'd')
        a.vm = [('p', 3, s) for s in range(8)]
        a.tr(9)
        run(fc[-1:] + fd)
    return dict(e1a=e1a, e1w=e1w, e1b=e1b, e1c=e1c, e2=e2, e2pre=e2pre, emit=emit, main=run_main, W=W, nv=nv, regs=V.names)
```

```python
from common import *
from front import spin as fspin
SPIN_MAX = 200000

def make_p3(a, depth=19, trc=None, LF='sc1', t0=0, t1=100, a_at=10, NI=14, BAR=6, LA=3, LEAD=31, rp4=False, npf=19, stg=0, pfgap=1, pf0=5, nopre=False, nobar=False, sfl='sc1', dfl='', burst=True, pre_at=2, trn=None, pfl='sc1', fast=None, s7at=5, noex=False):
    NB = depth + 2
    V = Regs(4, 254)
    AV = V.alloc('Av', 32, 4)
    AC = [V.alloc('ac0', 32, 4), V.alloc('ac1', 32, 4)]
    W = V.alloc('w', 4 * NB, 4)
    CS = V.alloc('cs', 16, 4); R = V.alloc('r', 8, 4); T = V.alloc('t', 8, 4)
    ST1 = V.alloc('st1', 4, 4); AL = V.alloc('al', 4, 4); X1R = V.alloc('x1r', 10, 2); K1 = V.alloc('k1', 6, 2)
    vL16 = V.alloc('l16'); vW32 = V.alloc('w32'); V.alloc('w32b'); vX = [CS + 12, CS + 13, CS + 14, CS + 15]; vHi = V.alloc('hi'); vH = [V.alloc('h0'), V.alloc('h1')]
    vCS = V.alloc('vcs'); vFl = V.alloc('fl'); vTmp = V.alloc('tmp'); vTmp2 = V.alloc('tmp2')
    vD4 = V.alloc('d4'); vT4 = [V.alloc('t40'), V.alloc('t41'), V.alloc('t42')]
    nv = V.n
    def op16(p, off): return ar(16*p + off, 4) if p < 16 else vr(AV + 16*(p-16) + off, 4)
    CSB = 73728; STG = CSB + 2304; XB = 90112; WLB = STG + 9216 + 768
    sSl, sMt, sRot, sW, sG, sCq, sRow = 20, 21, 22, 23, 24, 25, 26
    sCh, sK = 30, 40
    sB1, sBH = 88, 59
    sPh = 50
    sFw, sFr, sPf, sSpin, sNeed = 55, 56, 57, 58, 53
    sLg = 61
    sLo, sHi = 54, 27
    sSt, sTmp, sTmp2, sX = 60, 64, 65, 66
    sXo, sZo, sM4, sD = 39, 49, 89, 90
    sFast = sG
    N1 = 162
    H0 = 18
    def bk(n): return (0, 2*n) if n < H0 else (1 + (n - H0) // 36, (n - H0) % 36)
    SB = [AC[0] + 2*c for c in range(9)]
    def emit(op):
        if isinstance(op, str): a(op)
        elif op[0] == 'wait': a.wait(lg=op[1])
        elif op[0] == 'waitvm': a.wait(vm=op[1])
        elif op[0] == 'lds': a.lds(op[1], op[2])
        elif op[0] == 'vmem': a.vmem(op[1], op[2])
        elif op[0] == 'fspin': fspin(a, 28, 's7', op[1], first_loaded=True, sleep=8, wg=True)
        elif op[0] == 'bar': a.wait(lg_all=True); a('s_barrier')
        elif op[0] == 'barvm': a.wait(vm=op[1]); a('s_barrier')
        elif op[0] == 'tr': a.tr(op[1])
    def ldops(n):
        if n >= N1: return []
        blk, k = bk(n)
        ops = []
        if k % 8 == 0: ops.append(f's_add_u32 s{sTmp}, s{sBH}, {k*512}' if blk == 0 else f's_add_u32 s{sTmp}, s{sB1}, {(blk-1)*4*36864 + k*512}')
        ops.append(('vmem', f'buffer_load_dwordx4 {vr(W + 4*(n % NB), 4)}, v{vW32 + k%2}, s[16:19], s{sTmp} offen offset:{(k%8)//2*1024} {LF}', ('w', n)))
        return ops
    def physof(dst, add_reg, add_const):
        s = f's_add_u32 s{dst}, s{sRot}, {add_const}\n'
        if add_reg is not None: s += f's_add_u32 s{dst}, s{dst}, s{add_reg}\n'
        return s + f's_cmp_ge_u32 s{dst}, 9\ns_cselect_b32 s{sTmp2}, 9, 0\ns_sub_u32 s{dst}, s{dst}, s{sTmp2}'
    def e1a(pre=False):
        a(f'''
        s_load_dwordx2 s[8:9], s[0:1], 88
        s_load_dwordx2 s[12:13], s[0:1], 80
        {slice_code(sSl, sTmp)}
        s_mul_i32 s7, s{sSl}, {FLS}
        s_add_u32 s7, s7, {FL_W3}
        s_cmp_lg_u32 s{sW}, 0
        s_cbranch_scc1 P3_w3
        s_load_dword s4, s[28:29], s7 glc
        P3_w3:
        {mt_code(sMt, sTmp)}
        v_lshlrev_b32 v{vL16}, 4, v0
        s_mul_i32 s{sTmp}, s{sSl}, {9*73728}
        s_add_u32 s{sTmp}, s{sTmp}, {WS_WP3}
        s_mul_i32 s{sTmp2}, s{sW}, 36864
        s_add_u32 s{sB1}, s{sTmp}, s{sTmp2}
        s_lshr_b32 s{sTmp2}, s{sW}, 1
        s_mul_i32 s{sTmp2}, s{sTmp2}, 36864
        s_add_u32 s{sBH}, s{sTmp}, s{sTmp2}
        s_add_u32 s{sBH}, s{sBH}, {16*36864}
        s_mov_b32 s10, {MAT}
        s_mov_b32 s11, 0x20000
        s_mov_b32 s14, {WBYTES}
        s_mov_b32 s15, 0x20000
        v_and_b32 v3, 15, v0
        v_lshrrev_b32 v1, 5, v0
        v_lshlrev_b32 v1, 8, v1
        v_lshl_add_u32 v{vH[0]}, v3, 4, v1
        v_bfe_u32 v2, v0, 4, 1
        v_mul_u32_u24 v{vW32}, 18432, v2
        v_add_u32 v{vW32}, v{vW32}, v{vH[0]}
        s_and_b32 s{sTmp2}, s{sW}, 1
        s_lshl_b32 s{sTmp2}, s{sTmp2}, 9
        v_add_u32 v{vW32}, s{sTmp2}, v{vW32}
        v_xor_b32 v{vW32+1}, 512, v{vW32}
        v_lshl_add_u32 v{vH[0]}, v2, 10, v{vH[0]}
        v_lshrrev_b32 v1, 4, v0
        v_lshl_add_u32 v1, v1, 2, s{sW}
        v_min_u32 v1, 8, v1
        v_lshlrev_b32 v1, 8, v1
        v_lshl_add_u32 v{vTmp2}, v3, 4, v1
        v_add_u32 v{vFl}, {CSB}, v{vTmp2}''')
    def e1w(loaded=False):
        fspin(a, 28, 's7', 81, sleep=8, wg=True, first_loaded=loaded)
    def e1b():
        ops = [f's_mul_i32 s{sX}, s{sSl}, 2304\ns_add_u32 s{sX}, s{sX}, {WS_CS3}']
        for rb in range(9):
            ops.append(('vmem', f'buffer_load_dwordx4 {vr(AC[0] + 4*rb, 4)}, v{vTmp2}, s[16:19], s{sX} offen {LF}', 'csp'))
            if rb < 8: ops.append(f's_add_u32 s{sX}, s{sX}, {4608*4}')
        for n in range(depth): ops += ldops(n)
        return ops
    def e1c():
        a.wait(vm='csp')
        d = AC[0] + 32
        for rb in range(8):
            for i in range(2): a(f'v_pk_add_f32 {vr(d+2*i, 2)}, {vr(d+2*i, 2)}, {vr(AC[0]+4*rb+2*i, 2)}')
        a.lds(f'ds_write_b128 v{vFl}, {vr(d, 4)}', 'csw')
    def xd(i):
        ops = []
        if i % 4 == 0 and i: ops.append(f's_add_u32 m0, m0, 4096\ns_add_u32 s{sX}, s{sX}, 4096')
        ops.append(('vmem', f'buffer_load_dwordx4 v{vL16}, s[16:19], s{sX} offen offset:{(i%4)*1024} {LF} lds', ('x1', i // 6)))
        return ops
    def e2pre():
        a(f's_mul_i32 s7, s{sMt}, {FLS}\ns_add_u32 s7, s7, {FL_X}\ns_cmp_lg_u32 s{sW}, 0\ns_cbranch_scc1 P3_xp\ns_load_dword s4, s[28:29], s7 glc\nP3_xp:')
    def e2(h=None):
        a(f'''s_mul_i32 s{sTmp2}, s{sW}, 18432
        s_mul_i32 s{sX}, s{sMt}, 73728
        s_add_u32 s{sX}, s{sX}, s{sTmp2}
        s_add_u32 m0, s{sTmp2}, {XB}
        s_add_u32 s{sX}, s{sX}, {WS_X1F}
        s_lshl_b32 s{sTmp2}, s{sMt}, 6
        v_add_u32 v{vTmp}, s{sTmp2}, v0
        v_lshlrev_b32 v{vTmp}, 3, v{vTmp}''')
        fspin(a, 28, 's7', 9, sleep=0, wg=True, first_loaded=True)
        if h: h()
        for i in range(12):
            if i == 6: a('s_barrier')
            for op in xd(i): emit(op)
    def e1late():
        Y = 6
        a(f'''s_mul_i32 s{Y}, s{sMt}, 57
        s_lshr_b32 s{Y}, s{Y}, 9
        s_mul_i32 s{Y}, s{Y}, 9
        s_sub_u32 s{sRot}, s{sMt}, s{Y}
        s_mul_i32 s{Y}, s{sSl}, {576*1152}
        s_mul_i32 s{sTmp2}, s{sW}, {8*1152}
        s_add_u32 s{Y}, s{Y}, s{sTmp2}
        s_mov_b32 s{sTmp2}, s{sRot}''')
        for j in range(9):
            a(f's_lshl_b32 s{sCh+j}, s{sTmp2}, 7\ns_add_u32 s{sCh+j}, s{sCh+j}, s{Y}\ns_lshl_b32 s{sK+j}, s{sTmp2}, 13')
            if j < 8: a(f's_add_u32 s{sTmp2}, s{sTmp2}, 1\ns_cmp_eq_u32 s{sTmp2}, 9\ns_cselect_b32 s{sTmp2}, 0, s{sTmp2}')
        a(physof(sPh, sW, 0)); a(physof(sPh+1, sW, 4)); a(physof(sPh+2, None, 8))
        a(f'''s_lshl_b32 s{sLg}, s{sW}, 10
        s_add_u32 s{sLg}, s{sLg}, {STG - 1024}
        s_add_u32 s{sLg+1}, s{sLg}, 4096
        s_mov_b32 s{sLg+2}, {STG + 8192 - 1024}
        s_and_b32 s{sTmp2}, s{sW}, 1
        s_mul_i32 s{Y}, s{sTmp2}, 36864
        s_add_u32 s{Y}, s{Y}, {XB}
        v_add_u32 v{vX[0]}, s{Y}, v{vW32}
        s_sub_u32 s{Y}, {2*XB + 36864}, s{Y}
        v_add_u32 v{vX[1]}, s{Y}, v{vW32}
        v_xor_b32 v{vX[2]}, 512, v{vX[0]}
        v_xor_b32 v{vX[3]}, 512, v{vX[1]}
        v_add_u32 v{vHi}, 0x10000, v{vL16}
        s_lshl_b32 s{sTmp2}, s{sTmp2}, 11
        s_lshl_b32 s{Y}, s{sW}, 12
        s_add_u32 s{Y}, s{Y}, s{sTmp2}
        v_add_u32 v{vH[0]}, s{Y}, v{vH[0]}
        v_xor_b32 v{vH[1]}, 2048, v{vH[0]}
        s_lshl_b32 s{Y}, s{sW}, 7
        s_add_u32 s{Y}, s{Y}, {CSB}
        v_lshrrev_b32 v1, 5, v0
        v_lshl_add_u32 v{vCS}, v1, 4, s{Y}
        s_mul_i32 s{Y}, s{sMt}, 73728
        s_add_u32 s{sPf}, s{Y}, {WS_PF}
        s_mul_i32 s{sSt}, s{sSl}, {MAT}
        s_add_u32 s{sSt}, s{sSt}, s{sPf}
        s_lshl_b32 s{sM4}, s{sW}, 10
        s_add_u32 s{sSt}, s{sSt}, s{sM4}
        s_lshl_b32 s{Y}, s{sSl}, 10
        s_add_u32 s{sPf}, s{sPf}, s{Y}
        s_lshr_b32 s{sG}, s{sSl}, 2
        s_and_b32 s{sCq}, s{sSl}, 3
        s_lshl_b32 s{sRow}, s{sMt}, 6
        s_lshl_b32 s{Y}, s{sG}, 5
        s_add_u32 s{sRow}, s{sRow}, s{Y}
        s_mul_i32 s{Y}, s{sMt}, {4*FLS}
        s_add_u32 s{Y}, s{Y}, {WS_FL}
        s_mul_i32 s{sFw}, s{sW}, {FLS}
        s_add_u32 s{sFw}, s{sFw}, s{Y}
        s_mul_i32 s{sFr}, s{sCq}, {FLS}
        s_add_u32 s{sFr}, s{sFr}, s{Y}
        s_cmp_eq_u32 s{sW}, 3
        s_cselect_b32 s{sNeed}, 8, 4
        s_add_u32 s{sNeed}, s{sNeed}, s{sFr}
        v_lshrrev_b32 v1, 3, v0
        v_and_b32 v2, 6, v1
        v_and_b32 v3, 7, v0
        v_xor_b32 v2, v2, v3
        v_mul_u32_u24 v{vD4}, 1152, v1
        v_lshl_add_u32 v{vD4}, v2, 4, v{vD4}
        v_lshrrev_b32 v1, 2, v0
        v_bfe_u32 v2, v1, 1, 2
        v_xor_b32 v2, s{sW}, v2
        v_lshlrev_b32 v2, 5, v2
        v_lshl_add_u32 v2, v1, 7, v2
        v_and_b32 v3, 3, v0
        v_lshl_add_u32 v{vT4[0]}, v3, 3, v2
        v_add_u32 v{vT4[1]}, 0xf000, v{vT4[0]}
        v_add_u32 v{vT4[2]}, 0x1e000, v{vT4[0]}''')
    def xrd(k, Ts): return ('lds', f'ds_read_b128 {op16(k//2, 8*(k%2) + 4*Ts)}, v{vX[Ts + 2*(k%2)]} offset:{k//2*1024}', ('xo', k))
    def hrd(p):
        ops = []
        for rt in range(4):
            o = p * 4096 + rt * 1024
            ops.append(('lds', f'ds_read_b128 {op16(p, 4*rt)}, v{vL16 if o < 65536 else vHi} offset:{o if o < 65536 else o - 65536}', ('ho', p)))
        return ops
    def stats_code():
        s0 = SB[0]; A1 = T; A2 = T + 1
        ops = [f'v_and_b32 v{A2}, 15, v0', f'v_lshlrev_b32 v{A2}, 2, v{A2}', f'v_and_b32 v{A1}, 31, v0', f's_and_b32 s{sTmp2}, s{sW}, 1\ns_lshl_b32 s{sTmp2}, s{sTmp2}, 7',
               f'v_lshl_add_u32 v{A1}, v{A1}, 2, s{sTmp2}', f'v_xor_b32 v{T+2}, 128, v{A1}', ('waitvm', 'stat')]
        for c in range(1, 9):
            ops += [f'v_add_f32 v{s0}, v{s0}, v{SB[c]}', f'v_add_f32 v{s0+1}, v{s0+1}, v{SB[c]+1}']
        ops += [f'v_mul_f32 v{s0}, {fhex(1/576)}, v{s0}', f'v_mul_f32 v{s0+1}, {fhex(1/576)}, v{s0+1}', f'v_fma_f32 v{s0+1}, -v{s0}, v{s0}, v{s0+1}',
                f'v_max_f32 v{s0+1}, 0, v{s0+1}', f'v_cvt_pk_bf16_f32 v{s0+2}, v{s0}, v{s0+1}', f'v_and_b32 v{s0+1}, 0xffff0000, v{s0+2}', f'v_lshlrev_b32 v{s0}, 16, v{s0+2}',
                f'v_add_f32 v{s0+1}, {fhex(1e-5)}, v{s0+1}', f'v_cvt_pk_bf16_f32 v{s0+1}, v{s0+1}, v{s0+1}', f'v_lshlrev_b32 v{s0+1}, 16, v{s0+1}', f'v_sqrt_f32 v{s0+1}, v{s0+1}',
                f'v_sub_f32 v{R+1}, 0, v{s0}',
                f'v_cvt_pk_bf16_f32 v{s0+1}, v{s0+1}, v{s0+1}', f'v_lshlrev_b32 v{s0+1}, 16, v{s0+1}', f'v_rcp_f32 v{R}, v{s0+1}', 's_nop 0',
                f'v_mul_f32 v{R+2}, {fhex(GELU_C0)}, v{R}', f'v_mul_f32 v{R+3}, v{R}, v{R}', f'v_mul_f32 v{R+3}, v{R+3}, v{R+2}', f'v_mul_f32 v{R+3}, {fhex(0.044715)}, v{R+3}']
        for Ts in range(2):
            for i in range(3): ops.append(('lds', f'ds_bpermute_b32 v{K1+3*Ts+i}, v{A1 if Ts == 0 else T+2}, v{R+1+i}', 'ab'))
        for rt in range(4): ops.append(('lds', f'ds_bpermute_b32 v{AL+rt}, v{A2}, v{R} offset:{64*rt}', 'ab'))
        return ops
    def csrd(blk):
        if blk == 0:
            pre = [f's_lshr_b32 s{sTmp2}, s{sW}, 1\ns_sub_u32 s{sTmp2}, s{sTmp2}, s{sW}\ns_lshl_b32 s{sTmp2}, s{sTmp2}, 7', f'v_add_u32 v{T+3}, s{sTmp2}, v{vCS}']
            return pre + [('lds', f'ds_read_b128 {vr(CS+4*g, 4)}, v{T+3} offset:{2048 + 32*g}', ('cs', 0)) for g in range(4)]
        return [('lds', f'ds_read_b128 {vr(CS+4*g, 4)}, v{vCS} offset:{(blk-1)*512 + 32*g}', ('cs', blk)) for g in range(4)]
    def gelu_blk(blk):
        acc = AC[(blk + 1) % 2]; nT = 1 if blk == 0 else 2
        E = [('wait', [('cs', blk), 'ab', 'exr'])]
        if blk == 0: E += [f'v_add_f32 v{acc+i}, v{acc+i}, v{acc+16+i}' for i in range(16)]
        for Ts in range(nT):
            E += [f'v_fmac_f32 v{acc+16*Ts+i}, v{CS+i}, v{K1+3*Ts}' for i in range(16)]
        if blk < 4: E += csrd(blk + 1)
        if blk == 0: E += [f's_lshr_b32 s{sTmp2}, s{sW}, 1\ns_sub_u32 s{sTmp2}, s{sTmp2}, s{sW}\ns_lshl_b32 s{sTmp2}, s{sTmp2}, 12', f'v_add_u32 v{acc+16}, s{sTmp2}, v{vH[0]}']
        j = 0
        for Ts in range(nT):
            for g in (0, 2, 1, 3):
                k = acc + 16*Ts + 4*g; r = R + 4*(j & 1); j += 1
                k0, k1 = K1 + 3*Ts + 1, K1 + 3*Ts + 2
                st = [lambda i: f'v_mul_f32 v{r+i}, v{k+i}, v{k+i}', lambda i: f'v_fma_f32 v{r+i}, v{r+i}, v{k1}, v{k0}', lambda i: f'v_mul_f32 v{r+i}, v{r+i}, v{k+i}',
                      lambda i: f'v_exp_f32 v{r+i}, v{r+i}', lambda i: f'v_add_f32 v{r+i}, 1.0, v{r+i}', lambda i: f'v_rcp_f32 v{r+i}, v{r+i}', lambda i: f'v_mul_f32 v{k+i}, v{k+i}, v{r+i}']
                E += [f(i) for f in st for i in range(4)]
                t = T + 4*(g & 1) + 2*(g >> 1)
                E += [f'v_cvt_pk_bf16_f32 v{t}, v{k}, v{k+1}', f'v_cvt_pk_bf16_f32 v{t+1}, v{k+2}, v{k+3}']
                if g >= 2:
                    if blk == 0: E.append(('lds', f'ds_write_b128 v{acc+16}, {vr(T + 4*(g&1), 4)} offset:{(g&1)*512}', 'hw'))
                    else: E.append(('lds', f'ds_write_b128 v{vH[Ts]}, {vr(T + 4*(g&1), 4)} offset:{(2 + 4*(blk-1))*4096 + (g&1)*512}', 'hw'))
        return E
    def bsel(r):
        return r - (r & 1), r & 1
    def gelu_pk():
        acc = AC[1]; TT = AC[0]
        E = [('wait', ('cs', 4))]
        for Ts in range(2):
            pn, sn = bsel(K1+3*Ts)
            E += [f'v_pk_fma_f32 {vr(acc+16*Ts+2*i, 2)}, {vr(CS+2*i, 2)}, {vr(pn, 2)}, {vr(acc+16*Ts+2*i, 2)} op_sel:[0,{sn},0] op_sel_hi:[1,{sn},1]' for i in range(8)]
        for Ts in range(2):
            A_ = acc + 16*Ts; T_ = TT + 16*Ts
            (pn, sn), (p0_, s0_), (p1_, s1_) = bsel(K1+3*Ts), bsel(K1+3*Ts+1), bsel(K1+3*Ts+2)
            P = lambda r: vr(r, 2)
            E += [f'v_pk_mul_f32 {P(T_+2*i)}, {P(A_+2*i)}, {P(A_+2*i)}' for i in range(8)]
            E += [f'v_pk_fma_f32 {P(T_+2*i)}, {P(T_+2*i)}, {P(p1_)}, {P(p0_)} op_sel:[0,{s1_},{s0_}] op_sel_hi:[1,{s1_},{s0_}]' for i in range(8)]
            E += [f'v_pk_mul_f32 {P(T_+2*i)}, {P(T_+2*i)}, {P(A_+2*i)}' for i in range(8)]
            E += [f'v_exp_f32 v{T_+i}, v{T_+i}' for i in range(16)]
            E += [f'v_pk_add_f32 {P(T_+2*i)}, {P(T_+2*i)}, 1.0 op_sel_hi:[1,0]' for i in range(8)]
            E += [f'v_rcp_f32 v{T_+i}, v{T_+i}' for i in range(16)]
            E += [f'v_pk_mul_f32 {P(A_+2*i)}, {P(A_+2*i)}, {P(T_+2*i)}' for i in range(8)]
            O = T if Ts == 0 else R
            for g in (0, 2, 1, 3):
                k = A_ + 4*g; t = O + 4*(g & 1) + 2*(g >> 1)
                E += [f'v_cvt_pk_bf16_f32 v{t}, v{k}, v{k+1}', f'v_cvt_pk_bf16_f32 v{t+1}, v{k+2}, v{k+3}']
                if g >= 2: E.append(('lds', f'ds_write_b128 v{vH[Ts]}, {vr(O + 4*(g&1), 4)} offset:{14*4096 + (g&1)*512}', 'hw'))
        return E
    A2 = [AC[0], AC[0] + 16, AC[1], AC[1] + 16]
    def out16(cj):
        acc = A2[cj % 4]
        ops = [f's_add_u32 s{sTmp2}, s{sK+cj}, s{sSt}']
        for g in range(2):
            b = acc + 8 * g
            for i in range(8): ops.append(f'v_mul_f32 v{b+i}, v{b+i}, v{AL + 2*g + i//4}')
            for i in range(4): ops.append(f'v_cvt_pk_bf16_f32 v{T+4*g+i}, v{b+2*i}, v{b+2*i+1}')
            if g == 1: ops.append(f's_add_u32 s{sTmp2}, s{sTmp2}, 4096')
            st_ = f'buffer_store_dwordx4 {vr(T+4*g, 4)}, v{vL16}, s[16:19], s{sTmp2} offen '
            if fast is None: ops.append(('vmem', st_ + sfl, ('store', cj)))
            else:
                l1 = a.newlabel('FS'); l2 = a.newlabel('FE')
                ops.append(('vmem', f's_cmp_eq_u32 s{sFast}, {g}\ns_cbranch_scc1 {l1}\n{st_}{sfl}\ns_branch {l2}\n{l1}:\n{st_}{fast}\n{l2}:', ('store', cj)))
        return ops
    def signal(cj, r): return [('waitvm', ('store', cj)), f's_mov_b32 s5, 1\ns_add_u32 s6, s{sFw}, {4*r}\ns_atomic_add s5, s[28:29], s6']
    def poll(areg): return [f's_load_dword s4, s[28:29], s{areg} glc']
    def spin(areg):
        l = a.newlabel('K3_sp'); l2 = a.newlabel('K3_ok')
        return [f's_mov_b32 s{sSpin}, 0\n{l}:\ns_cmp_ge_u32 s4, 8\ns_cbranch_scc1 {l2}\ns_add_u32 s{sSpin}, s{sSpin}, 1\ns_cmp_gt_u32 s{sSpin}, {SPIN_MAX}\ns_cbranch_scc1 {l2}\n'
                f's_load_dword s4, s[28:29], s{areg} glc\ns_waitcnt lgkmcnt(0)\ns_branch {l}\n{l2}:']
    RN = [8, 8, 2]
    def ploads(rd, buf):
        n = RN[rd] // 2
        ops = [f's_lshl_b32 s{sTmp2}, s{sPh+rd}, 13', f's_add_u32 s{sTmp2}, s{sTmp2}, s{sPf}']
        if n == 1: ops += [f's_lshl_b32 s{sX}, s{sW}, 2', f's_add_u32 s{sTmp2}, s{sTmp2}, s{sX}']
        mn = {4: 'buffer_load_dwordx4', 1: 'buffer_load_dword'}[n]
        for s in range(8):
            ops.append(('vmem', f'{mn} {vr(buf + n*s, n)}, v{vL16}, s[16:19], s{sTmp2} offen {pfl}', ('p', rd, s)))
            if s < 7: ops.append(f's_add_u32 s{sTmp2}, s{sTmp2}, {MAT}')
        return ops
    def stage(rd):
        x = [f's_lshl_b32 s{sX}, s{sPh+rd}, 13\ns_add_u32 s{sX}, s{sX}, s{sPf}\ns_add_u32 s{sX}, s{sX}, {WS_XP - WS_PF}' + (f'\ns_lshl_b32 s6, s{sW}, 2\ns_add_u32 s{sX}, s{sX}, s6' if rd == 2 else ''),
             ('vmem', f'buffer_load_dwordx4 {vr(XP[rd], 4)}, v{vL16}, s[16:19], s{sX} offen {LF}' if rd < 2 else f'buffer_load_dword v{XP[rd]}, v{vL16}, s[16:19], s{sX} offen {LF}', 'stg')]
        z = [f's_lshl_b32 s{sX}, s{sPh+rd}, 18', f's_add_u32 m0, s{sLg+rd}, 1024', f's_add_u32 s{sX}, s{sX}, s{sZo}',
             ('vmem', f'buffer_load_dwordx4 v{vL16}, s[16:19], s{sX} offen {LF} lds', 'stg')]
        return [x, z]
    def x1reads():
        ops = [f's_mul_i32 s{sSpin}, s{sG}, 36864\ns_lshr_b32 s{sX}, s{sCq}, 1\ns_lshl_b32 s{sX}, s{sX}, 10\ns_add_u32 s{sSpin}, s{sSpin}, s{sX}',
               f's_and_b32 s{sX}, s{sCq}, 1\ns_lshl_b32 s{sX}, s{sX}, 3\ns_add_u32 s{sSpin}, s{sSpin}, s{sX}\ns_add_u32 s{sSpin}, s{sSpin}, {XB}']
        for rd in range(3):
            ops += [f's_lshl_b32 s{sX}, s{sPh+rd}, 11\ns_add_u32 s{sX}, s{sX}, s{sSpin}']
            if rd == 2:
                ops += [f's_lshr_b32 s6, s{sW}, 1\ns_mul_i32 s6, s6, 18432\ns_add_u32 s{sX}, s{sX}, s6', f's_and_b32 s6, s{sW}, 1\ns_lshl_b32 s6, s6, 2\ns_add_u32 s{sX}, s{sX}, s6']
            ops.append(f'v_add_u32 v{vTmp}, s{sX}, v{vL16}')
            ops.append(('lds', f'ds_read_b64 {vr(X1R + 4*rd, 2)}, v{vTmp}' if rd < 2 else f'ds_read_b32 v{X1R + 8}, v{vTmp}', 'x1r'))
            if rd < 2: ops.append(('lds', f'ds_read_b64 {vr(X1R + 4*rd + 2, 2)}, v{vTmp} offset:18432', 'x1r'))
        ops += [f's_mul_i32 s{sXo}, s{sRow}, 1152\ns_lshl_b32 s{sX}, s{sCq}, 5\ns_add_u32 s{sXo}, s{sXo}, s{sX}',
                f's_lshl_b32 s{sZo}, s{sCq}, 16\ns_lshl_b32 s{sX}, s{sRow}, 5\ns_add_u32 s{sZo}, s{sZo}, s{sX}\ns_add_u32 s{sZo}, s{sZo}, {WS_ZT}',
                f'v_and_b32 v{vFl}, 15, v0', f'v_lshlrev_b32 v{vFl}, 3, v{vFl}']
        return ops
    def unp(d, s, i): return f'v_lshlrev_b32 v{d}, 16, v{s+i//2}' if i % 2 == 0 else f'v_and_b32 v{d}, 0xffff0000, v{s+i//2}'
    def cvt(d, r, n): return [f'v_cvt_pk_bf16_f32 v{d+i}, v{r+2*i}, v{r+2*i+1}' for i in range(n//2)]
    def rnd(r, n, tmp): return cvt(tmp, r, n) + [unp(r+i, tmp, i) for i in range(n)]
    NWF = LA + 2
    late = {(n % NB) for n in range(N1 - LA - 2, N1)}
    st0 = [i for i in range(NB - NWF + 1) if all((i + k) not in late for k in range(NWF))]
    cand = [i for i in st0 if i == 0 or i + NWF == NB]
    assert cand, (late, st0)
    WF = W + 4 * cand[0]
    PA = W + 4 * NWF if cand[0] == 0 else W
    PB = PA + 32
    assert 4 * NWF + 64 <= 4 * NB
    XP = [CS, CS + 4, CS + 8]; SP = [CS + 12, R, CS + 10]; VO = [R + 4, R + 5, R + 6]
    def pre_ops(rd):
        n = RN[rd]; ops = []
        xr = XP[rd]; zr = PA; S = PA + 4; U = PA + 12; TM = PA + 20; vO = VO[rd]; a1, a2 = PA + 24, PA + 25
        ops += [f's_mov_b32 s{sX}, 0'] if n == 8 else [f's_lshr_b32 s{sX}, s{sW}, 1']
        ops += [f'v_and_b32 v{a1}, 15, v0', f'v_lshrrev_b32 v{a2}, 4, v0', f'v_lshlrev_b32 v{a2}, 3, v{a2}',
                f'v_mul_u32_u24 v{vO}, 1152, v{a1}', f'v_add_u32 v{vO}, v{vO}, v{a2}']
        ops.append(('waitvm', 'stg'))
        ops += [f'v_lshrrev_b32 v{a1}, 2, v0', f'v_and_b32 v{a2}, 3, v0', f'v_lshlrev_b32 v{a2}, 3, v{a2}', f'v_lshl_add_u32 v{a1}, v{a1}, 6, v{a2}',
                f's_lshl_b32 s{sSpin}, s{sX}, 5', f's_add_u32 s{sSpin}, s{sSpin}, s{sLg+rd}', f'v_add_u32 v{a1}, s{sSpin}, v{a1}']
        ops.append(('lds', f'ds_read_b64_tr_b16 {vr(zr, 2)}, v{a1} offset:1024', ('z', rd)))
        if n == 8: ops.append(('lds', f'ds_read_b64_tr_b16 {vr(zr+2, 2)}, v{a1} offset:{1024+32}', ('z', rd)))
        ops += [f's_mul_i32 s{sSpin}, s{sX}, {16*1152}', f's_add_u32 s{sSpin}, s{sSpin}, s{sXo}', f'v_add_u32 v{vO}, s{sSpin}, v{vO}',
                f's_lshl_b32 s{sSpin}, s{sPh+rd}, 7', f'v_add_u32 v{vO}, s{sSpin}, v{vO}']
        if n < 8:
            ops += [f's_cmp_eq_u32 s{sX}, 1\ns_cselect_b64 vcc, -1, 0', f'v_cndmask_b32 v{ST1}, v{ST1}, v{ST1+2}, vcc', f'v_cndmask_b32 v{ST1+1}, v{ST1+1}, v{ST1+3}, vcc']
        st = lambda i: ST1 + 2*(i//4)
        if n == 2:
            ops += [('wait', ('z', rd)), f's_bitcmp1_b32 s{sW}, 0\ns_cselect_b64 vcc, -1, 0\ns_cselect_b32 s{sSpin}, 4, 0',
                    f'v_cndmask_b32 v{zr}, v{zr}, v{zr+1}, vcc', f'v_add_u32 v{vO}, s{sSpin}, v{vO}']
        ops += [unp(S+i, xr, i) for i in range(n)]
        ops += [f'v_sub_f32 v{S+i}, v{S+i}, v{st(i)}' for i in range(n)] + rnd(S, n, TM)
        ops += [f'v_mul_f32 v{S+i}, v{S+i}, v{st(i)+1}' for i in range(n)] + rnd(S, n, TM)
        ops.append(('wait', ('z', rd)))
        ops += [unp(U+i, zr, i) for i in range(n)] + [f'v_mul_f32 v{S+i}, v{S+i}, v{U+i}' for i in range(n)] + cvt(SP[rd], S, n)
        return ops
    def cost(op):
        if not isinstance(op, str):
            if op[0] in ('wait', 'waitvm'): return 0.5
            if op[0] == 'lds': return 4 if 'write' in op[1] else 1.2
            return 2
        if op.startswith('v_exp') or op.startswith('v_rcp') or op.startswith('v_sqrt'): return 2
        return op.count('\n') + 1

    def run_main():
        nonlocal NI
        if burst: NI = 0
        seq2 = [(0, p) for p in range(14)] + [(1, p) for p in range(NI)] + [(0, p) for p in range(14, 18)] + [(1, p) for p in range(NI, 18)] + [(c, p) for c in range(2, 9) for p in range(18)]
        NS = N1 + 162
        nm = [2] * N1 + [4] * 162
        F = [[[] for m in range(nm[n])] for n in range(NS)]
        PRE = [[] for n in range(NS)]
        def spread(ops, n0, n1, skip=0):
            gaps = [(n, m) for n in range(n0, n1) for m in range(nm[n])][skip:]
            cap = []
            for (n, m) in gaps:
                base = 6.0 if n < N1 else 2.6
                used = sum(cost(o) for o in F[n][m]) + ((2.6 if n < N1 else 1.0) if m == nm[n] - 1 else 0)
                cap.append(max(0.3, base - used))
            tw = sum(cap); tot = sum(cost(o) for o in ops)
            cum = 0; gi = 0; accw = cap[0]
            for o in ops:
                while gi < len(gaps) - 1 and (cum + cost(o) * 0.5) / max(tot, 1) > accw / tw:
                    gi += 1; accw += cap[gi]
                F[gaps[gi][0]][gaps[gi][1]].append(o)
                cum += cost(o)
        e1late()
        a.wait(vm=('x1', 0), lg_all=True); a('s_barrier')
        if trc is None: a.tr(2)
        XL = 3
        for u in range(XL):
            for Ts in range(2): emit(xrd(2*u, Ts))
        for i in range(12, 18): F[(i-12)//2][i%2] += xd(i)
        F[0][0] += [f's_cmp_lg_u32 s{sW}, 0\ns_cbranch_scc1 P3_nz\ns_atomic_add s{sLo}, s[28:29], s{sHi}\nP3_nz:']
        for c in range(9):
            F[3 + c//4][(c//2)%2] += [f's_mov_b32 s{sTmp2}, {WS_ST2 + c * 16384}', ('vmem', f'buffer_load_dwordx2 {vr(SB[c], 2)}, v{vTmp}, s[16:19], s{sTmp2} offen {LF}', 'stat')]
        for u in range(XL, 18):
            if u % 6 == 0: F[u-XL][0].insert(0, ('barvm', ('x1', u // 6)))
            for Ts in range(2): F[u-XL][Ts].append(xrd(2*u, Ts))
        for u in range(18):
            for Ts in range(2): F[u + 2][Ts].append(xrd(2*u + 1, Ts))
        spread(stats_code(), 12, 18)
        EXB = 14 * 4096
        F[19][1] += [f's_lshl_b32 s{sTmp2}, s{sW}, 12\nv_add_u32 v{T+4}, s{sTmp2}, v{vL16}', f'v_xor_b32 v{T+5}, 4096, v{T+4}']
        for i in range(4): F[20 + i//2][i%2].append(('lds', f'ds_write_b128 v{T+4}, {vr(AC[1]+16+4*i, 4)} offset:{EXB + 1024*i}', 'exw'))
        spread(x1reads(), 18, 24)
        HBAR = 25
        PRE[HBAR] += [('bar',)]
        for i in range(4): F[HBAR + i//2][i%2].append(('lds', f'ds_read_b128 {vr(AC[1]+16+4*i, 4)}, v{T+5} offset:{EXB + 1024*i}', 'exr'))
        spread(csrd(0), HBAR, HBAR + 2)
        slots = [WLB + 4096*i for i in range(19)]
        assert WLB % 256 == 0 and slots[-1] + 4096 <= 163840
        def dma(s, addr):
            c, p = seq2[s]; u = (16 + p) if p < 2 else p - 2
            return [f's_add_u32 m0, s{sM4}, {addr}\ns_add_u32 s{sD}, s{sCh+c}, {u*32*1152}',
                    ('vmem', f'buffer_load_dwordx4 v{vD4}, s[12:15], s{sD} offen {dfl} lds', ('d', s))]
        where = {}
        sx = [stage(r)[0] for r in range(3)] + [[f's_lshl_b32 s{sX}, s{sRow}, 3', f's_add_u32 s{sX}, s{sX}, {WS_ST1}',
               ('vmem', f'buffer_load_dwordx2 {vr(ST1, 2)}, v{vFl}, s[16:19], s{sX} offen {LF}', 'stg'),
               ('vmem', f'buffer_load_dwordx2 {vr(ST1+2, 2)}, v{vFl}, s[16:19], s{sX} offen offset:128 {LF}', 'stg')]]
        zs_ = [stage(r)[1] for r in range(3)]
        zc = N1 - 36
        F[zc-12][0] += [f's_mul_i32 s7, s{sCq}, {FLS}\ns_add_u32 s7, s7, {FL_Z}\ns_cmp_lg_u32 s{sW}, 0\ns_cbranch_scc1 P3_cz\ns_load_dword s4, s[28:29], s7 glc\nP3_cz:']
        PRE[zc] += [('fspin', 576)]
        if burst: pass
        elif stg == 0:
            for i, x in enumerate(sx + zs_): F[N1 + 2 + 3*i][3] += x
        elif stg == 1:
            for i, x in enumerate(sx): F[HBAR + 2 + i][0] += x
            for i, x in enumerate(zs_): F[N1 + 2 + 3*i][3] += x
        else:
            for i, x in enumerate(sx + zs_): F[N1 - 8 + i][0] += x
        for i in range(npf):
            where[i] = slots[i]
            F[N1 - npf - pf0 + pfgap*i - (pfgap-1)*npf][1] += dma(i, slots[i])
        free = slots[npf:]
        pend = []
        nxt = npf
        if burst:
            G0 = 0
            bars = [-LA] + list(range(0, 162 - LA, BAR))
        else:
            G0 = 14 + NI - LA
            bars = sorted(set([-LA] + list(range(G0 % BAR, 162 - LA, BAR))))
        assert G0 in bars
        def nextbar(s): return min([b for b in bars if b >= s] + [10**9])
        B0 = nextbar(0)
        if burst:
            extra = zs_ + [sx[3]] + sx[:3]
            if noex: extra = []
            for p in range(10):
                where[nxt] = p * 4096; extra.append(dma(nxt, where[nxt])); nxt += 1
            for p in range(10, 14): extra.append(hrd(p))
            g = gelu_pk(); seqb = [('bar',)]
            step = len(g) // (len(extra) + 2)
            for i, o in enumerate(g):
                if i % step == 0 and extra: seqb += extra.pop(0)
                seqb.append(o)
            assert not extra
            PRE[N1] += seqb
            for p in range(10, 14): pend.append((0, p * 4096))
        else:
            for p in range(10): pend.append((B0, p * 4096))
            for p in range(10, 14): pend.append((nextbar(max(B0 + 1, p + 1)), p * 4096))
        for p in range(14, 18): pend.append((nextbar(10) if burst else nextbar(14 + NI + p - 14 + 1), p * 4096))
        trd = lambda s: [('lds', f'ds_read_b64_tr_b16 {vr(WF + 4*(s % NWF) + 2*h, 2)}, v{vT4[(where[s] + h*2048) // 0xf000]} offset:{(where[s] + h*2048) % 0xf000}', ('t', s)) for h in range(2)]
        for s in range(-LA, 162):
            n = N1 + s
            if s in bars:
                nb_ = nextbar(s + 1)
                last = min(161, nb_ + LA - 1)
                assert last < nxt, (s, last, nxt)
                if s in (B0, G0): PRE[n] += [('waitvm', ('d', last)), ('bar',)]
                elif nobar: PRE[n] += [('waitvm', ('d', last))]
                else: PRE[n] += [('barvm', ('d', last))]
                free += [ad for (b, ad) in pend if b <= s]; pend = [(b, ad) for (b, ad) in pend if b > s]
                if s == B0 and not burst:
                    for i, p in enumerate(range(10, 14)):
                        for m, o in enumerate(hrd(p)): F[n + i][m].append(o)
                if s == G0:
                    for i, p in enumerate(range(14, 18)):
                        for m, o in enumerate(hrd(p)): F[n + i][m].append(o)
            if s + LA < 162: F[n][0] = trd(s + LA) + F[n][0]
            if s >= 0:
                pend.append((nextbar(s + 1), where[s]))
                cnt = 0
                while free and nxt < 162 and nxt <= s + LEAD and cnt < 2:
                    where[nxt] = free.pop(0)
                    d_ = dma(nxt, where[nxt])
                    if cnt == 0: F[n][1] += d_[:1]; F[n][2] += d_[1:]
                    else: F[n][2] += d_
                    nxt += 1; cnt += 1
                    lastdma = s
        assert B0 <= 10 - 4, B0
        for p in range(10):
            for m, o in enumerate(hrd(p)): F[zc + 2*p + 2 + m//2][m % 2].append(o)
        spread(gelu_blk(0), HBAR + 3, H0 + 36)
        for blk in range(1, 4): spread(gelu_blk(blk), H0 + 36*blk, H0 + 36*(blk+1), skip=3)
        if not burst: spread(gelu_blk(4), N1, N1 + G0, skip=4)
        done = {}
        for s, (c, p) in enumerate(seq2):
            if p == 17: done[c] = s
        spread(out16(0), N1 + done[0] + 1, N1 + done[0] + 6, skip=2)
        spread(out16(1), N1 + max(done[1] + 1, done[0] + 6), N1 + max(done[1] + 1, done[0] + 6) + 5, skip=2)
        for c in range(2, 8): spread(out16(c), N1 + done[c] + 1, N1 + done[c] + 6, skip=2)
        P2 = N1
        for rd in range(0 if nopre else 3): spread(pre_ops(rd), P2 + 18*(pre_at+rd) + 6, P2 + 18*(pre_at+rd) + 18)
        F[P2+18*5+2][3] += signal(3, 0)
        F[P2+18*7+a_at-10][3] += poll(sFr)
        F[P2+18*7+a_at][3] += ['s_waitcnt lgkmcnt(0)'] + spin(sFr)
        spread(ploads(0, PA), P2+18*7+a_at+1, P2+18*7+a_at+4)
        F[P2+18*7+15][3] += signal(6, 1)
        F[NS-s7at][3] += signal(7, 2) + poll(sNeed)
        nld = depth
        for n in range(NS):
            if trc is None:
                if n in (18, 162, 180, 306): a.tr({18: 3, 162: 4, 180: 5, 306: 6}[n])
            elif trn is not None:
                if n in trn: Gen.tr(a, trn.index(n))
            elif n % 18 == 0 and trc <= n // 18 < trc + 10: Gen.tr(a, n // 18 - trc)
            for i_, op in enumerate(PRE[n]):
                if trn is not None and (n, i_ - len(PRE[n])) in trn: Gen.tr(a, trn.index((n, i_ - len(PRE[n]))))
                if trn is not None and (n, i_) in trn: Gen.tr(a, trn.index((n, i_)))
                emit(op)
            if n < N1:
                cnt = 0
                while n >= 6 and nld < min(n + depth + 1, N1) and cnt < 2:
                    for op in ldops(nld): emit(op)
                    nld += 1; cnt += 1
                blk, k = bk(n)
                if n >= 18:
                    if n % 2 == 0: a.wait(vm=('w', n + 1))
                else: a.wait(vm=('w', n))
                if blk <= 1: a.wait(lg=('xo', k))
                acc = AC[(blk + 1) % 2]
                for m in range(nm[n]):
                    d = vr(acc + 16*m, 16)
                    a(f'v_mfma_f32_32x32x16_bf16 {d}, {vr(W + 4*(n % NB), 4)}, {op16(k//2, 8*(k%2) + 4*m)}, {"0" if k == 0 else d}')
                    for op in F[n][m]: emit(op)
            else:
                s = n - N1; c, p = seq2[s]
                a.wait(lg=[('t', s), ('ho', p)])
                for rt in range(4):
                    d = vr(A2[c % 4] + 4*rt, 4)
                    a(f'v_mfma_f32_16x16x32_bf16 {d}, {vr(WF + 4*(s % NWF), 4)}, {op16(p, 4*rt)}, {"0" if p == 0 else d}')
                    for op in F[n][rt]: emit(op)
        a.tr(7)
        PD = AV
        def pk(op, d, s0, s1, n): return [f'{op} {vr(d+2*i, 2)}, {vr(s0+2*i, 2)}, {vr(s1+2*i, 2)}' for i in range(n//2)]
        def accb(d, s, n): return [f'v_dot2c_f32_bf16 v{d+i}, s{sLo if i % 2 == 0 else sHi}, v{s+i//2}' for i in range(n)]
        def fin_ops(rd, buf):
            n = RN[rd]; h = n // 2; B = AC[1]; U = AC[1] + 8; x1r = X1R + 4 * rd; TM = AV + 16; O = AV + 20 + 4 * rd; vO = VO[rd]
            ops = [('waitvm', ('p', rd, 0))] + [unp(B+i, buf, i) for i in range(n)]
            for s in range(1, 8):
                ops += [('waitvm', ('p', rd, s))] + accb(B, buf + h*s, n)
            ops += rnd(B, n, TM) + accb(B, x1r, n) + rnd(B, n, TM)
            ops += [f'v_mul_f32 v{U+i}, {fhex(-1.4426950408889634)}, v{B+i}' for i in range(n)]
            ops += [f'v_exp_f32 v{U+i}, v{U+i}' for i in range(n)] + [f'v_add_f32 v{U+i}, 1.0, v{U+i}' for i in range(n)] + [f'v_rcp_f32 v{U+i}, v{U+i}' for i in range(n)]
            ops += pk('v_pk_mul_f32', B, B, U, n) + [unp(U+i, SP[rd], i) for i in range(n)] + rnd(B, n, TM) + pk('v_pk_mul_f32', B, B, U, n) + rnd(B, n, TM) + accb(B, XP[rd], n)
            ops += cvt(O, B, n)
            ops.append(('vmem', f'buffer_store_dwordx2 {vr(O, 2)}, v{vO}, s[8:11], 0 offen' if n > 2 else f'buffer_store_dword v{O}, v{vO}, s[8:11], 0 offen', 'o'))
            if n == 8: ops += [f's_movk_i32 s{sTmp}, {16*1152}', ('vmem', f'buffer_store_dwordx2 {vr(O+2, 2)}, v{vO}, s[8:11], s{sTmp} offen', 'o')]
            return ops
        fa = fin_ops(0, PA)
        def run(seq):
            for op in seq: emit(op)
        run(out16(8) + [f's_mov_b32 s{sLo}, 0x3f80', f's_mov_b32 s{sHi}, 0x3f800000', f's_add_u32 s7, s{sFr}, 12'])
        run(fa[:t0])
        a('s_waitcnt lgkmcnt(0)\ns_cmp_ge_u32 s4, 8\ns_cbranch_scc0 K3_p2')
        vm0 = list(a.vm)
        run(ploads(1, PB) + fa[t0:t1] + signal(8, 3))
        a('s_branch K3_join\nK3_p2:')
        a.vm = vm0
        run(poll(sNeed) + fa[t0:t1] + ['s_waitcnt lgkmcnt(0)'] + signal(8, 3) + spin(sNeed) + ploads(1, PB))
        a('K3_join:')
        a.vm = [('p', 1, s) for s in range(8)]
        run(fa[t1:-3])
        a.tr(8)
        run(poll(7) + fa[-3:])
        a('s_waitcnt lgkmcnt(0)\ns_cmp_ge_u32 s4, 8\ns_cbranch_scc0 K3_q2')
        vm0 = list(a.vm)
        fb = fin_ops(1, PB)
        run(ploads(2, PD) + fb[:-3])
        a('s_branch K3_join2\nK3_q2:')
        a.vm = vm0
        run(poll(7) + fb[:-3] + ['s_waitcnt lgkmcnt(0)'] + spin(7) + ploads(2, PD))
        a('K3_join2:')
        a.vm = [('p', 2, s) for s in range(8)]
        a.tr(9)
        run(fb[-3:] + fin_ops(2, PD))
    return dict(e1a=e1a, e1w=e1w, e1b=e1b, e1c=e1c, e2=e2, e2pre=e2pre, emit=emit, main=run_main, W=W, nv=nv, regs=V.names)
```

```python
from asmlib import *
import struct
MAT = 2048 * 576 * 2
WS_HF   = 0
WS_X1F  = 1 * MAT
WS_KVR  = 2 * MAT
WS_ZT   = 3 * MAT
WS_PF   = 4 * MAT
WS_ST1  = 12 * MAT
WS_ST2  = WS_ST1 + 16384
WS_CS3  = WS_ST2 + 9 * 16384
import os
FLS = int(os.environ.get('FLS', 4352))
WS_FL   = WS_CS3 + 9 * 4608 * 4
FL_H, FL_X, FL_W3, FL_W4, FL_KV, FL_Z = [WS_FL + FLS * i for i in (128, 192, 224, 232, 240, 249)]
WS_TS   = 13 * MAT
WBYTES  = 576 * 4608 * 2
WS_WP3  = 14 * MAT
WS_WP4  = WS_WP3 + WBYTES
WS_END  = WS_WP4 + WBYTES

def f2u(x):
    return struct.unpack('<I', struct.pack('<f', x))[0]
def fhex(x):
    return '0x%08x' % f2u(x)

class Gen(Asm):
    def __init__(self):
        super().__init__()
        self.vm = []
        self.lg = []
    def vmem(self, s, tag=None):
        self(s); self.vm.append(tag)
    def lds(self, s, tag=None):
        self(s); self.lg.append(tag)
    def _n(self, q, tags):
        if not isinstance(tags, (list, tuple, set)) or (isinstance(tags, tuple)): tags = [tags]
        last = -1
        for i, t in enumerate(q):
            if t in tags: last = i
        if last < 0: return None
        return len(q) - 1 - last
    def wait(self, vm=None, lg=None, vm_all=False, lg_all=False):
        parts = []
        if vm_all: nv = 0 if self.vm else None
        else: nv = self._n(self.vm, vm) if vm is not None else None
        if lg_all: nl = 0 if self.lg else None
        else: nl = self._n(self.lg, lg) if lg is not None else None
        if nv is not None:
            nv = min(nv, 63)
            parts.append(f'vmcnt({nv})'); self.vm = self.vm[len(self.vm) - nv:] if nv else []
        if nl is not None:
            nl = min(nl, 15)
            parts.append(f'lgkmcnt({nl})'); self.lg = self.lg[len(self.lg) - nl:] if nl else []
        if parts: self('s_waitcnt ' + ' '.join(parts))
    trace = False
    def tr(self, i):
        if self.trace: self(f's_mem{"real" if self.trace == 2 else ""}time s[{68+2*i}:{69+2*i}]')
    def srd(self, d, lo, hi, size):
        self(f's_mov_b32 s{d}, s{lo}\ns_mov_b32 s{d+1}, s{hi}\ns_mov_b32 s{d+2}, {size}\ns_mov_b32 s{d+3}, 0x20000')

GELU_C0 = -2.0 * 1.4426950408889634 * 0.7978845608028654
GELU_C1 = GELU_C0 * 0.044715

def stamp_start(a, s=92):
    a(f's_memrealtime s[{s}:{s+1}]\ns_memtime s[{s+4}:{s+5}]')
def stamp_end(a, ws_lo, kidx, s=92, vtmp=0):
    a(f'''s_memrealtime s[{s+2}:{s+3}]
    s_memtime s[{s+6}:{s+7}]
    s_waitcnt lgkmcnt(0)
    s_lshl_b32 s{s+1}, s2, 4
    s_add_u32 s{s+1}, s{s+1}, {WS_TS + kidx * 16384}
    s_sub_u32 s{s+6}, s{s+6}, s{s+4}
    s_getreg_b32 s{s+7}, hwreg(HW_REG_XCC_ID)
    v_mov_b32 v{vtmp}, s{s}
    v_mov_b32 v{vtmp+1}, s{s+2}
    v_mov_b32 v{vtmp+2}, s{s+6}
    v_mov_b32 v{vtmp+3}, s{s+7}
    v_mov_b32 v{vtmp+4}, s{s+1}
    global_store_dwordx4 v{vtmp+4}, v[{vtmp}:{vtmp+3}], s[{ws_lo}:{ws_lo+1}]''')

def trace_init(a):
    if a.trace:
        for i in range(12): a(f's_mov_b32 s{68+2*i}, 0')
def trace_dump(a, ws_lo, kidx, vtmp, s=92):
    if not a.trace: return
    a('s_waitcnt lgkmcnt(0)')
    for i in range(12):
        if a.trace != 2: a(f's_sub_u32 s{68+2*i}, s{68+2*i}, s{s+4}')
        a(f'v_mov_b32 v{vtmp+i}, s{68+2*i}')
    a(f's_lshl_b32 s68, s2, 4\ns_add_u32 s68, s68, s67\ns_lshl_b32 s68, s68, 6\ns_add_u32 s68, s68, {WS_TS + 65536 + kidx * 524288}\nv_mov_b32 v{vtmp+12}, s68')
    for i in range(3): a(f'global_store_dwordx4 v{vtmp+12}, v[{vtmp+4*i}:{vtmp+4*i+3}], s[{ws_lo}:{ws_lo+1}] offset:{16*i}')
def trace_wave(a):
    if a.trace: a('v_lshrrev_b32 v1, 6, v0\ns_nop 0\nv_readfirstlane_b32 s67, v1')

def touch_code(a, label, nbytes, sp, vaddr, vdst, uniq):
    a(f's_getpc_b64 s[{sp}:{sp+1}]\n{uniq}:\ns_add_u32 s{sp}, s{sp}, {label}-{uniq}\ns_addc_u32 s{sp+1}, s{sp+1}, 0\nv_lshlrev_b32 v{vaddr}, 7, v0')
    n = (nbytes + 8191) // 8192
    for i in range(n):
        if i == n - 1:
            a(f'v_min_u32 v{vaddr}, {nbytes - 4}, v{vaddr}')
        a(f'global_load_dword v{vdst}, v{vaddr}, s[{sp}:{sp+1}]')
        if i < n - 1: a(f'v_add_u32 v{vaddr}, 8192, v{vaddr}')

MAPB = [1]
def slice_code(dst, tmp):
    b = MAPB[0]
    return f's_and_b32 s{dst}, s2, {(8 >> b) - 1}\ns_lshl_b32 s{dst}, s{dst}, {b}\ns_bfe_u32 s{tmp}, s2, {(b << 16) | 3}\ns_add_u32 s{dst}, s{dst}, s{tmp}'
def mt_code(dst, tmp):
    b = MAPB[0]
    return f's_lshr_b32 s{dst}, s2, {3 + b}\ns_bfe_u32 s{tmp}, s2, {(b << 16) | (3 - b)}\ns_lshl_b32 s{tmp}, s{tmp}, {5 - b}\ns_add_u32 s{dst}, s{dst}, s{tmp}'
```

```python
from common import *
SPIN_MAX = 200000
sW = 23
SC = 'sc1'
NT = 'nt'

def bf16r(d, s): return [f'v_cvt_pk_bf16_f32 v{d}, v{s}, v{s}', f'v_lshlrev_b32 v{d}, 16, v{d}']
def unp(d, s, i): return f'v_lshlrev_b32 v{d}, 16, v{s+i//2}' if i % 2 == 0 else f'v_and_b32 v{d}, 0xffff0000, v{s+i//2}'

def spin(a, base, areg, target, first_loaded=False, sleep=2, wg=False, vec=False):
    l = a.newlabel('SP'); l2 = a.newlabel('OK')
    if wg: a(f's_cmp_ge_u32 s{sW}, {int(wg)}\ns_cbranch_scc1 {l2}')
    if not first_loaded: a(f's_load_dword s4, s[{base}:{base+1}], {areg} glc')
    a(f'''s_mov_b32 s3, 0
    {l}:
    s_waitcnt lgkmcnt(0)
    s_cmp_ge_u32 s4, {target}
    s_cbranch_scc1 {l2}
    s_add_u32 s3, s3, 1
    s_cmp_gt_u32 s3, {SPIN_MAX}
    s_cbranch_scc1 {l2}''')
    if sleep: a(f's_sleep {sleep}')
    if vec: a(f'v_mov_b32 v254, {areg}\nglobal_load_dword v255, v254, s[{base}:{base+1}] sc1\ns_waitcnt vmcnt(0)\nv_readfirstlane_b32 s4, v255\ns_nop 0')
    else: a(f's_load_dword s4, s[{base}:{base+1}], {areg} glc')
    a(f's_branch {l}\n{l2}:')
    if wg: a('s_waitcnt lgkmcnt(0)\ns_barrier')
    a.lg = []
def check_go(a): spin(a, 100, '0', 4, sleep=32)
def sig(a, areg, val=1): a(f's_mov_b32 s5, {val}\ns_atomic_add s5, s[28:29], {areg}')

class Sched:
    def __init__(self, a): self.a = a; self.q = []
    def add(self, ops): self.q += ops
    def emit(self, op):
        a = self.a
        if isinstance(op, str): a(op)
        elif op[0] == 'wait': a.wait(lg=op[1])
        elif op[0] == 'waitvm': a.wait(vm=op[1])
        elif op[0] == 'lds': a.lds(op[1], op[2])
        elif op[0] == 'vmem': a.vmem(op[1], op[2])
    def fill(self, units):
        while self.q and units > 0:
            op = self.q.pop(0); self.emit(op)
            if isinstance(op, str): units -= 2 if op[:5] in ('v_exp', 'v_rcp', 'v_sqr') else 1
            elif op[0] in ('lds',): units -= 1
            elif op[0] == 'vmem': units -= 2
    def flush(self): self.fill(1 << 30)

CSL = 147456
def gch(d, t): return f's_lshr_b32 s{d}, s2, 2\ns_lshl_b32 s{d}, s{d}, 4\ns_and_b32 s{t}, s2, 3\ns_add_u32 s{d}, s{d}, s{t}\ns_add_u32 s{d}, s{d}, 12'
W2B = 73728

def gen_G(a, opt):
    V = Regs(4, 256)
    X = V.alloc('x', 16, 4); WF = V.alloc('wf', 32, 4); ACC = V.alloc('acc', 32, 4)
    SUM = V.alloc('sum', 8, 4); GR = V.alloc('gr', 8, 4); CSA = V.alloc('csa', 8, 4); ONE = V.alloc('one', 4, 4)
    CSR = V.alloc('csr', 32, 4); TT = V.alloc('tt', 32, 4); PKD = SUM; XN = CSR
    ST = V.alloc('st', 16, 4)
    KC = V.alloc('kc', 4, 2); KRW = V.alloc('krw', 8, 4)
    vXs = V.alloc('xs', 2); vWs = V.alloc('ws', 2); vXr = V.alloc('xr', 2); vTr = V.alloc('tr', 8); vHa = V.alloc('ha', 8)
    vCs = V.alloc('cs', 2); vL16 = V.alloc('l16'); vDg = V.alloc('dg'); vRow = V.alloc('row'); vW2 = V.alloc('w2')
    assert TT + 32 <= 200
    sMt, sC, sKb, sT, sT2, sXo, sWo, sG32, sW2, sW1 = 20, 21, 22, 24, 25, 26, 27, 30, 31, 32
    sSh = 34
    sMk = 40
    sXl, sWl = 56, 57
    a(f'''
    s_load_dwordx2 s[8:9], s[0:1], 0
    s_load_dwordx4 s[60:63], s[0:1], 56
    s_and_b32 s{sMt}, s2, 7
    s_lshl_b32 s{sMt}, s{sMt}, 1
    s_bfe_u32 s{sT}, s2, 0x10003
    s_add_u32 s{sMt}, s{sMt}, s{sT}
    s_lshr_b32 s{sC}, s2, 4
    s_mul_i32 s{sT}, s{sT}, {opt.get('rotb', 1)}
    s_and_b32 s{sKb}, s2, 7
    s_mul_i32 s{sKb}, s{sKb}, {opt.get('rotx', 2)}
    s_add_u32 s{sKb}, s{sKb}, s{sT}
    s_add_u32 s{sKb}, s{sKb}, s{sC}
    s_mul_i32 s{sT}, s{sKb}, 57
    s_lshr_b32 s{sT}, s{sT}, 9
    s_mul_i32 s{sT}, s{sT}, 9
    s_sub_u32 s{sKb}, s{sKb}, s{sT}
    s_lshl_b32 s{sG32}, s{sMt}, 2
    s_add_u32 s{sG32}, s{sG32}, s{sW}
    s_mul_i32 s{sXo}, s{sG32}, {32*1152}
    s_mul_i32 s{sWo}, s{sW}, {16*1152}
    s_lshl_b32 s{sT}, s{sC}, 7
    s_add_u32 s{sWo}, s{sWo}, s{sT}
    s_lshl_b32 s{sXl}, s{sW}, 12
    s_add_u32 s{sXl}, s{sXl}, 8192
    s_lshl_b32 s{sWl}, s{sW}, 11
    s_and_b32 s{sW2}, s{sW}, 2
    s_and_b32 s{sW1}, s{sW}, 1
    v_lshrrev_b32 v1, 3, v0
    v_mul_u32_u24 v1, 1152, v1
    v_and_b32 v2, 7, v0
    v_lshrrev_b32 v3, 4, v0
    v_xor_b32 v{vXs}, v2, v3
    v_lshl_add_u32 v{vXs}, v{vXs}, 4, v1
    v_xor_b32 v{vXs+1}, 64, v{vXs}
    v_lshlrev_b32 v{vW2}, 1, v3
    v_xor_b32 v{vW2}, v2, v{vW2}
    v_lshl_add_u32 v{vW2}, v{vW2}, 4, v1
    v_and_b32 v3, 1, v3
    v_lshlrev_b32 v3, 1, v3
    v_xor_b32 v{vWs}, v2, v3
    v_lshl_add_u32 v{vWs}, v{vWs}, 4, v1
    v_xor_b32 v{vWs+1}, 64, v{vWs}
    s_mov_b32 s10, {MAT}
    s_mov_b32 s11, 0x20000
    s_mov_b32 s14, {576*1152}
    s_mov_b32 s15, 0x20000
    s_waitcnt lgkmcnt(0)
    s_mov_b32 s12, s60
    s_mov_b32 s13, s61
    ''')
    a.tr(0)
    def issue(t):
        sl = (t % 3) * 24576
        ops = [f's_lshl_b32 s{sT}, s{sKb}, 7\ns_add_u32 s{sT}, s{sT}, s{sXo}\ns_mul_i32 s{sT2}, s{sKb}, {64*1152}\ns_add_u32 s{sT2}, s{sT2}, s{sWo}']
        for i in range(4):
            ops.append(f's_add_u32 m0, s{sXl}, {sl + i*1024}' + (f'\ns_add_u32 s{sT}, s{sT}, {8*1152}' if i else '\ns_nop 0'))
            ops.append(('vmem', f'buffer_load_dwordx4 v{vXs + i%2}, s[8:11], s{sT} offen {opt.get("xnt", "")} lds', ('st', t)))
        for j in range(2):
            ops.append(f's_add_u32 m0, s{sWl}, {sl + j*1024}' + (f'\ns_add_u32 s{sT2}, s{sT2}, {8*1152}' if j else '\ns_nop 0'))
            ops.append(('vmem', f'buffer_load_dwordx4 v{vWs + j}, s[12:15], s{sT2} offen {opt.get("wnt", "")} lds', ('st', t)))
        ops.append(f's_add_u32 s{sKb}, s{sKb}, 1\ns_cmp_eq_u32 s{sKb}, 9\ns_cselect_b32 s{sKb}, 0, s{sKb}')
        return ops
    S = Sched(a)
    S.add(issue(0)); S.flush()
    a('s_barrier')
    S.add(issue(1)); S.flush()
    gen_Gearly(a, KRW)
    a(f'''
    v_lshlrev_b32 v{vL16}, 4, v0
    v_and_b32 v1, 15, v0
    v_lshrrev_b32 v2, 4, v0
    s_lshl_b32 s{sT}, s{sW1}, 2
    v_add_u32 v3, s{sT}, v2
    v_lshrrev_b32 v{vXr}, 1, v1
    v_xor_b32 v3, v3, v{vXr}
    v_lshlrev_b32 v3, 4, v3
    v_lshl_add_u32 v3, v1, 7, v3
    v_add_u32 v{vXr}, s{sXl}, v3
    v_xor_b32 v{vXr+1}, 64, v{vXr}
    s_lshl_b32 s{sT}, s{sG32}, 5
    v_add_u32 v{vRow}, s{sT}, v1
    v_lshrrev_b32 v3, 2, v1
    v_lshl_add_u32 v{vDg}, v3, 4, v1
    v_lshlrev_b32 v{vDg}, 2, v{vDg}
    v_lshl_add_u32 v{vTr}, v2, 3, v3
    v_lshlrev_b32 v{vTr}, 7, v{vTr}
    v_lshrrev_b32 v3, 1, v3
    v_and_b32 v{vTr+1}, 1, v2
    v_lshl_add_u32 v3, v{vTr+1}, 1, v3
    v_xor_b32 v3, s{sW2}, v3
    v_lshl_add_u32 v{vTr}, v3, 5, v{vTr}
    v_and_b32 v3, 3, v0
    v_lshl_add_u32 v{vTr}, v3, 3, v{vTr}
    s_lshl_b32 s{sT}, s{sW1}, 12
    v_add_u32 v{vTr}, s{sT}, v{vTr}
    s_lshl_b32 s{sT}, s{sW2}, 6
    s_add_u32 s{sT}, s{sT}, {CSL}
    v_lshl_add_u32 v{vCs}, v2, 4, s{sT}
    v_xor_b32 v{vCs+1}, 128, v{vCs}
    ''')
    for j in range(1, 4): a(f'v_xor_b32 v{vTr+j}, {32*j}, v{vTr}')
    for j in range(4): a(f'v_xor_b32 v{vTr+4+j}, 4096, v{vTr+j}')
    for i in range(4): a(f'v_mov_b32 v{ONE+i}, 0x3f803f80')
    a(f'v_mov_b32 v{KC}, {fhex(GELU_C0)}\nv_mov_b32 v{KC+1}, {fhex(GELU_C0)}\nv_mov_b32 v{KC+2}, {fhex(GELU_C1)}\nv_mov_b32 v{KC+3}, {fhex(GELU_C1)}')
    a(f'v_and_b32 v3, 48, v0\ns_movk_i32 s33, 0x800')
    for j in range(4):
        a(f'''s_xor_b32 s{sT}, s{sW2}, {j}
        s_lshl_b32 s{sT2}, s{sC}, 2
        s_add_u32 s{sT}, s{sT}, s{sT2}
        s_lshr_b32 s58, s{sT}, 1
        s_lshl_b32 s58, s58, 10
        s_add_u32 s58, s58, {WS_HF + (j & 1) * 8}
        s_mul_i32 s{sT}, s{sT}, 57
        s_lshr_b32 s{sT}, s{sT}, 9
        s_lshr_b32 s{sT2}, s{sT}, 1
        s_add_u32 s{sT2}, s{sT2}, 1
        s_bitcmp1_b32 s{sT}, 0
        s_cselect_b32 s{sT}, -1, 1
        s_mul_i32 s{sSh+j}, s{sT}, s{sT2}''')
        for rt in range(2):
            a(f'''s_add_u32 s{sT}, s{sSh+j}, {16*rt}
            v_add_u32 v1, s{sT}, v{vRow}
            v_cmp_gt_u32 s[{sMk+2*(4*rt+j)}:{sMk+2*(4*rt+j)+1}], s33, v1
            v_and_b32 v1, 0x7ff, v1
            v_lshrrev_b32 v2, 4, v1
            v_mul_u32_u24 v2, 18432, v2
            v_and_b32 v1, 15, v1
            v_add_u32 v1, v1, v3
            v_lshl_add_u32 v1, v1, 4, v2
            v_add_u32 v{vHa+4*rt+j}, s58, v1''')
    def reads(k):
        t, uu = k // 2, k % 2; sl = (t % 3) * 24576; ops = []
        for rt in range(2): ops.append(('lds', f'ds_read_b128 {vr(X + 8*uu + 4*rt, 4)}, v{vXr+uu} offset:{sl + rt*2048}', ('r', k)))
        for j in range(4):
            for h in range(2): ops.append(('lds', f'ds_read_b64_tr_b16 {vr(WF + 16*uu + 4*j + 2*h, 2)}, v{vTr+4*uu+j} offset:{sl + h*512}', ('r', k)))
        return ops
    def mf(d, A, B, first): return f'v_mfma_f32_16x16x32_bf16 {vr(d, 4)}, {vr(A, 4)}, {vr(B, 4)}, {"0" if first else vr(d, 4)}'
    def mfmas(k):
        uu = k % 2; st = []; mm = []
        for rt in range(2):
            x = X + 8*uu + 4*rt
            st += [mf(SUM+4*rt, ONE, x, k == 0), mf(GR+4*rt, x, x, k == 0)]
        if uu == 0: st += [mf(CSA+4*j, WF + 4*j, ONE, k == 0) for j in range(2)]
        for j in range(4):
            for rt in range(2): mm.append(mf(ACC + 16*rt + 4*j, WF + 16*uu + 4*j, X + 8*uu + 4*rt, k == 0))
        if opt.get('nostat'): st = st[:0] if k else st
        return st + mm
    def stats_ops():
        ops = [f'v_and_b32 v1, 3, v0', f'v_cmp_eq_u32 vcc, 1, v1', f'v_cmp_eq_u32 s[58:59], 2, v1', f'v_cmp_eq_u32 s[64:65], 3, v1']
        for rt in range(2):
            g = GR + 4*rt
            ops += [f'v_cndmask_b32 v{g}, v{g}, v{g+1}, vcc', f'v_cndmask_b32 v{g}, v{g}, v{g+2}, s[58:59]', f'v_cndmask_b32 v{g}, v{g}, v{g+3}, s[64:65]',
                    ('lds', f'ds_bpermute_b32 v{g+1}, v{vDg}, v{g}', 'gr')]
        ch = [[], []]
        for rt in range(2):
            m, var, m1, r1, t0, t1, al, be = [ST + 8*rt + i for i in range(8)]
            def dn(dst, v): return bf16r(dst, v) + [f'v_add_f32 v{dst}, {fhex(1e-5)}, v{dst}'] + bf16r(dst, dst) + [f'v_sqrt_f32 v{dst}, v{dst}'] + bf16r(dst, dst) + [f'v_rcp_f32 v{dst}, v{dst}']
            o = [f'v_mul_f32 v{m}, {fhex(1/576)}, v{SUM+4*rt}'] + bf16r(m1, m) + [('wait', 'gr'), f'v_mul_f32 v{var}, {fhex(1/576)}, v{GR+4*rt+1}',
                 f'v_fma_f32 v{var}, -v{m}, v{m}, v{var}', f'v_max_f32 v{var}, 0, v{var}'] + dn(r1, var) + [f'v_sub_f32 v{t0}, v{m}, v{m1}', f'v_mul_f32 v{t0}, v{t0}, v{r1}',
                 f'v_mul_f32 v{var}, v{var}, v{r1}', f'v_mul_f32 v{var}, v{var}, v{r1}'] + bf16r(t0, t0) + dn(t1, var) + [f'v_fma_f32 v{t0}, v{m1}, v{r1}, v{t0}',
                 f'v_mul_f32 v{al}, v{r1}, v{t1}', f'v_mul_f32 v{be}, v{t0}, v{t1}', f'v_sub_f32 v{be}, 0, v{be}']
            ch[rt] = o
        for x, y in zip(ch[0], ch[1]): ops += [x, y]
        return ops
    XBL = 40960
    def xbops():
        ops = [f's_lshl_b32 s{sT}, s{sC}, 7\ns_add_u32 s{sT}, s{sT}, s{sXo}']
        for i in range(4):
            ops.append(f's_add_u32 m0, s{sXl}, {XBL - 8192 + i*1024}' + (f'\ns_add_u32 s{sT}, s{sT}, {8*1152}' if i else '\ns_nop 0'))
            ops.append(('vmem', f'buffer_load_dwordx4 v{vXs + i%2}, s[8:11], s{sT} offen lds', 'xb'))
        return ops
    def w2ops(t):
        ops = [f's_mul_i32 s{sT2}, s{sKb}, {64*1152}\ns_add_u32 s{sT2}, s{sT2}, s{sWo}']
        for j in range(2):
            ops.append(f's_add_u32 m0, s{sWl}, {W2B + t*8192 + j*1024}' + (f'\ns_add_u32 s{sT2}, s{sT2}, {8*1152}' if j else '\ns_nop 0'))
            ops.append(('vmem', f'buffer_load_dwordx4 v{vW2}, s[12:15], s{sT2} offen lds', 'w2'))
        ops.append(f's_add_u32 s{sKb}, s{sKb}, 1\ns_cmp_eq_u32 s{sKb}, 9\ns_cselect_b32 s{sKb}, 0, s{sKb}')
        return ops
    a.tr(1)
    for t in range(10):
        if t < 9: a.wait(vm=('st', t), lg_all=True)
        else: a.wait(lg_all=True)
        a('s_barrier')
        if t in (0, 4): a.tr(2 + t // 4)
        if t == 8: a('s_load_dword s4, s[100:101], 0')
        if t < 9:
            S.add(reads(2*t))
            if t == 0: S.flush()
            if t + 2 < 9: S.add(issue(t + 2))
            nw = opt.get('w2n', (2, 5))
            if t == 7: S.add([f's_mov_b32 s12, s62\ns_mov_b32 s13, s63\ns_mov_b32 s{sKb}, s{sC}'] + sum([w2ops(i) for i in range(nw[0])], []))
            if t == 8: S.add(sum([w2ops(i) for i in range(nw[0], nw[1])], []))
        else:
            for par in range(2):
                for j in range(4): S.add([('lds', f'ds_read_b128 {vr(CSR + 16*par + 4*j, 4)}, v{vCs + j//2} offset:{par*256 + (j&1)*64}', 'cs')])
        if t > 0:
            ms = mfmas(2*t - 1)
            for i, m in enumerate(ms):
                a(m)
                if t == 9 and i == 5: S.add(stats_ops())
                S.fill(2 if t == 9 else 3)
        if t < 9:
            if t < 7: S.flush()
            S.q = reads(2*t + 1) + S.q
            a.wait(lg=('r', 2*t))
            ms = mfmas(2*t)
            for i, m in enumerate(ms):
                a(m); S.fill(2 if t < 7 else 3)
            S.flush()
            if t == 8:
                a(f's_lshl_b32 s{sT}, s{sW1}, 8\nv_add_u32 v1, s{sT}, v{vCs}')
                for j in range(2): a.lds(f'ds_write_b128 v1, {vr(CSA+4*j, 4)} offset:{64*j}', 'csw')
    S.flush()
    a.tr(4)
    spin(a, 100, '0', 4, first_loaded=True, sleep=4, vec=True)
    a(gch(66, 58) + f'\ns_lshr_b32 s59, s66, 6\ns_mul_i32 s59, s59, {FLS}\ns_add_u32 s59, s59, {FL_KV}\ns_mov_b32 s58, 0\ns_cmp_lg_u32 s{sW}, 3\ns_cbranch_scc1 G_k1\ns_load_dword s4, s[28:29], s59 glc\nG_k1:')
    RDMA = f's_mov_b32 m0, {RO}\ns_lshl_b32 s64, s66, 12\ns_add_u32 s64, s64, {WS_KVR}\n' + '\n'.join(f'buffer_load_dwordx4 v{vL16}, s[16:19], s64 offen offset:{1024*i} {SC} lds' for i in range(4))
    a.wait(lg='cs')
    def pk(op, d, s0, s1, s2=None, sel=''): return f'{op} {vr(d, 2)}, {vr(s0, 2)}, {vr(s1, 2)}' + (f', {vr(s2, 2)}' if s2 is not None else '') + sel
    for i in range(8): a(pk('v_pk_add_f32', CSR + 2*i, CSR + 2*i, CSR + 16 + 2*i))
    a(f'''v_lshlrev_b32 v1, 3, v{vRow}
    s_mov_b32 s{sT}, {WS_ST1}
    s_cmp_eq_u32 s{sC}, 0
    s_cselect_b32 s{sT}, s{sT}, {WS_END}''')
    for rt in range(2): a.vmem(f'buffer_store_dwordx2 {vr(ST+8*rt+2, 2)}, v1, s[16:19], s{sT} offen offset:{128*rt} {SC}', 'hs')
    S.add(sum([w2ops(i) for i in range(opt.get('w2n', (2, 5))[1], 9)], []) + xbops())
    a_ = a
    cnt = [0]
    class AW:
        def __call__(self, x):
            a_(x); cnt[0] += 1
            if cnt[0] % 2 == 0: S.fill(1)
        def __getattr__(self, n): return getattr(a_, n)
    a = AW()
    for rt in range(2):
        if rt == 1: a = a_
        al = ST + 8*rt + 6; A_ = ACC + 16*rt; T_ = TT + 16*rt
        for i in range(8): a(pk('v_pk_mul_f32', T_+2*i, CSR+2*i, al, sel=' op_sel:[0,1] op_sel_hi:[1,1]'))
        for i in range(8): a(pk('v_pk_fma_f32', A_+2*i, A_+2*i, al, T_+2*i, sel=' op_sel_hi:[1,0,1]'))
        for i in range(8): a(pk('v_pk_mul_f32', T_+2*i, A_+2*i, A_+2*i))
        for i in range(8): a(pk('v_pk_fma_f32', T_+2*i, T_+2*i, KC+2, KC))
        for i in range(8): a(pk('v_pk_mul_f32', T_+2*i, T_+2*i, A_+2*i))
        for i in range(16): a(f'v_exp_f32 v{T_+i}, v{T_+i}')
        for i in range(8): a(f'v_pk_add_f32 {vr(T_+2*i, 2)}, {vr(T_+2*i, 2)}, 1.0 op_sel_hi:[1,0]')
        for i in range(16): a(f'v_rcp_f32 v{T_+i}, v{T_+i}')
        for i in range(8): a(pk('v_pk_mul_f32', A_+2*i, A_+2*i, T_+2*i))
        P_ = PKD + 8*rt
        a = a_; S.flush()
        if rt == 0: a(f's_cmp_lg_u32 s{sW}, 3\ns_cbranch_scc1 G_k2\ns_waitcnt lgkmcnt(0)\ns_cmp_lt_u32 s4, 32\ns_cbranch_scc1 G_k2\n{RDMA}\ns_mov_b32 s58, 1\nG_k2:')
        for i in range(8): a(f'v_cvt_pk_bf16_f32 v{P_+i}, v{A_+2*i}, v{A_+2*i+1}')
        for i in range(8):
            mk = sMk + 2*(4*rt + i//2)
            a(f'v_cndmask_b32 v{P_+i}, 0, v{P_+i}, s[{mk}:{mk+1}]')
        for p in range(2):
            l1 = a.newlabel('HS'); l2 = a.newlabel('HE')
            a(f's_cmp_eq_u32 s{sSh+2*p}, s{sSh+2*p+1}\ns_cbranch_scc0 {l1}')
            a(f'buffer_store_dwordx4 {vr(P_+4*p, 4)}, v{vHa+4*rt+2*p}, s[16:19], 0 offen {SC}\ns_branch {l2}\n{l1}:')
            a(f'buffer_store_dwordx2 {vr(P_+4*p, 2)}, v{vHa+4*rt+2*p}, s[16:19], 0 offen {SC}')
            a(f'buffer_store_dwordx2 {vr(P_+4*p+2, 2)}, v{vHa+4*rt+2*p+1}, s[16:19], 0 offen {SC}\n{l2}:')
            a.vm.append('hs')
    a.tr(5)
    a(f'''v_and_b32 v1, 15, v0
    v_lshrrev_b32 v2, 5, v0
    v_lshrrev_b32 v3, 1, v1
    v_xor_b32 v2, v2, v3
    v_lshlrev_b32 v2, 4, v2
    v_lshl_add_u32 v2, v1, 7, v2
    v_bfe_u32 v3, v0, 4, 1
    v_lshl_add_u32 v2, v3, 3, v2
    s_add_u32 s{sT}, s{sXl}, {XBL - 8192}
    v_add_u32 v2, s{sT}, v2
    v_lshrrev_b32 v1, 2, v0
    v_lshlrev_b32 v3, 7, v1
    v_bfe_u32 v1, v1, 1, 2
    v_lshl_add_u32 v3, v1, 5, v3
    v_and_b32 v1, 3, v0
    v_lshl_add_u32 v3, v1, 3, v3
    v_add_u32 v{vTr}, {W2B}, v3''')
    for j in range(1, 4): a(f'v_xor_b32 v{vTr+j}, {32*j}, v{vTr}')
    for j in range(4): a(f'v_add_u32 v{vTr+4+j}, 36864, v{vTr+j}')
    a.wait(vm='xb')
    for t in range(4):
        a(f'v_xor_b32 v1, {32*t}, v2')
        for rt in range(2): a.lds(f'ds_read_b64 {vr(XN + 8*rt + 2*t, 2)}, v1 offset:{2048*rt}', 'xn')
    a.wait(lg='xn')
    for rt in range(2):
        m1 = ST + 8*rt + 2; T_ = TT + 16*rt; N_ = XN + 8*rt
        for i in range(16): a(unp(T_+i, N_, i))
        for i in range(8): a(pk('v_pk_add_f32', T_+2*i, T_+2*i, m1, sel=' op_sel_hi:[1,0] neg_lo:[0,1] neg_hi:[0,1]'))
        for i in range(8): a(f'v_cvt_pk_bf16_f32 v{N_+i}, v{T_+2*i}, v{T_+2*i+1}')
        for i in range(16): a(unp(T_+i, N_, i))
        for i in range(8): a(pk('v_pk_mul_f32', T_+2*i, T_+2*i, m1, sel=' op_sel:[0,1] op_sel_hi:[1,1]'))
        for i in range(8): a(f'v_cvt_pk_bf16_f32 v{N_+i}, v{T_+2*i}, v{T_+2*i+1}')
    gen_Gconv_build(a, KRW, WF)
    a.wait(vm='hs', lg_all=True)
    a(f'''s_barrier
    s_cmp_eq_u32 s{sW}, 3
    s_cbranch_scc1 G_h3
    s_add_u32 s{sT}, s{sMt}, s{sW}
    s_add_u32 s{sT}, s{sT}, 15
    s_and_b32 s{sT}, s{sT}, 15
    s_lshl_b32 s{sT}, s{sT}, 2
    s_add_u32 s{sT}, s{sT}, s{sW}
    s_mul_i32 s{sT}, s{sT}, {FLS}
    s_add_u32 s41, s{sT}, {FL_H}
    s_mov_b32 s5, 1
    s_atomic_add s5, s[28:29], s41
    s_branch G_h4
    G_h3:
    s_cmp_eq_u32 s58, 1
    s_cbranch_scc1 G_h4''')
    spin(a, 28, 's59', 32, sleep=2)
    a(RDMA)
    a(f'''G_h4:
    s_mul_i32 s40, s{sG32}, {FLS}
    s_add_u32 s40, s40, {FL_H}
    s_mov_b32 s27, s66''')
    a.tr(6)
    a(f's_mul_i32 s{sXo}, s{sG32}, {2*18432}\ns_mov_b32 s{sKb}, s{sC}\ns_mov_b32 s12, s6\ns_mov_b32 s13, s7\ns_mov_b32 s14, {WBYTES}')
    a('s_waitcnt vmcnt(0)\ns_barrier')
    def hld(k):
        ops = []
        if k % 2 == 0:
            ops.append(f's_lshl_b32 s{sT}, s{sKb}, 11\ns_add_u32 s{sT}, s{sT}, s{sXo}\ns_add_u32 s{sT2}, s{sT}, 18432\ns_add_u32 s{sKb}, s{sKb}, 1\ns_cmp_eq_u32 s{sKb}, 9\ns_cselect_b32 s{sKb}, 0, s{sKb}')
        for rt in range(2):
            ops.append(('vmem', f'buffer_load_dwordx4 {ar(8*k + 4*rt, 4)}, v{vL16}, s[16:19], s{sT if rt == 0 else sT2} offen offset:{(k%2)*1024} {SC}', ('h', k)))
        return ops
    assert WS_HF == 0
    LA = opt.get('hla', 5)
    def hpre(): a(f's_cmp_eq_u32 s{sW}, 3\ns_cbranch_scc1 G_h5\ns_load_dword s4, s[28:29], s40 glc\nG_h5:')
    def hbar():
        spin(a, 28, 's40', 9, first_loaded=True, sleep=0, wg=3)
        a.tr(7)
        for k in range(LA): S.add(hld(k))
        S.flush()
    gen_Gconv_main(a, mid=hpre, mid_at=opt.get('hpre', 9), bar=hbar, PS=TT)
    def w2rd(k):
        ops = []
        for j in range(4):
            for h in range(2):
                o = k * 4096 + h * 2048; hi = o >= 36864
                ops.append(('lds', f'ds_read_b64_tr_b16 {vr(WF + 16*(k%2) + 4*j + 2*h, 2)}, v{vTr + 4*hi + j} offset:{o - 36864*hi}', ('r2', k)))
        return ops
    S.add(w2rd(0)); S.flush()
    for k in range(18):
        if k + 1 < 18: S.add(w2rd(k + 1))
        if k + LA < 18: S.add(hld(k + LA))
        a.wait(vm=('h', k), lg=('r2', k))
        for j in range(4):
            for rt in range(2):
                d = ACC + 16*rt + 4*j
                a(f'v_mfma_f32_16x16x32_bf16 {vr(d, 4)}, {vr(WF + 16*(k%2) + 4*j, 4)}, {ar(8*k + 4*rt, 4)}, {"0" if k == 0 else vr(d, 4)}')
                S.fill(2)
        S.flush()
    a.tr(8)
    a(f's_mov_b32 s6, 0x3f80\ns_mov_b32 s7, 0x3f800000\ns_lshl_b32 s{sT}, s{sC}, 11\ns_add_u32 s{sT}, s{sT}, s{sXo}\ns_add_u32 s{sT}, s{sT}, {WS_X1F}')
    for rt in range(2):
        A_ = ACC + 16*rt; P_ = PKD + 8*rt; N_ = XN + 8*rt
        for i in range(8): a(f'v_cvt_pk_bf16_f32 v{P_+i}, v{A_+2*i}, v{A_+2*i+1}')
        for i in range(16): a(unp(A_+i, P_, i))
        for i in range(16): a(f'v_dot2c_f32_bf16 v{A_+i}, s{6 + i%2}, v{N_+i//2}')
        for i in range(8): a(f'v_cvt_pk_bf16_f32 v{P_+i}, v{A_+2*i}, v{A_+2*i+1}')
        if rt: a(f's_add_u32 s{sT}, s{sT}, 18432')
        for p in range(2): a.vmem(f'buffer_store_dwordx4 {vr(P_+4*p, 4)}, v{vL16}, s[16:19], s{sT} offen offset:{1024*p} {SC}', 'xs')
    SS = TT
    for rt in range(2):
        a(f'v_mov_b32 v{SS+2*rt}, 0\nv_mov_b32 v{SS+2*rt+1}, 0')
    for i in range(8):
        for rt in range(2):
            a(f'v_dot2c_f32_bf16 v{SS+2*rt}, v{ONE}, v{PKD+8*rt+i}\nv_dot2c_f32_bf16 v{SS+2*rt+1}, v{PKD+8*rt+i}, v{PKD+8*rt+i}')
    a(f'''v_permlane16_swap_b32 v{SS}, v{SS+2}
    v_permlane16_swap_b32 v{SS+1}, v{SS+3}
    v_add_f32 v{SS}, v{SS}, v{SS+2}
    v_add_f32 v{SS+1}, v{SS+1}, v{SS+3}
    v_mov_b32 v{SS+2}, v{SS}
    v_mov_b32 v{SS+3}, v{SS+1}
    v_permlane32_swap_b32 v{SS}, v{SS+2}
    v_permlane32_swap_b32 v{SS+1}, v{SS+3}
    v_add_f32 v{SS}, v{SS}, v{SS+2}
    v_add_f32 v{SS+1}, v{SS+1}, v{SS+3}
    v_and_b32 v1, 31, v0
    v_lshlrev_b32 v1, 3, v1
    s_lshl_b32 s{sT}, s{sC}, 14
    s_lshl_b32 s{sT2}, s{sG32}, 8
    s_add_u32 s{sT}, s{sT}, s{sT2}
    s_add_u32 s{sT}, s{sT}, {WS_ST2}''')
    a.vmem(f'buffer_store_dwordx2 {vr(SS, 2)}, v1, s[16:19], s{sT} offen {SC}', 'xs')
    a(f's_lshr_b32 s{sT}, s{sG32}, 1\ns_mul_i32 s{sT}, s{sT}, {FLS}\ns_add_u32 s89, s{sT}, {FL_X}')
    return dict(sigX='s89')

CH = 37888; RO = 33280; CST = 4160

def conv_srd(a, sD):
    a(f'''s_lshl_b32 s24, s{sD}, 12
    s_add_u32 s8, s60, s24
    s_addc_u32 s9, s61, 0
    s_mov_b32 s10, 4096
    s_mov_b32 s11, 0x20000
    s_mov_b32 s12, s62
    s_mov_b32 s13, s63
    s_mov_b32 s14, 1152
    s_mov_b32 s15, 0x20000''')
def build_ops(D, E, vA, off):
    O = E + 6; O2 = E + 12
    ops = [f'v_mov_b32 v{E+i}, v{D+1+i}' for i in range(6)] + [f'v_alignbit_b32 v{O+i}, v{D+i+1}, v{D+i}, 16' for i in range(6)] + [f'v_alignbit_b32 v{O2+i}, v{D+i+2}, v{D+i+1}, 16' for i in range(6)]
    src = {1: O, 2: E, 3: O2, 4: D+2, 5: O+2, 6: E+2, 7: O2+2, 8: D+4}
    ops += [('lds', f'ds_write_b128 v{vA}, {vr(src[c], 4)} offset:{(c-1)*CST + 16 + off}', 'cw') for c in (4, 8, 2, 6, 1, 5, 3, 7)]
    return ops
def zero_fill(a, Z, sLb):
    a(f'''v_mov_b32 v{Z}, 0
    v_mov_b32 v{Z+1}, 0
    v_mov_b32 v{Z+2}, 0
    v_mov_b32 v{Z+3}, 0
    v_lshlrev_b32 v1, 4, v0
    v_add_u32 v1, {RO + 4096}, v1
    v_and_b32 v3, 7, v0
    v_mul_u32_u24 v3, {CST}, v3
    v_cmp_gt_u32 vcc, 32, v0
    s_nop 1
    v_cndmask_b32 v1, v3, v1, vcc
    v_add_u32 v1, {sLb}, v1''')
    a.lds(f'ds_write_b128 v1, {vr(Z, 4)}', 'z')

def gen_Gearly(a, RAW):
    a(f'''s_load_dwordx4 s[40:43], s[0:1], 32
    s_load_dwordx2 s[6:7], s[0:1], 80
    s_lshl_b32 s44, s{sW}, 10
    v_lshl_add_u32 v252, v0, 4, s44
    v_subrev_u32 v3, 16, v252
    s_mov_b32 s48, s24
    s_mov_b32 s49, s25
    s_mov_b32 s50, s26
    s_mov_b32 s51, s27
    s_lshl_b32 s52, s2, 1
    s_lshr_b32 s53, s{sW}, 1
    s_add_u32 s52, s52, s53''')
    rp_decode(a, 4, 52, 88, 91, 90)
    a(f'''s_and_b32 s24, s{sW}, 1
    s_lshl_b32 s25, s24, 10
    s_add_u32 s91, s91, s25
    s_mul_i32 s24, s24, {32*1152}
    s_add_u32 s88, s88, s24
    s_mov_b32 s24, s48
    s_mov_b32 s25, s49
    s_mov_b32 s26, s50
    s_mov_b32 s27, s51
    {gch(52, 53)}
    s_lshl_b32 s53, s52, 12
    s_lshl_b32 s52, s52, 1
    s_mov_b32 s46, 4096
    s_mov_b32 s47, 0x20000
    s_mov_b32 s50, 1152
    s_mov_b32 s51, 0x20000
    s_waitcnt lgkmcnt(0)
    s_add_u32 s44, s40, s53
    s_addc_u32 s45, s41, 0
    s_mov_b32 s48, s42
    s_mov_b32 s49, s43''')
    a.vmem(f'buffer_load_dwordx4 {vr(RAW, 4)}, v3, s[44:47], 0 offen {NT}', 'ck')
    a.vmem(f'buffer_load_dwordx4 {vr(RAW+4, 4)}, v252, s[44:47], 0 offen {NT}', 'ck')
    a.vmem(f'buffer_load_ushort v253, off, s[48:51], s52', 'ck')
def gen_Gconv_build(a, RAW, E):
    S = Sched(a)
    zero_fill(a, E, 0)
    a.wait(vm='ck')
    S.add(build_ops(RAW, E + 4, 252, 0)); S.flush()
def gen_Gconv_r(a):
    a(f's_add_u32 s27, s2, 432\ns_lshr_b32 s54, s27, 6\ns_mul_i32 s54, s54, {FLS}\ns_add_u32 s54, s54, {FL_KV}')
    spin(a, 28, 's54', 32, sleep=4, wg=True)
    a(f's_lshl_b32 s54, s{sW}, 10\ns_add_u32 m0, s54, {RO}\ns_lshl_b32 s54, s27, 12\ns_add_u32 s54, s54, {WS_KVR}')
    a.vmem(f'buffer_load_dwordx4 v252, s[16:19], s54 offen {SC} lds', 'cr')
def gen_Gconv_main(a, hook=None, extra=[], mid=None, mid_at=4, bar=None, PS=156):
    ACC = 36; FB = 4; vF, vG, vT = 20, 21, 22; GA = 144
    a(f'''
    v_and_b32 v3, 7, v0
    v_mul_u32_u24 v3, {CST}, v3
    v_bfe_u32 v1, v0, 3, 1
    v_lshrrev_b32 v{vT}, 4, v0
    v_add_u32 v1, v1, v{vT}
    v_lshl_add_u32 v{vF}, v1, 4, v3
    s_lshl_b32 s54, s{sW}, 6
    v_add_u32 v{vF}, s54, v{vF}
    v_and_b32 v1, 15, v0
    v_lshlrev_b32 v1, 5, v1
    v_lshlrev_b32 v{vG}, 4, v{vT}
    v_sub_u32 v{vG}, v{vG}, v1
    s_add_u32 s54, s54, {RO + 4064 - 14*256}
    v_add_u32 v{vG}, s54, v{vG}''')
    def grd(y): a.lds(f'ds_read_b128 {ar(GA + 4*(y+1), 4)}, v{vG} offset:{(14-y)*256}', ('g', y))
    def frd(x): a.lds(f'ds_read_b128 {vr(FB + 4*(x%4), 4)}, v{vF} offset:{x*256}', ('f', x))
    frd(0)
    for y in range(14, -2, -2): grd(y)
    frd(1)
    for y in range(13, -2, -2): grd(y)
    frd(2)
    S = Sched(a)
    S.add(f'''v_lshrrev_b32 v1, 2, v0
    v_and_b32 v1, 8, v1
    v_xor_b32 v1, v1, v0
    s_lshl_b32 s54, s{sW}, 13
    s_add_u32 s54, s54, {CH}
    v_lshl_add_u32 v1, v1, 4, s54
    v_bfe_u32 v2, v0, 1, 4
    v_and_b32 v3, 1, v0
    v_lshlrev_b32 v{vT}, 3, v3
    v_xor_b32 v2, v2, v{vT}
    v_lshl_add_u32 v2, v3, 5, v2
    v_lshrrev_b32 v3, 5, v0
    v_lshl_add_u32 v2, v3, 6, v2
    s_lshl_b32 s54, s{sW}, 11
    s_add_u32 s54, s54, {CH}
    v_lshl_add_u32 v2, v2, 4, s54
    v_sub_u32 v3, {RO + 4080}, v252'''.split('\n'))
    S2 = Sched(a); S2.add(extra)
    U = 24
    S.add([('lds', f'ds_read_b128 {vr(U+8, 4)}, v3', 'u'), f'v_lshlrev_b32 v253, 16, v253', ('wait', 'u')] + [unp(U+r, U+8, 7 - r) for r in range(8)] + [f'v_mul_f32 v{U+r}, v{U+r}, v253' for r in range(8)])
    S.add([f'v_cvt_pk_bf16_f32 v{U+8+i}, v{U+2*i}, v{U+2*i+1}' for i in range(4)] + [unp(U+i, U+8, i) for i in range(8)])
    for x in range(16):
        if x == mid_at and mid: mid()
        if x + 3 < 16: frd(x + 3)
        if x >= 4 and x % 2 == 0:
            j = x // 2 - 2
            S.add([('lds', f'ds_write_b128 v1, {vr(ACC+4*j, 4)} offset:{1024*j}', 'aw')])
        for j in range(7, -1, -1):
            if x <= 2*j + 1:
                y = 2*j - x
                a.wait(lg=[('f', x), ('g', y)])
                a(f'v_mfma_f32_16x16x32_bf16 {vr(ACC+4*j, 4)}, {vr(FB + 4*(x%4), 4)}, {ar(GA + 4*(y+1), 4)}, {"0" if x == 0 else vr(ACC+4*j, 4)}')
                if x >= 2: S.fill(2)
                S2.fill(1)
    S.flush(); S2.flush()
    for j in (6, 7): a.lds(f'ds_write_b128 v1, {vr(ACC+4*j, 4)} offset:{1024*j}', 'aw')
    bar()
    G = PS
    for e in range(4):
        for h in range(2): a.lds(f'ds_read_b128 {vr(G + 8*e + 4*h, 4)}, v2 offset:{8192*e + 256*h}', ('p', e))
    for e in range(1, 4):
        a.wait(lg=('p', e))
        for r in range(4): a(f'v_pk_add_f32 {vr(G+2*r, 2)}, {vr(G+2*r, 2)}, {vr(G+8*e+2*r, 2)}')
    for i in range(4): a(f'v_cvt_pk_bf16_f32 v{U+8+i}, v{G+2*i}, v{G+2*i+1}')
    for i in range(8): a(unp(G+i, U+8, i))
    for r in range(4): a(f'v_pk_add_f32 {vr(G+2*r, 2)}, {vr(G+2*r, 2)}, {vr(U+2*r, 2)}')
    for i in range(4): a(f'v_cvt_pk_bf16_f32 v{G+8+i}, v{G+2*i}, v{G+2*i+1}')
    if hook: hook()
    a(f's_lshl_b32 s54, s27, 12\ns_add_u32 s54, s54, {WS_ZT}')
    a.vmem(f'buffer_store_dwordx4 {vr(G+8, 4)}, v252, s[16:19], s54 offen {SC}', 'zs')
    a(f's_bfe_u32 s27, s27, 0x20004\ns_mul_i32 s27, s27, {FLS}\ns_add_u32 s27, s27, {FL_Z}\ns_mov_b32 s54, 4')

GRAW = 208
def rp_addr(a, vS3, vS4, vR, vL):
    a(f'''
    v_lshrrev_b32 v1, 3, v0
    v_and_b32 v2, 6, v1
    v_and_b32 v3, 7, v0
    v_xor_b32 v2, v2, v3
    v_lshlrev_b32 v2, 4, v2
    v_mul_u32_u24 v{vS3}, 9216, v1
    v_add_u32 v{vS3}, v{vS3}, v2
    v_mul_u32_u24 v{vS4}, 1152, v1
    v_add_u32 v{vS4}, v{vS4}, v2
    v_lshrrev_b32 v1, 2, v0
    v_lshlrev_b32 v3, 7, v1
    v_bfe_u32 v2, v1, 1, 2
    v_lshl_add_u32 v3, v2, 5, v3
    v_and_b32 v2, 3, v0
    v_lshl_add_u32 v3, v2, 3, v3
    s_mul_i32 s24, s{sW}, {CH}
    v_add_u32 v{vR}, s24, v3
    v_xor_b32 v{vR+1}, 32, v{vR}
    v_xor_b32 v{vR+2}, 64, v{vR}
    v_xor_b32 v{vR+3}, 96, v{vR}
    v_lshlrev_b32 v{vL}, 4, v0''')
def rp_decode(a, which, sU, sSrc, sDst, sFl, sCs=None):
    a(f'''s_mul_i32 s24, s{sU}, 3237
    s_lshr_b32 s24, s24, 18
    s_mul_i32 s25, s24, 81
    s_sub_u32 s25, s{sU}, s25
    s_mul_i32 s26, s25, 57
    s_lshr_b32 s26, s26, 9
    s_mul_i32 s27, s26, 9
    s_sub_u32 s25, s25, s27
    s_mul_i32 s{sFl}, s24, {FLS}
    s_add_u32 s{sFl}, s{sFl}, {FL_W3 if which == 3 else FL_W4}
    s_mul_i32 s27, s24, 9
    s_add_u32 s{sDst}, s27, s25''')
    if which == 3:
        a(f'''s_mul_i32 s{sCs}, s26, {4608*4}
        s_lshl_b32 s24, s{sDst}, 8
        s_add_u32 s{sCs}, s{sCs}, s24
        s_add_u32 s{sCs}, s{sCs}, {WS_CS3}
        s_lshl_b32 s{sSrc}, s{sDst}, 7
        s_mul_i32 s24, s26, {64*9216}
        s_add_u32 s{sSrc}, s{sSrc}, s24''')
    else:
        a(f'''s_add_u32 s{sSrc}, s27, s26
        s_mul_i32 s{sSrc}, s{sSrc}, {64*1152}
        s_lshl_b32 s24, s25, 7
        s_add_u32 s{sSrc}, s{sSrc}, s24''')
    a(f'''s_mul_i32 s{sDst}, s{sDst}, 73728
    s_lshl_b32 s24, s26, 11
    s_add_u32 s{sDst}, s{sDst}, s24
    s_add_u32 s{sDst}, s{sDst}, {WS_WP3 if which == 3 else WS_WP4}''')
def rp_issue(a, which, srd, vS, sSrc, lds_off, tag):
    pitch = 9216 if which == 3 else 1152
    a(f's_mul_i32 s24, s{sW}, {CH}\ns_add_u32 m0, s24, {lds_off}\ns_nop 0')
    for i in range(8):
        a.vmem(f'buffer_load_dwordx4 v{vS}, s[{srd}:{srd+3}], s{sSrc} offen {NT} lds', tag)
        if i < 7: a(f's_add_u32 m0, m0, 1024\ns_add_u32 s{sSrc}, s{sSrc}, {8*pitch}')
def rp_finish(a, which, D, vR, vL, sDst, lds_off, tag, stag, ONE=None, CA=None, sCs=None):
    a.wait(vm=tag)
    for uu in range(2):
        for t in range(4):
            for h in range(2):
                a.lds(f'ds_read_b64_tr_b16 {vr(D + 16*uu + 4*t + 2*h, 2)}, v{vR+t} offset:{lds_off + uu*4096 + h*2048}', ('rr', uu, t))
    for t in range(4):
        if t: a(f's_add_u32 s{sDst}, s{sDst}, 18432')
        for uu in range(2):
            a.wait(lg=('rr', uu, t))
            a.vmem(f'buffer_store_dwordx4 {vr(D + 16*uu + 4*t, 4)}, v{vL}, s[16:19], s{sDst} offen offset:{uu*1024} {SC}', stag)
            if which == 3:
                a(f'v_mfma_f32_16x16x32_bf16 {vr(CA+4*t, 4)}, {vr(ONE, 4)}, {vr(D + 16*uu + 4*t, 4)}, {"0" if uu == 0 else vr(CA+4*t, 4)}')
    if which == 3:
        a(f'''v_lshrrev_b32 v1, 4, v0
        v_cmp_eq_u32 vcc, 1, v1
        v_cmp_eq_u32 s[24:25], 2, v1
        v_cmp_eq_u32 s[26:27], 3, v1
        v_lshlrev_b32 v2, 2, v0
        v_cndmask_b32 v{CA}, v{CA}, v{CA+4}, vcc
        v_cndmask_b32 v{CA}, v{CA}, v{CA+8}, s[24:25]
        v_cndmask_b32 v{CA}, v{CA}, v{CA+12}, s[26:27]''')
        a.vmem(f'buffer_store_dword v{CA}, v2, s[16:19], s{sCs} offen {SC}', stag)

def gen_S(a, opt):
    sGw, sIx, sQ, sRm, sKv = 20, 21, 22, 30, 47
    sU = 31; sSrc = [32, 33, 88]; sDst = [35, 36, 89]; sFl = [38, 39, 90]; sCs = [41, 42, 91]; sKvF = 44; sLb = 45; sKo = 46
    vS3, vS4, vL = 250, 251, 252; vR = 244
    KRAW = 210
    ONE = 4
    a(f"""
    s_load_dwordx4 s[60:63], s[0:1], 32
    s_load_dwordx4 s[48:51], s[0:1], 8
    s_load_dwordx2 s[52:53], s[0:1], 24
    s_load_dwordx2 s[58:59], s[0:1], 64
    s_load_dwordx4 s[64:67], s[0:1], 72
    s_sub_u32 s24, s2, 144
    s_lshl_b32 s{sGw}, s24, 2
    s_add_u32 s{sGw}, s{sGw}, s{sW}
    s_mul_i32 s25, s24, 9363
    s_lshr_b32 s25, s25, 16
    s_mul_i32 s26, s25, 7
    s_sub_u32 s26, s24, s26
    s_min_u32 s27, s26, 4
    s_lshl_b32 s24, s26, 1
    s_add_u32 s{sIx}, s24, s27
    s_sub_u32 s24, s24, s27
    s_cmp_lt_u32 s26, 4
    s_cselect_b32 s26, 3, 2
    s_mul_i32 s27, s25, 18
    s_add_u32 s{sIx}, s{sIx}, s27
    s_add_u32 s{sIx}, s{sIx}, s{sW}
    s_mul_i32 s27, s25, 10
    s_add_u32 s24, s24, s27
    s_add_u32 s24, s24, s{sW}
    s_sub_u32 s24, s24, s26
    s_cmp_lt_u32 s{sW}, s26
    s_cselect_b32 s{sKv}, 1, 0
    s_cselect_b32 s{sIx}, s{sIx}, s24
    s_and_b32 s{sQ}, s{sIx}, 31
    s_lshr_b32 s{sRm}, s{sIx}, 5
    s_sub_u32 s34, 32, s{sQ}
    s_min_u32 s34, s34, s26
    s_sub_u32 s37, s26, s34
    s_mul_i32 s{sLb}, s{sW}, {CH}
    s_mul_i32 s24, s{sGw}, 5462
    s_lshr_b32 s24, s24, 16
    s_lshl_b32 s24, s24, 2
    s_add_u32 s43, s{sGw}, s24
    s_min_u32 s43, s43, 575
    v_lshlrev_b32 v{vL}, 4, v0
    s_waitcnt lgkmcnt(0)
    s_mov_b32 s54, s66
    s_mov_b32 s55, s67""")
    if a.trace: a(f's_mov_b32 s67, s{sW}')
    a.tr(0)
    lz = a.newlabel('NZ'); lz2 = a.newlabel('NZ')
    a(f's_cmp_lg_u32 s2, 255\ns_cbranch_scc1 {lz}\ns_cmp_lt_u32 s{sW}, 3\ns_cbranch_scc1 {lz2}')
    for i in range(4): a(f'v_mov_b32 v{ONE+i}, 0')
    a(f's_mov_b32 s24, {WS_FL}\nv_mul_u32_u24 v1, {FLS}, v0')
    for i in range(4):
        a(f'buffer_store_dwordx4 {vr(ONE, 4)}, v1, s[16:19], s24 offen {SC}')
        a(f's_add_u32 s24, s24, {64*FLS}')
    a(f'{lz2}:\ns_barrier\n{lz}:')
    conv_srd(a, 43)
    for i in range(4): a.vmem(f'buffer_load_dwordx4 {vr(KRAW+8*i+4, 4)}, v{vL}, s[8:11], 0 offen offset:{1024*i} {NT}', 'ck')
    a(f's_lshl_b32 s25, s43, 1')
    a.vmem(f'buffer_load_ushort v242, off, s[12:15], s25', 'ck')
    KR = 56; VR_ = 100; CF = 132; CU = 148; KC = 180; O = 24; P = 40; vK, vKm, vWr, vCf = 206, 207, 208, 209
    RW = 136; RD = 72; CA2 = 88
    ACC = 8; FB = 40; E = 8; UU = 112; TM = 128; vF, vG, vA, vU, vZ = 200, 201, 202, 203, 204
    def rawld(which, base, sS):
        pitch = 9216 if which == 3 else 1152
        for i in range(8):
            a(f'buffer_load_dwordx4 {vr(base+4*i, 4)}, v{vS3 if which == 3 else vS4}, s[12:15], s{sS} offen {NT}')
            if i < 7: a(f's_add_u32 s{sS}, s{sS}, {8*pitch}')
    lk0 = a.newlabel('NK0'); lk1 = a.newlabel('NK1')
    a(f's_cmp_eq_u32 s{sKv}, 0\ns_cbranch_scc1 {lk0}')
    a(f"""
    v_lshrrev_b32 v1, 3, v0
    v_and_b32 v2, 7, v0
    s_lshl_b32 s24, s{sQ}, 3
    v_add_u32 v3, s24, v1
    v_mul_u32_u24 v{vK}, {8*1152}, v3
    v_lshl_add_u32 v{vK}, v2, 4, v{vK}
    s_lshl_b32 s24, s{sRm}, 7
    v_add_u32 v{vK}, s24, v{vK}
    v_subrev_u32 v{vKm}, 3456, v{vK}
    v_lshlrev_b32 v{vCf}, 6, v2
    s_mul_i32 s{sKvF}, s{sRm}, {FLS}
    s_add_u32 s{sKvF}, s{sKvF}, {FL_KV}
    s_mov_b32 s8, s52
    s_mov_b32 s9, s53
    s_mov_b32 s10, {576*8}
    s_lshl_b32 s25, s{sRm}, 9""")
    for i in range(4): a(f'buffer_load_dwordx4 {vr(CF+4*i, 4)}, v{vCf}, s[8:11], s25 offen offset:{16*i}')
    a(f's_mov_b32 s8, s48\ns_mov_b32 s9, s49\ns_mov_b32 s10, {MAT}')
    for i in range(8):
        if i % 3 == 0: a(f's_mov_b32 s24, {1152*i}')
        a(f'buffer_load_dwordx4 {vr(KR+12+4*i, 4)}, v{vK}, s[8:11], s24 offen offset:{1152*(i%3)} {opt.get("knt", NT)}')
    for i in range(3): a(f'buffer_load_dwordx4 {vr(KR+4*i, 4)}, v{vKm}, s[8:11], 0 offen offset:{1152*i} {opt.get("knt", NT)}')
    a('s_mov_b32 s8, s50\ns_mov_b32 s9, s51')
    for i in range(8):
        if i % 3 == 0: a(f's_mov_b32 s24, {1152*i}')
        a(f'buffer_load_dwordx4 {vr(VR_+4*i, 4)}, v{vK}, s[8:11], s24 offen offset:{1152*(i%3)} {NT}')
    a(f"""v_sub_u32 v1, 7, v1
    v_xor_b32 v1, v1, v2
    v_lshlrev_b32 v1, 4, v1
    v_lshl_add_u32 v{vWr}, v2, 9, v1
    v_add_u32 v{vWr}, s{sLb}, v{vWr}""")
    rp_addr(a, vS3, vS4, vR, vL)
    a(f's_branch {lk1}\n{lk0}:')
    rp_addr(a, vS3, vS4, vR, vL)
    lz = a.newlabel('NZ')
    a(f's_cmp_lg_u32 s{sGw}, 447\ns_cbranch_scc1 {lz}\ns_waitcnt vmcnt(5)\ns_mov_b32 s5, 4\ns_atomic_add s5, s[100:101], 0\n{lz}:')
    a(f'{lk1}:')
    a(f'v_add_u32 v{vA}, s{sLb}, v{vL}')
    zero_fill(a, E, f's{sLb}')
    for i in range(4): a(f'v_mov_b32 v{ONE+i}, 0x3f803f80')
    lw = a.newlabel('W0'); lw2 = a.newlabel('W1')
    a(f's_cmp_eq_u32 s{sKv}, 0\ns_cbranch_scc1 {lw}\ns_waitcnt vmcnt(23)\ns_branch {lw2}\n{lw}:\ns_waitcnt vmcnt(0)')
    a.srd(8, 58, 59, 576*1152)
    a(f's_mul_i32 s24, s{sIx}, {33*128}\nv_min_u32 v1, 32, v0\nv_lshlrev_b32 v1, 7, v1\nbuffer_load_dword v253, v1, s[8:11], s24 offen')
    a(f'{lw2}:')
    a.vm = []
    S = Sched(a)
    for i in range(4): a.lds(f'ds_write_b128 v{vA}, {vr(KRAW+8*i+4, 4)} offset:{7*CST + 16 + 1024*i}', 'cw')
    for i in range(4): a.lds(f'ds_read_b128 {vr(KRAW+8*i, 4)}, v{vA} offset:{7*CST + 1024*i}', ('lo', i))
    for i in range(4):
        a.wait(lg=('lo', i))
        S.add([o for o in build_ops(KRAW + 8*i, E + 4 + 20*(i%2), vA, 1024*i) if isinstance(o, str) or f'offset:{7*CST + 16 + 1024*i}' not in o[1]]); S.flush()
    a.tr(1)
    CPRE = opt.get('cpre', 0)
    creg = (lambda o, n: ar(o, n)) if CPRE else (lambda o, n: vr(KRAW + o, n))
    def half(un, uu, cs):
        ops = [('lds', f'ds_write_b128 v{vA}, {vr(RW + 32*un + 16*uu + 4*i, 4) if un < 2 else creg(16*uu + 4*i, 4)} offset:{RO + 1024*i}', 'hw') for i in range(4)]
        rd = RD + (32 if (uu and not cs == 'conv') else 0)
        for t in range(4):
            for h in range(2): ops.append(('lds', f'ds_read_b64_tr_b16 {vr(rd + 4*t + 2*h, 2)}, v{vR+t} offset:{RO + h*2048}', ('hr', un, uu, t)))
        if cs == 'conv': ops += ['s_nop 0'] * 6
        for t in range(4):
            ops += [f's_add_u32 s24, s{sDst[un]}, {t*18432}', ('wait', ('hr', un, uu, t)),
                    ('vmem', f'buffer_store_dwordx4 {vr(rd + 4*t, 4)}, v{vL}, s[16:19], s24 offen offset:{uu*1024} {SC}', 'ls'),
                    f'v_mfma_f32_16x16x32_bf16 {vr(CA2+4*t, 4)}, {vr(ONE, 4)}, {vr(rd + 4*t, 4)}, {"0" if uu == 0 else vr(CA2+4*t, 4)}']
        return ops
    def csfin(un):
        return [f'v_lshrrev_b32 v1, 4, v0', f'v_cmp_eq_u32 vcc, 1, v1', f'v_cmp_eq_u32 s[50:51], 2, v1', f'v_cmp_eq_u32 s[52:53], 3, v1', f'v_lshlrev_b32 v2, 2, v0',
             f'v_cndmask_b32 v3, v{CA2}, v{CA2+4}, vcc', f'v_cndmask_b32 v3, v3, v{CA2+8}, s[50:51]', f'v_cndmask_b32 v{248+un%2}, v3, v{CA2+12}, s[52:53]',
             ('vmem', f'buffer_store_dword v{248+un%2}, v2, s[16:19], s{sCs[un]} offen {SC}', 'ls')]
    a(f's_cmp_eq_u32 s{sKv}, 0\ns_movk_i32 s24, 320\ns_cselect_b32 s24, 608, s24\ns_add_u32 s{sU}, s{sIx}, s24')
    rp_decode(a, 3, sU, sSrc[2], sDst[2], sFl[2], sCs[2])
    a(f's_cmp_ge_u32 s{sU}, 648\ns_cselect_b32 s49, 0, 1\ns_cselect_b32 s{sSrc[2]}, {WBYTES}, s{sSrc[2]}\ns_cselect_b32 s{sDst[2]}, {WS_END}, s{sDst[2]}\ns_cselect_b32 s{sCs[2]}, {WS_END}, s{sCs[2]}')
    a.srd(12, 64, 65, WBYTES)
    def rawC():
        for i in range(8):
            a(f'buffer_load_dwordx4 {creg(4*i, 4)}, v{vS3}, s[12:15], s{sSrc[2]} offen {NT}')
            if i < 7: a(f's_add_u32 s{sSrc[2]}, s{sSrc[2]}, {8*9216}')
    lnk = a.newlabel('NOKV'); lj = a.newlabel('S1J')
    a(f's_load_dword s4, s[100:101], 0\ns_cmp_eq_u32 s{sKv}, 0\ns_cbranch_scc1 {lnk}')
    a(f"""v_add_u32 v1, {RO}, v{vA}
    v_lshrrev_b32 v2, 3, v0
    v_lshrrev_b32 v3, 2, v2
    v_lshlrev_b32 v{vKm}, 4, v3
    v_xor_b32 v1, v1, v{vKm}
    v_and_b32 v2, 3, v2
    v_lshl_add_u32 v2, v3, 3, v2
    v_lshlrev_b32 v2, 12, v2
    v_and_b32 v3, 7, v0
    v_lshl_add_u32 v2, v3, 4, v2
    s_lshl_b32 s26, s{sRm}, 18
    s_sub_u32 s25, 31, s{sQ}
    s_lshl_b32 s25, s25, 7
    s_add_u32 s26, s26, s25
    s_add_u32 s26, s26, {WS_KVR}
    s_waitcnt vmcnt(19)""")
    for ch in range(8):
        for j in range(4): a(unp(CU + 8*(ch//2) + 2*j + ch%2, CF + 2*ch, j))
    a('s_waitcnt vmcnt(0)'); a.tr(2)
    if CPRE: rawC()
    def pk(op, d, s0, s1, s2=None): return f'{op} {vr(d, 2)}, {vr(s0, 2)}, {vr(s1, 2)}' + (f', {vr(s2, 2)}' if s2 is not None else '')
    KO = KRAW
    for cp in range(4):
        for i in range(11):
            for e in range(2): a(unp(KC + 2*i + e, KR + 4*i + cp, e))
        if cp == 2:
            for i in range(4):
                a.wait(lg=('kr', 0, i))
                a.vmem(f'buffer_store_dwordx4 {vr(KO+4*i, 4)}, v2, s[16:19], s24 offen {SC}', 'ks')
                if i < 3: a(f's_add_u32 s24, s24, {16*4096}')
        c = CU + 8*cp
        for t in range(8): a(pk('v_pk_mul_f32', O+2*t, KC+2*t, c+6))
        for j in (2, 1, 0):
            for t in range(8): a(pk('v_pk_fma_f32', O+2*t, KC+2*(t+3-j), c+2*j, O+2*t))
        for t in range(8):
            for e in range(2): a(unp(KC + 2*t + e, VR_ + 4*t + cp, e))
        for t in range(8): a(pk('v_pk_mul_f32', O+2*t, O+2*t, KC+2*t))
        for e in range(2):
            pp = P + 8*(cp%2) + 4*e
            for i in range(4): a(f'v_cvt_pk_bf16_f32 v{pp+i}, v{O+2*(7-2*i)+e}, v{O+2*(6-2*i)+e}')
            a.lds(f'ds_write_b128 v{vWr}, {vr(pp, 4)} offset:{RO + (2*(cp%2)+e)*128}', 'kw')
        if cp % 2 == 1:
            ps = cp // 2
            for i in range(4):
                a(f'v_xor_b32 v3, {32*i}, v1')
                a.lds(f'ds_read_b128 {vr(KO+16*ps+4*i, 4)}, v3 offset:{1024*i}', ('kr', ps, i))
            a(f's_add_u32 s24, s26, {ps*4*4096}')
    for i in range(4):
        a.wait(lg=('kr', 1, i))
        a.vmem(f'buffer_store_dwordx4 {vr(KO+16+4*i, 4)}, v2, s[16:19], s24 offen {SC}', 'ks')
        if i < 3: a(f's_add_u32 s24, s24, {16*4096}')
    a.tr(3)
    spin(a, 100, '0', 4, first_loaded=True, sleep=4, vec=True)
    lks = a.newlabel('KS')
    a.wait(vm='ks')
    a(f's_barrier\ns_cmp_lg_u32 s{sW}, 0\ns_cbranch_scc1 {lks}\ns_atomic_add s34, s[28:29], s{sKvF}\ns_cmp_eq_u32 s37, 0\ns_cbranch_scc1 {lks}\ns_add_u32 s40, s{sKvF}, {FLS}\ns_atomic_add s37, s[28:29], s40\n{lks}:')
    a(f's_branch {lj}\n{lnk}:')
    a.vm = []; a.lg = []
    spin(a, 100, '0', 4, first_loaded=True, sleep=4, vec=True)
    a(f's_mov_b32 s{sU}, s{sIx}')
    for i in range(2):
        rp_decode(a, 3, sU, sSrc[i], sDst[i], sFl[i], sCs[i])
        a(f's_add_u32 s{sU}, s{sU}, 160')
    for i in range(2): rawld(3, RW + 32*i, sSrc[i])
    if CPRE: rawC()
    nb = opt.get('nb', 0)
    if nb == 0: a('s_barrier')
    a(f's_waitcnt vmcnt({16 if CPRE else 8})')
    a.tr(2)
    S.add(half(0, 0, '') + half(0, 1, '') + csfin(0)); S.flush()
    if nb == 1: a('s_barrier')
    a('s_waitcnt vmcnt(9)')
    S.add(half(1, 0, '') + half(1, 1, '') + csfin(1)); S.flush()
    if nb == 2: a('s_barrier')
    a.tr(3)
    a(f'{lj}:')
    a.vm = []; a.lg = []
    if CPRE:
        lC = a.newlabel('NC')
        a(f's_cmp_eq_u32 s49, 0\ns_cbranch_scc1 {lC}')
        S.add(half(2, 0, '') + half(2, 1, '') + csfin(2)); S.flush()
        a(f'{lC}:')
    a.vm = []; a.lg = []
    a.tr(4)
    R4B = [RW + 32, RW + 48, RW]
    R4D = [61, 62, 63]
    def s4load(i):
        X, Y, Z, Q, SR = 24, 25, 26, 48, 60
        ops = [f's_mov_b32 s12, s58\ns_mov_b32 s13, s59'] if i == 0 else []
        ops += [f's_mul_i32 s{Q}, s{sGw}, 3\ns_add_u32 s{Q}, s{Q}, {i}\ns_lshr_b32 s{X}, s{Q}, 1\ns_and_b32 s{Q}, s{Q}, 1',
                f's_lshl_b32 s{R4D[i]}, s{Q}, 10\ns_mul_i32 s{SR}, s{Q}, {32*1152}\ns_mul_i32 s{Y}, s{X}, 3237\ns_lshr_b32 s{Y}, s{Y}, 18',
                f's_mul_i32 s{Z}, s{X}, 7282\ns_lshr_b32 s{Z}, s{Z}, 16\ns_mul_i32 s{Q}, s{Z}, 9\ns_sub_u32 s{X}, s{X}, s{Q}',
                f's_mul_i32 s{Q}, s{Z}, {64*1152}\ns_add_u32 s{SR}, s{SR}, s{Q}\ns_lshl_b32 s{Q}, s{X}, 7\ns_add_u32 s{SR}, s{SR}, s{Q}',
                f's_mul_i32 s{Y}, s{Y}, 9\ns_sub_u32 s{Z}, s{Z}, s{Y}\ns_add_u32 s{X}, s{X}, s{Y}\ns_mul_i32 s{X}, s{X}, 73728',
                f's_lshl_b32 s{Z}, s{Z}, 11\ns_add_u32 s{R4D[i]}, s{R4D[i]}, s{Z}\ns_add_u32 s{R4D[i]}, s{R4D[i]}, s{X}\ns_add_u32 s{R4D[i]}, s{R4D[i]}, {WS_WP4}']
        for k in range(4):
            ops.append(('vmem', f'buffer_load_dwordx4 {vr(R4B[i] + 4*k, 4)}, v{vS4}, s[12:15], s{SR} offen {NT}', ('r4', i)))
            if k < 3: ops.append(f's_add_u32 s{SR}, s{SR}, {8*1152}')
        return ops
    def s4half(i):
        ops = [('waitvm', ('r4', i))] + [('lds', f'ds_write_b128 v{vA}, {vr(R4B[i] + 4*k, 4)} offset:{RO + 1024*k}', 'hw') for k in range(4)]
        for t in range(4):
            for h in range(2): ops.append(('lds', f'ds_read_b64_tr_b16 {vr(R4B[i] + 4*t + 2*h, 2)}, v{vR+t} offset:{RO + h*2048}', ('h4', i, t)))
        ops2 = []
        for t in range(4):
            ops2 += [('wait', ('h4', i, t)), ('vmem', f'buffer_store_dwordx4 {vr(R4B[i] + 4*t, 4)}, v{vL}, s[16:19], s{R4D[i]} offen {SC}', 'l4')]
            if t < 3: ops2.append(f's_add_u32 s{R4D[i]}, s{R4D[i]}, 18432')
        return ops, ops2
    a('s_mov_b32 s58, s54\ns_mov_b32 s59, s55')
    def sig_early():
        l = a.newlabel('SE')
        return f's_cmp_lg_u32 s{sKv}, 0\ns_cbranch_scc1 {l}\ns_mov_b32 s5, 1\ns_atomic_add s5, s[28:29], s{sFl[0]}\ns_atomic_add s5, s[28:29], s{sFl[1]}\n{l}:\n' + (sig_late() if CPRE else '')
    def sig_late():
        l = a.newlabel('SL')
        return f's_cmp_eq_u32 s49, 0\ns_cbranch_scc1 {l}\ns_atomic_add s49, s[28:29], s{sFl[2]}\n{l}:'
    a(f"""
    v_and_b32 v3, 7, v0
    v_mul_u32_u24 v3, {CST}, v3
    v_bfe_u32 v1, v0, 3, 1
    v_lshrrev_b32 v{vZ}, 4, v0
    v_add_u32 v1, v1, v{vZ}
    v_lshl_add_u32 v{vF}, v1, 4, v3
    v_add_u32 v{vF}, s{sLb}, v{vF}
    v_and_b32 v1, 15, v0
    v_lshlrev_b32 v1, 5, v1
    v_lshlrev_b32 v{vG}, 4, v{vZ}
    v_sub_u32 v{vG}, v{vG}, v1
    s_add_u32 s24, s{sLb}, {RO + 480}
    v_add_u32 v{vG}, s24, v{vG}
    v_lshl_add_u32 v{vZ}, v{vZ}, 3, v1
    s_add_u32 s24, s{sLb}, {RO + 4088 - 7*512}
    v_sub_u32 v{vU}, s24, v{vZ}
    v_add_u32 v{vZ}, s{sLb}, v{vZ}
    v_lshlrev_b32 v242, 16, v242""")
    lnc = a.newlabel('NOCV')
    a(f's_mov_b32 s27, {FL_Z}\ns_mov_b32 s54, 0\ns_cmp_ge_u32 s{sGw}, 432\ns_cbranch_scc1 {lnc}')
    NF = 8
    a(f's_lshr_b32 s24, s43, 6\ns_mul_i32 s24, s24, {FLS}\ns_add_u32 s{sKvF}, s24, {FL_KV}')
    spin(a, 28, f's{sKvF}', 32, sleep=opt.get('kvsleep', 2), wg=True)
    a.tr(7)
    a(f's_lshl_b32 s24, s43, 12\ns_add_u32 m0, s{sLb}, {RO}\ns_add_u32 s24, s24, {WS_KVR}')
    for i in range(4): a.vmem(f'buffer_load_dwordx4 v{vL}, s[16:19], s24 offen offset:{1024*i} {SC} lds', 'cr')
    if not CPRE: rawC(); a.vm += ['raw'] * 8
    def grd(d): return ('lds', f'ds_read_b128 {ar(4*(d+7), 4)}, v{vG} offset:{(56-d)*64}', ('g', d))
    def frd(e): return ('lds', f'ds_read_b128 {vr(FB + 4*(e%NF), 4)}, v{vF} offset:{e*64}', ('f', e))
    def epi(j):
        u = UU + 2*j; T_ = TM; A_ = ACC + 4*j
        ops = [('wait', ('u', j))] + [unp(T_+r, u, 3 - r) for r in range(4)] + [f'v_mul_f32 v{T_+r}, v{T_+r}, v242' for r in range(4)]
        ops += [f'v_cvt_pk_bf16_f32 v{u+i}, v{T_+2*i}, v{T_+2*i+1}' for i in range(2)]
        ops2 = [f'v_cvt_pk_bf16_f32 v{T_+4+i}, v{A_+2*i}, v{A_+2*i+1}' for i in range(2)]
        ops2 += [unp(T_+r, u, r) for r in range(4)] + [unp(A_+r, T_+4, r) for r in range(4)] + [f'v_add_f32 v{A_+r}, v{A_+r}, v{T_+r}' for r in range(4)]
        ops2 += [f'v_cvt_pk_bf16_f32 v{u+i}, v{A_+2*i}, v{A_+2*i+1}' for i in range(2)]
        return ops, ops2
    S.add([frd(0), frd(1), frd(2)]); S.flush()
    a.wait(vm='cr')
    a(sig_early())
    a.tr(5)
    S.add([grd(8*j) for j in range(7, -1, -1)]); S.flush()
    nf = 3
    for e in range(64):
        if e == 24: a.tr(6)
        pre = []
        if e + 1 < 8: pre += [grd(8*j - e - 1) for j in range(7, -1, -1)]
        la = min(NF - 1, 3 + e // 8)
        while nf <= min(e + la, 63): pre.append(frd(nf)); nf += 1
        if e == 7: pre += [('lds', f'ds_read_b64 {vr(UU+2*j, 2)}, v{vU} offset:{(7-j)*512}', ('u', j)) for j in range(8)]
        S.q = pre + S.q
        if e % 8 == 1 and 9 <= e <= 33:
            for j in (e // 4 - 2, e // 4 - 1): S.add(epi(j)[0])
        if not CPRE:
            if e == 11: S.add([('waitvm', 'raw')] + half(2, 0, 'conv'))
            if e == 14: S.add(half(2, 1, 'conv') + csfin(2))
            if e == 24: S.add([('waitvm', 'ls'), sig_late()])
        if opt.get('rp4front', 1):
            if e == opt.get('s4l', 19): S.add(s4load(0) + s4load(1) + s4load(2))
            for i, ee in enumerate(opt.get('s4at', (30, 35, 41))):
                if e == ee: S.add(s4half(i)[0])
                if e == ee + 3: S.add(s4half(i)[1])
        if e % 8 == 2 and e >= 10: S.add(epi(e // 8 - 1)[1])
        for j in range(7, -1, -1):
            if e <= 8*j + 7:
                while any((not isinstance(o, str)) and o[0] == 'lds' and o[2] in (('f', e), ('g', 8*j - e)) for o in S.q): S.fill(1)
                a.wait(lg=[('f', e), ('g', 8*j - e)])
                a(f'v_mfma_f32_16x16x32_bf16 {vr(ACC+4*j, 4)}, {vr(FB + 4*(e%NF), 4)}, {ar(4*(8*j-e+7), 4)}, {"0" if e == 0 else vr(ACC+4*j, 4)}')
                S.fill(2)
    S.add(epi(7)[1]); S.flush()
    a.tr(8)
    for j in range(8): a.lds(f'ds_write_b64 v{vZ}, {vr(UU+2*j, 2)} offset:{512*j}', 'zw')
    for i in range(4): a.lds(f'ds_read_b128 {vr(FB+4*i, 4)}, v{vA} offset:{1024*i}', ('zr', i))
    a(f's_lshl_b32 s24, s43, 12\ns_add_u32 s24, s24, {WS_ZT}')
    for i in range(4):
        a.wait(lg=('zr', i))
        a.vmem(f'buffer_store_dwordx4 {vr(FB+4*i, 4)}, v{vL}, s[16:19], s24 offen offset:{1024*i} {SC}', 'zs')
    a(f's_bfe_u32 s24, s43, 0x20004\ns_mul_i32 s24, s24, {FLS}\ns_add_u32 s27, s24, {FL_Z}\ns_mov_b32 s54, 16')
    lc2 = a.newlabel('CVJ')
    a(f's_branch {lc2}\n{lnc}:')
    if not CPRE: rawC()
    a('s_waitcnt vmcnt(0)')
    a(sig_early())
    if not CPRE:
        a.vm = []; a.lg = []
        S.add(half(2, 0, '') + half(2, 1, '') + csfin(2)); S.flush()
        a('s_waitcnt vmcnt(0)\n' + sig_late())
    a('s_waitcnt lgkmcnt(0)')
    a(f'{lc2}:')
    a.vm = []; a.lg = []
    a.tr(9)


def rp4_decode_ops(src, dst, fl, t):
    X, Y, Z, Q = t
    ops = []
    for h in range(2):
        ops += [f's_lshl_b32 s{X}, s2, 1\ns_lshr_b32 s{Y}, s{sW}, 1\ns_add_u32 s{X}, s{X}, s{Y}\ns_add_u32 s{X}, s{X}, {224*h}',
                f's_mul_i32 s{Y}, s{X}, 3237\ns_lshr_b32 s{Y}, s{Y}, 18\ns_mul_i32 s{fl[h]}, s{Y}, {FLS}\ns_add_u32 s{fl[h]}, s{fl[h]}, {FL_W4}',
                f's_mul_i32 s{Z}, s{X}, 7282\ns_lshr_b32 s{Z}, s{Z}, 16\ns_mul_i32 s{Q}, s{Z}, 9\ns_sub_u32 s{X}, s{X}, s{Q}',
                f's_mul_i32 s{src[h]}, s{Z}, {64*1152}\ns_lshl_b32 s{Q}, s{X}, 7\ns_add_u32 s{src[h]}, s{src[h]}, s{Q}',
                f's_mul_i32 s{Y}, s{Y}, 9\ns_sub_u32 s{Z}, s{Z}, s{Y}\ns_add_u32 s{X}, s{X}, s{Y}\ns_mul_i32 s{dst[h]}, s{X}, 73728',
                f's_lshl_b32 s{Z}, s{Z}, 11\ns_add_u32 s{dst[h]}, s{dst[h]}, s{Z}\ns_add_u32 s{dst[h]}, s{dst[h]}, {WS_WP4}',
                f's_and_b32 s{Q}, s{sW}, 1\ns_lshl_b32 s{X}, s{Q}, 10\ns_add_u32 s{dst[h]}, s{dst[h]}, s{X}\ns_mul_i32 s{Q}, s{Q}, {32*1152}\ns_add_u32 s{src[h]}, s{src[h]}, s{Q}']
    return ops
def rp4_load_ops(reg, vS, src, nh):
    ops = []
    for h in range(nh):
        for i in range(4):
            ops.append(('vmem', f'buffer_load_dwordx4 {reg(16*h + 4*i, 4)}, v{vS}, s[12:15], s{src[h]} offen {NT}', 'graw'))
            if i < 3: ops.append(f's_add_u32 s{src[h]}, s{src[h]}, {8*1152}')
    return ops
def rp4_finish(a, reg, dst, nh, base, st):
    a(base)
    a(f"""v_lshrrev_b32 v1, 2, v0
    v_lshlrev_b32 v3, 7, v1
    v_bfe_u32 v2, v1, 1, 2
    v_lshl_add_u32 v3, v2, 5, v3
    v_and_b32 v2, 3, v0
    v_lshl_add_u32 v3, v2, 3, v3
    v_add_u32 v3, s{st}, v3
    v_lshlrev_b32 v2, 4, v0
    v_add_u32 v254, s{st}, v2""")
    a.wait(vm='graw')
    for h in range(nh):
        for i in range(4): a.lds(f'ds_write_b128 v254, {reg(16*h + 4*i, 4)} offset:{1024*i}', 'gw')
        for t in range(4):
            a(f'v_xor_b32 v1, {32*t}, v3')
            for hh in range(2): a.lds(f'ds_read_b64_tr_b16 {reg(16*h + 4*t + 2*hh, 2)}, v1 offset:{hh*2048}', ('gr', h, t))
    for h in range(nh):
        for t in range(4):
            a.wait(lg=('gr', h, t))
            a.vmem(f'buffer_store_dwordx4 {reg(16*h + 4*t, 4)}, v2, s[16:19], s{dst[h]} offen {SC}', 'gs')
            if t < 3: a(f's_add_u32 s{dst[h]}, s{dst[h]}, 18432')
```

```python
import sys, hz
from common import *
import front, p3, p3b, p3b_v1
from front import sW, sig
NAME = 'recurrent_scan__ssm_conv_h3__mixer_s_mlp__prompt_kernel'

def gen(stamps=False, trace=False, opt={}, p3kw={}, trp='front', dbg=False):
    a = Gen(); a.trace = trace
    MAPB[0] = opt.get('mapb', 1)
    on = [True]
    a.tr = lambda i: Gen.tr(a, i) if (on[0] or i >= 10) else None
    a('KSTART:\ns_cmp_ge_u32 s2, 256\ns_cbranch_scc1 K_end')
    if stamps: stamp_start(a)
    def dbgpt(i, inv=False):
        if not dbg: return
        l = a.newlabel('DB')
        a(f's_cmp_lg_u32 s{sW}, 0\ns_cbranch_scc1 {l}\ns_memrealtime s[96:97]\ns_waitcnt lgkmcnt(0)' if not inv else f's_cmp_lg_u32 s{sW}, 0\ns_cbranch_scc1 {l}\ns_not_b32 s96, s98')
        a(f's_atomic_umax s96, s[100:101], {4*i}\ns_waitcnt lgkmcnt(0)\n{l}:')
    if dbg: a('s_memrealtime s[98:99]')
    trace_init(a); trace_wave(a)
    a(f'''s_load_dwordx2 s[28:29], s[0:1], 104
    s_load_dwordx2 s[16:17], s[0:1], 104
    s_load_dwordx2 s[100:101], s[0:1], 96
    s_getpc_b64 s[6:7]
    s_lshr_b32 s3, s2, 3
    v_lshrrev_b32 v1, 4, v0
    v_lshl_add_u32 v1, s3, 4, v1
    v_lshlrev_b32 v1, 7, v1
    v_min_u32 v1, KEND - KSTART - 256, v1
    global_load_dword v255, v1, s[6:7]
    v_lshrrev_b32 v1, 6, v0
    v_and_b32 v0, 63, v0
    v_readfirstlane_b32 s{sW}, v1
    s_mov_b32 s18, {WS_END}
    s_mov_b32 s19, 0x20000
    s_cmp_ge_u32 s2, 144
    s_cbranch_scc1 K_side''')
    opt = dict(opt)
    if opt.get('v2', 1):
        opt['rp4front'] = 0; opt.setdefault('w4touch', 30)
        P = (p3b if opt.get('v2', 2) == 2 else p3b_v1).make_p3(a, **p3kw)
    else: P = p3.make_p3(a, rp4=not opt.get('rp4front', 1), **p3kw)
    on[0] = trp == 'front'
    r = front.gen_G(a, opt)
    mt = lambda i: Gen.tr(a, i) if trp == 'mid' else None
    mt(0)
    a('s_branch K_e2\nK_side:')
    a.vm = []; a.lg = []
    on[0] = trp == 'front'
    front.gen_S(a, opt)
    mt(0)
    a('K_e2:')
    P['e1a'](True)
    mt(1)
    a(f's_cmp_ge_u32 s2, 144\ns_cbranch_scc1 K_nx\ns_waitcnt vmcnt(0)\ns_barrier\ns_bitcmp1_b32 s{sW}, 0\ns_cbranch_scc0 K_nx')
    sig(a, 's89')
    a('s_barrier\ns_branch K_nx2\nK_nx:')
    mt(2)
    P['e1w'](True)
    a('K_nx2:')
    a.tr(9); mt(4)
    if dbg: a('s_memrealtime s[94:95]')
    on[0] = trp == 'p3'
    ops = P['e1b']()
    for i, op in enumerate(ops):
        P['emit'](op)
        if i == len(ops) - opt.get('xpre', 8): P['e2pre']()
    mt(5)
    P['e1c']()
    a.tr(0); mt(7)
    P['e2'](lambda: mt(8))
    a.tr(1); mt(9)
    a('K_p3:')
    if dbg: a('s_memrealtime s[92:93]')
    a.lg = ['any']
    on[0] = trp == 'p3' and p3kw.get('trc') is None
    P['main']()
    if dbg:
        a('s_waitcnt vmcnt(0) lgkmcnt(0)')
        dbgpt(2); dbgpt(1, True)
        l = a.newlabel('DB')
        a(f's_cmp_lg_u32 s{sW}, 0\ns_cbranch_scc1 {l}\ns_atomic_umax s98, s[100:101], 12\ns_atomic_umax s92, s[100:101], 24\ns_cmp_ge_u32 s2, 144\ns_cselect_b32 s3, 20, 16\ns_atomic_umax s94, s[100:101], s3\n{l}:')
    if stamps:
        a.tr(10); a('s_waitcnt vmcnt(0) lgkmcnt(0)'); a.tr(11)
        trace_dump(a, 28, 0, P['W'] + 8)
        stamp_end(a, 28, 0, vtmp=P['W'])
    a('K_end:\ns_endpgm\n.fill 64, 4, 0xbf800000\nKEND:')
    return hz.fix(a.text())

def build(single=False, **kw):
    body = gen(**kw)
    t = build_file([(NAME, 256, 256, 163840)], [(NAME, body, 512, 102, 256)])
    if single: t = t.replace(f'; @launch kernel={NAME} grid', '; @launch grid')
    return t
if __name__ == '__main__':
    HEADER = open('recurrent_scan__ssm_conv_h3__mixer_s_mlp__prompt.s.ref').read().split('; Override launch')[0]
    kw = eval(sys.argv[2]) if len(sys.argv) > 2 else {}
    open(sys.argv[1], 'w').write(HEADER + build(single=True, **kw))
```

```python
import sys, hz
from common import *
import front, p3, p3b, p3b_v1
from front import sW, sig
NAME = 'recurrent_scan__ssm_conv_h3__mixer_s_mlp__prompt_kernel'

def gen(stamps=False, trace=False, opt={}, p3kw={}, trp='front', dbg=False, amp=None):
    a = Gen(); a.trace = trace
    MAPB[0] = opt.get('mapb', 1)
    on = [True]
    a.tr = lambda i: Gen.tr(a, i) if (on[0] or i >= 10) else None
    a('KSTART:\ns_cmp_ge_u32 s2, 256\ns_cbranch_scc1 K_end')
    if stamps: stamp_start(a)
    def dbgpt(i, inv=False):
        if not dbg: return
        l = a.newlabel('DB')
        a(f's_cmp_lg_u32 s{sW}, 0\ns_cbranch_scc1 {l}\ns_memrealtime s[96:97]\ns_waitcnt lgkmcnt(0)' if not inv else f's_cmp_lg_u32 s{sW}, 0\ns_cbranch_scc1 {l}\ns_not_b32 s96, s98')
        a(f's_atomic_umax s96, s[100:101], {4*i}\ns_waitcnt lgkmcnt(0)\n{l}:')
    if dbg or amp: a('s_memrealtime s[98:99]')
    trace_init(a); trace_wave(a)
    a(f'''s_load_dwordx2 s[28:29], s[0:1], 104
    s_load_dwordx2 s[16:17], s[0:1], 104
    s_load_dwordx2 s[100:101], s[0:1], 96
    s_getpc_b64 s[6:7]
    s_lshr_b32 s3, s2, 3
    v_lshrrev_b32 v1, 4, v0
    v_lshl_add_u32 v1, s3, 4, v1
    v_lshlrev_b32 v1, 7, v1
    v_min_u32 v1, KEND - KSTART - 256, v1
    global_load_dword v255, v1, s[6:7]
    v_lshrrev_b32 v1, 6, v0
    v_and_b32 v0, 63, v0
    v_readfirstlane_b32 s{sW}, v1
    s_mov_b32 s18, {WS_END}
    s_mov_b32 s19, 0x20000
    s_cmp_ge_u32 s2, 144
    s_cbranch_scc1 K_side''')
    opt = dict(opt)
    if opt.get('v2', 1):
        opt['rp4front'] = 0; opt.setdefault('w4touch', 30)
        P = (p3b if opt.get('v2', 2) == 2 else p3b_v1).make_p3(a, **p3kw)
    else: P = p3.make_p3(a, rp4=not opt.get('rp4front', 1), **p3kw)
    on[0] = trp == 'front'
    r = front.gen_G(a, opt)
    mt = lambda i: Gen.tr(a, i) if trp == 'mid' else None
    mt(0)
    a('s_branch K_e2\nK_side:')
    a.vm = []; a.lg = []
    on[0] = trp == 'front'
    front.gen_S(a, opt)
    mt(0)
    a('K_e2:')
    if amp == 'e2': a('s_memrealtime s[92:93]')
    P['e1a'](True)
    mt(1)
    a(f's_cmp_ge_u32 s2, 144\ns_cbranch_scc1 K_nx\ns_waitcnt vmcnt(0)\ns_barrier\ns_bitcmp1_b32 s{sW}, 0\ns_cbranch_scc0 K_nx')
    sig(a, 's89')
    a('s_barrier\ns_branch K_nx2\nK_nx:')
    mt(2)
    P['e1w'](True)
    a('K_nx2:')
    a.tr(9); mt(4)
    if dbg: a('s_memrealtime s[94:95]')
    on[0] = trp == 'p3'
    ops = P['e1b']()
    for i, op in enumerate(ops):
        P['emit'](op)
        if i == len(ops) - opt.get('xpre', 8): P['e2pre']()
    mt(5)
    P['e1c']()
    a.tr(0); mt(7)
    P['e2'](lambda: mt(8))
    a.tr(1); mt(9)
    a('K_p3:')
    if dbg or amp == 'main': a('s_memrealtime s[92:93]')
    a.lg = ['any']
    on[0] = trp == 'p3' and p3kw.get('trc') is None
    P['main']()
    if dbg:
        a('s_waitcnt vmcnt(0) lgkmcnt(0)')
        dbgpt(2); dbgpt(1, True)
        l = a.newlabel('DB')
        a(f's_cmp_lg_u32 s{sW}, 0\ns_cbranch_scc1 {l}\ns_atomic_umax s98, s[100:101], 12\ns_atomic_umax s92, s[100:101], 24\ns_cmp_ge_u32 s2, 144\ns_cselect_b32 s3, 20, 16\ns_atomic_umax s94, s[100:101], s3\n{l}:')
    if amp:
        a('s_waitcnt vmcnt(0) lgkmcnt(0)\ns_memrealtime s[94:95]\ns_waitcnt lgkmcnt(0)')
        if amp == 'all': a('s_mov_b32 s92, s94')
        if amp == 'zero': a('s_mov_b32 s92, s98')
        a('s_sub_u32 s92, s92, s98\ns_min_u32 s92, s92, 20000\nAMP:\ns_memrealtime s[96:97]\ns_waitcnt lgkmcnt(0)\ns_sub_u32 s96, s96, s94\ns_cmp_lt_u32 s96, s92\ns_cbranch_scc1 AMP')
    if stamps:
        a.tr(10); a('s_waitcnt vmcnt(0) lgkmcnt(0)'); a.tr(11)
        trace_dump(a, 28, 0, P['W'] + 8)
        stamp_end(a, 28, 0, vtmp=P['W'])
    a('K_end:\ns_endpgm\n.fill 64, 4, 0xbf800000\nKEND:')
    return hz.fix(a.text())

def build(single=False, **kw):
    body = gen(**kw)
    t = build_file([(NAME, 256, 256, 163840)], [(NAME, body, 512, 102, 256)])
    if single: t = t.replace(f'; @launch kernel={NAME} grid', '; @launch grid')
    return t
if __name__ == '__main__':
    HEADER = open('recurrent_scan__ssm_conv_h3__mixer_s_mlp__prompt.s.ref').read().split('; Override launch')[0]
    kw = eval(sys.argv[2]) if len(sys.argv) > 2 else {}
    open(sys.argv[1], 'w').write(HEADER + build(single=True, **kw))
```
